```python
import torch

def _softmax(x, axis=-1):
    return torch.softmax(x, dim=axis)
def _gelu(x):
    return torch.nn.functional.gelu(x, approximate="tanh")
def _silu(x):
    return torch.nn.functional.silu(x)
def _sigmoid(x):
    return torch.sigmoid(x)
def _layernorm(x, axis=-1, eps=1e-5):
    m = x.mean(dim=axis, keepdim=True)
    v = x.var(dim=axis, keepdim=True, unbiased=False)
    return (x - m) / torch.sqrt(v + eps)
def _scatter_add(tgt, idx, src, axis=0):
    return tgt.clone().index_add_(axis, idx, src)
def _segment_sum(src, seg, n):
    out = torch.zeros((n,) + src.shape[1:], dtype=src.dtype)
    return out.index_add_(0, seg, src)
def _pad(x, pw):
    flat = tuple(v for pair in reversed(pw) for v in pair)
    return torch.nn.functional.pad(x, flat)

kernel_name = 'standalone__dense_activation_relu__prompt'

def setup_inputs():

    _w = (lambda a: (lambda t: t.to(torch.bfloat16) if t.is_floating_point() else t)(torch.as_tensor(a)))
    B, S, D, Dff = 1, 2048, 512, 1792
    return {
        "x": _w((lambda *s: torch.randn(*s, dtype=torch.bfloat16) * 0.05)(B, S, D)),
        "w1": _w((lambda *s: torch.randn(*s, dtype=torch.bfloat16) * 0.05)(D, Dff)),
        "w2": _w((lambda *s: torch.randn(*s, dtype=torch.bfloat16) * 0.05)(Dff, D)),
    }

def reference(x, w1, w2):
    h = torch.einsum("bsd,df->bsf", x, w1)
    zero = torch.zeros_like(h)
    h = torch.maximum(h, zero)
    return torch.einsum("bsf,fd->bsd", h, w2)
```

```python
from common import *
STAMP=0x8000000
def kern(name, flags, nst, spin):
    s = klabel(name)
    s += f"""
  s_memrealtime s[40:41]
  s_load_dwordx2 s[8:9], s[0:1], 40
  v_lshrrev_b32 v1, 6, v0
  v_and_b32 v2, 63, v0
  s_nop 1
  v_readfirstlane_b32 s20, v1
  s_waitcnt lgkmcnt(0)
  s_mov_b32 s16, s8
  s_mov_b32 s17, s9
  s_mov_b32 s18, 0x10000000
  s_mov_b32 s19, 0x20000
  s_lshl_b32 s21, s2, 17   ; wg*128KB
  s_lshl_b32 s22, s20, 15  ; wave*32KB
  s_add_u32 s21, s21, s22
  v_lshlrev_b32 v3, 4, v2
"""
    for i in range(nst):
        s += f"  s_add_u32 s23, s21, {(i)*1024}\n  buffer_store_dwordx4 v[8:11], v3, s[16:19], s23 offen {flags}\n"
    s += f"""
  s_mov_b32 s30, {spin}
{name}_l:
  s_nop 15
  s_sub_u32 s30, s30, 1
  s_cmp_lg_u32 s30, 0
  s_cbranch_scc1 {name}_l
  s_waitcnt vmcnt(0)
  s_memrealtime s[42:43]
  s_waitcnt lgkmcnt(0)
  v_mov_b32 v8, s40
  v_mov_b32 v9, s42
  s_lshl_b32 s28, s2, 8
  s_lshl_b32 s29, s20, 6
  s_add_u32 s28, s28, s29
  s_add_u32 s28, s28, {STAMP}
  v_mov_b32 v6, 0
  v_cmp_eq_u32 vcc, 0, v2
  s_and_saveexec_b64 s[32:33], vcc
  buffer_store_dwordx2 v[8:9], v6, s[16:19], s28 offen sc1
  s_endpgm
"""
    s += kd(name)
    return s
src=head(); names=[]
for spin in (150,300):
  for fl,fn in (("","plain"),("sc1","sc1"),("nt","nt")):
    for nst in (0,2,8,32):
        if nst==0 and fn!="plain": continue
        n=f"k_{fn}_s{nst}_sp{spin}"; names.append(n); src+=kern(n,fl,nst,spin)
src+=meta(names)
build(src,"mb8")
open("mb8.list","w").write("\n".join(names)+"\n")
```

```python
import sys, subprocess, argparse

KNAME = "standalone__dense_activation_relu__prompt_kernel"
HEADER = """; Kernarg layout for this problem (48 bytes, ptrs only, base s[0:1]):
; @launch grid=(256,1,1) block=(256,1,1) lds=163840
"""

FLAGS_OFF = 0x800000
STAMP_OFF = 0x8000000

S_X, S_W1, S_W2, S_OUT, S_DBG, S_WS = 16, 20, 24, 28, 32, 36
S_WAVE = 40
S_XCD = 41
S_I = 42
S_T0, S_T1, S_T2, S_T3 = 43, 44, 45, 46
S_M0A = 47
S_U = 48
S_M0W2 = 55
S_UW = 56
S_SPIN = 63
S_KX = 64
S_KW = 72
S_NON = 80
S_EX = 82
S_ST = 84

V_LANE = 1
V_OX = 2
V_OW1 = 6
V_OW2 = 10
V_HF = 14
V_HS = 15
V_NON = 16
V_POLLA = 18
V_FLAGA = 19
V_POLL = 20
V_HST = 22
V_OUTA = 23
V_OUTB = 24
V_T = 25
V_ACC = 32
V_FR = 96
V_EP = 160
V_AX = 192
V_AW1 = 204
V_AW2 = 210
V_RW = 216
V_RR = 220
V_RES = 222
V_RD = 224
V_R0 = 26
V_HR = 96


class G:
    def __init__(self, o):
        self.o = o
        self.L = []
        self.nst = 0

    def e(self, s):
        self.L.append("    " + s)

    def lab(self, s):
        self.L.append(s + ":")

    def c(self, s):
        self.L.append("    ; " + s)

    def stamp(self, name):
        if not self.o.stamps:
            return
        names = self.o.stamps.split(",")
        assert len(names) <= 9
        if name == "final":
            idx = 8
        elif name in names[:8]:
            idx = names.index(name)
        else:
            return
        r = S_ST + 2 * idx
        self.e(f"s_memrealtime s[{r}:{r+1}]" if self.o.rt else f"s_memtime s[{r}:{r+1}]")


def srd(g, d, lo, nbytes):
    g.e(f"s_mov_b32 s{d}, s{lo}")
    g.e(f"s_mov_b32 s{d+1}, s{lo+1}")
    g.e(f"s_mov_b32 s{d+2}, {hex(nbytes)}")
    g.e(f"s_mov_b32 s{d+3}, 0x20000")


def slot_base(u):
    return (u % 5) * 32768


def zone(u):
    s = u % 5
    return s // 2, (s % 2) * 32768


def dma_p1(g, t, pos=None):
    sb = slot_base(t if pos is None else pos)
    out = []
    out.append([f"s_add_u32 m0, s{S_M0A}, {sb}", "s_nop 0"])
    for j in range(4):
        ins = f"buffer_load_dwordx4 v{V_OW1+j}, s[{S_W1}:{S_W1+3}], s{S_KW+t} offen offset:{1024*j} lds"
        if j == 0:
            out[-1].append(ins)
        else:
            out.append([ins])
    out.append([f"s_add_u32 m0, s{S_M0A}, {sb+16384}", "s_nop 0"])
    for j in range(4):
        ins = f"buffer_load_dwordx4 v{V_OX+j}, s[{S_X}:{S_X+3}], s{S_KX+t} offen offset:{1024*j} lds"
        if j == 0:
            out[-1].append(ins)
        else:
            out.append([ins])
    return out


def dma_w2(g, b, pos=None):
    u = 8 + b if pos is None else pos
    sb = slot_base(u)
    out = []
    for half in range(2):
        for j in range(4):
            so = f"s{S_UW+b}" if half == 0 else f"s{S_T3}"
            ins = f"buffer_load_dwordx4 v{V_OW2+j}, s[{S_W2}:{S_W2+3}], {so} offen offset:{1024*j} lds"
            if j == 0:
                pre = [f"s_add_u32 m0, s{S_M0W2}, {sb + 4096*half}"]
                pre.append(f"s_add_u32 s{S_T3}, s{S_UW+b}, 32768" if half == 1 else "s_nop 0")
                out.append(pre + [ins])
            else:
                out.append([ins])
    return out


def dma_item(g, u):
    return dma_p1(g, u) if u < 8 else dma_w2(g, u - 8)


def emit_groups(g, groups):
    for gr in groups:
        for i in gr:
            g.e(i)


def fr(s, k):
    return V_FR + 16 * s + 4 * k


def p1_reads(pos, s):
    z, add = zone(pos)
    r = []
    for phi in range(2):
        for e in range(2):
            d = fr(s, phi) + 2 * e
            r.append(f"ds_read_b64_tr_b16 v[{d}:{d+1}], v{V_AW1+2*z+phi} offset:{add + (16*s+4*e)*256}")
    for rho in range(2):
        d = fr(s, 2 + rho)
        r.append(f"ds_read_b128 v[{d}:{d+3}], v{V_AX+4*z+s} offset:{add + 16384 + rho*4096}")
    return [r[0], r[1], r[4], r[5], r[2], r[3]]


def p1_mfma(s, first):
    r = []
    for phi in range(2):
        for rho in range(2):
            a = V_ACC + (phi * 2 + rho) * 16
            A = fr(s, phi)
            B = fr(s, 2 + rho)
            c = "0" if first else f"v[{a}:{a+15}]"
            r.append(f"v_mfma_f32_32x32x16_bf16 v[{a}:{a+15}], v[{A}:{A+3}], v[{B}:{B+3}], {c}")
    return r


def w2_tr(b, pos=None):
    z, add = zone(8 + b if pos is None else pos)
    r = []
    for kp in range(4):
        for nu in range(2):
            for e in range(2):
                d = (b * 8 + kp * 2 + nu) * 4 + 2 * e
                r.append(f"ds_read_b64_tr_b16 a[{d}:{d+1}], v{V_AW2+2*z+nu} offset:{add + (16*kp+8*e)*128}")
    return r


def emit_tr(g, b, pos=None):
    rs = w2_tr(b, pos)
    for i, x in enumerate(rs):
        if i == 8:
            g.e("s_waitcnt lgkmcnt(4)")
        g.e(x)


def interleave(g, mf, fill):
    n = len(mf)
    k = 0
    for i, m in enumerate(mf):
        g.e(m)
        tgt = (len(fill) * (i + 1) + n - 1) // n
        while k < tgt:
            for x in fill[k]:
                g.e(x)
            k += 1


def gen(o):
    g = G(o)
    e = g.e
    D = o.depth
    NB = o.nbuf
    g.lab(KNAME)
    g.stamp("entry")
    e("s_load_dwordx8 s[4:11], s[0:1], 0")
    e("s_load_dwordx4 s[12:15], s[0:1], 32")
    e(f"s_memrealtime s[{S_NON}:{S_NON+1}]")
    e("s_cmp_ge_u32 s2, 256")
    e("s_cbranch_scc1 L_end")
    e(f"v_lshrrev_b32 v{V_T}, 6, v0")
    e(f"v_and_b32 v{V_LANE}, 63, v0")
    e(f"s_and_b32 s{S_XCD}, s2, 7")
    e(f"v_readfirstlane_b32 s{S_WAVE}, v{V_T}")
    e(f"s_lshr_b32 s{S_I}, s2, 3")
    L = V_LANE
    T = V_T
    e(f"s_and_b32 s{S_T0}, s{S_I}, 3")
    e(f"s_lshr_b32 s{S_T1}, s{S_I}, 2")
    e(f"s_lshl_b32 s{S_T2}, s{S_T0}, 1")
    e(f"s_add_u32 s{S_T2}, s{S_T2}, s{S_T1}")
    if not o.rot1:
        e(f"s_mov_b32 s{S_T2}, 0")
    if o.map1 == 0:
        e(f"s_lshr_b32 s{S_T3}, s{S_XCD}, 1")
        e(f"s_lshl_b32 s{S_T3}, s{S_T3}, 2")
        e(f"s_add_u32 s{S_T0}, s{S_T0}, s{S_T3}")
        e(f"s_and_b32 s{S_T3}, s{S_XCD}, 1")
        e(f"s_mul_i32 s{S_T3}, s{S_T3}, 7")
        e(f"s_add_u32 s{S_T1}, s{S_T1}, s{S_T3}")
    else:
        raise SystemExit("map1")
    e(f"s_mov_b32 s3, s{S_T0}")
    e(f"s_mov_b32 s{S_SPIN}, s{S_T1}")
    e(f"s_lshl_b32 s{S_T0}, s{S_T0}, 17")
    e(f"s_lshl_b32 s{S_T1}, s{S_T1}, 8")
    def kofs(t):
        e(f"s_add_u32 s{S_T3}, s{S_T2}, {t}")
        e(f"s_and_b32 s{S_T3}, s{S_T3}, 7")
        e(f"s_mul_i32 s{S_KW+t}, s{S_T3}, {64*3584}")
        e(f"s_lshl_b32 s{S_T3}, s{S_T3}, 7")
        e(f"s_add_u32 s{S_KX+t}, s{S_T3}, s{S_T0}")
        e(f"s_add_u32 s{S_KW+t}, s{S_KW+t}, s{S_T1}")
    kofs(0)
    kofs(1)
    e(f"s_lshl_b32 s{S_M0A}, s{S_WAVE}, 12")
    e(f"s_lshl_b32 s{S_M0W2}, s{S_WAVE}, 13")
    e(f"v_lshrrev_b32 v{T}, 4, v{L}")
    e(f"v_and_b32 v{T+1}, 15, v{L}")
    e(f"v_lshlrev_b32 v{T+2}, 2, v{T}")
    e(f"v_xor_b32 v{T+1}, v{T+1}, v{T+2}")
    e(f"v_lshlrev_b32 v{T+1}, 4, v{T+1}")
    e(f"s_lshl_b32 s{S_T3}, s{S_WAVE}, 4")
    e(f"v_add_u32 v{T+2}, s{S_T3}, v{T}")
    e(f"v_mul_u32_u24 v{T+2}, 3584, v{T+2}")
    e(f"v_add_u32 v{V_OW1}, v{T+1}, v{T+2}")
    for j in range(1, 4):
        e(f"v_add_u32 v{V_OW1+j}, {13312*j}, v{V_OW1}")
    e(f"v_and_b32 v{T+1}, 7, v{L}")
    e(f"v_xor_b32 v{T+2}, v{T+1}, v{T}")
    e(f"v_lshlrev_b32 v{T+2}, 4, v{T+2}")
    e(f"v_lshrrev_b32 v{T+3}, 3, v{L}")
    e(f"s_lshl_b32 s{S_T3}, s{S_WAVE}, 15")
    e(f"v_lshl_add_u32 v{T+4}, v{T+3}, 10, s{S_T3}")
    e(f"v_add_u32 v{V_OX}, v{T+4}, v{T+2}")
    e(f"v_xor_b32 v{T+2}, 64, v{T+2}")
    e(f"v_add_u32 v{T+2}, v{T+4}, v{T+2}")
    e(f"v_add_u32 v{V_OX+1}, 7168, v{T+2}")
    e(f"v_add_u32 v{V_OX+2}, {7168*2}, v{V_OX}")
    e(f"v_add_u32 v{V_OX+3}, {7168*3}, v{T+2}")
    g.stamp("prekarg")
    e("s_waitcnt lgkmcnt(0)")
    g.stamp("karg")
    srd(g, S_W1, 6, 512 * 1792 * 2)
    srd(g, S_X, 4, 2048 * 512 * 2)
    e(f"s_cmp_ge_u32 s{S_I}, 28")
    e("s_cbranch_scc1 L_setup2")
    emit_groups(g, dma_p1(g, 0))
    emit_groups(g, dma_p1(g, 1)[:o.early1])
    g.stamp("dma0")
    g.lab("L_setup2")
    for t in range(2, 8):
        kofs(t)
    srd(g, S_W2, 8, 512 * 1792 * 2)
    srd(g, S_OUT, 10, 2048 * 512 * 2)
    srd(g, S_DBG, 12, 256)
    srd(g, S_WS, 14, 0x10000000)
    e(f"s_or_b32 s{S_T3}, s2, s{S_WAVE}")
    e(f"s_cmp_lg_u32 s{S_T3}, 0")
    e("s_cbranch_scc1 L_nonce_done")
    e(f"s_or_b32 s{S_NON+1}, s{S_NON+1}, 0x80000000")
    e(f"v_mov_b32 v{V_NON}, s{S_NON}")
    e(f"v_mov_b32 v{V_NON+1}, s{S_NON+1}")
    e(f"v_mov_b32 v{T+5}, 0")
    e("s_mov_b64 exec, 1")
    e(f"buffer_store_dwordx2 v[{V_NON}:{V_NON+1}], v{T+5}, s[{S_DBG}:{S_DBG+3}], 0 offen sc1")
    e("s_mov_b64 exec, -1")
    g.lab("L_nonce_done")
    if o.map2 == 0:
        e(f"s_and_b32 s{S_T0}, s{S_I}, 3")
        e(f"s_lshr_b32 s{S_T1}, s{S_I}, 2")
        e(f"s_lshr_b32 s{S_T2}, s{S_T1}, 1")
        e(f"s_add_u32 s{S_T2}, s{S_T2}, s{S_T0}")
        e(f"s_lshl_b32 s{S_T2}, s{S_T2}, 1")
        e(f"s_lshl_b32 s{S_T3}, s{S_XCD}, 2")
        e(f"s_add_u32 s{S_T0}, s{S_T0}, s{S_T3}")
        e(f"s_and_b32 s{S_XCD}, s{S_T1}, 1")
    elif o.map2 == 2:
        e(f"s_lshr_b32 s{S_T0}, s{S_I}, 3")
        e(f"s_lshr_b32 s{S_T1}, s{S_I}, 2")
        e(f"s_andn2_b32 s{S_T2}, s{S_T0}, s{S_T1}")
        e(f"s_lshr_b32 s{S_T3}, s{S_I}, 1")
        e(f"s_xor_b32 s{S_T2}, s{S_T2}, s{S_T3}")
        e(f"s_and_b32 s{S_T2}, s{S_T2}, 1")
        e(f"s_mul_i32 s{S_T2}, s{S_T2}, 3")
        e(f"s_and_b32 s{S_T3}, s{S_XCD}, 6")
        e(f"s_add_u32 s{S_T2}, s{S_T2}, s{S_T3}")
        e(f"s_xor_b32 s{S_T1}, s{S_T1}, s{S_XCD}")
        e(f"s_xor_b32 s{S_T1}, s{S_T1}, 1")
        e(f"s_and_b32 s{S_T1}, s{S_T1}, 1")
        e(f"s_lshl_b32 s{S_T1}, s{S_T1}, 2")
        e(f"s_and_b32 s{S_T3}, s{S_I}, 3")
        e(f"s_add_u32 s{S_T1}, s{S_T1}, s{S_T3}")
        e(f"s_lshl_b32 s{S_T3}, s{S_XCD}, 2")
        e(f"s_add_u32 s{S_T0}, s{S_T0}, s{S_T3}")
        e(f"s_and_b32 s{S_XCD}, s{S_I}, 1")
    elif o.map2 == 3:
        e(f"s_and_b32 s{S_T2}, s{S_XCD}, 6")
        e(f"s_lshl_b32 s{S_T0}, s{S_T2}, 2")
        e(f"s_lshr_b32 s{S_T3}, s{S_I}, 2")
        e(f"s_add_u32 s{S_T0}, s{S_T0}, s{S_T3}")
        e(f"s_and_b32 s{S_T1}, s{S_XCD}, 1")
        e(f"s_lshl_b32 s{S_T1}, s{S_T1}, 2")
        e(f"s_and_b32 s{S_T3}, s{S_I}, 3")
        e(f"s_add_u32 s{S_T1}, s{S_T1}, s{S_T3}")
        e(f"s_and_b32 s{S_XCD}, s{S_I}, 1")
    else:
        e(f"s_and_b32 s{S_T0}, s{S_I}, 7")
        e(f"s_lshr_b32 s{S_T2}, s{S_I}, 4")
        e(f"s_mul_i32 s{S_T2}, s{S_T2}, 3")
        e(f"s_add_u32 s{S_T2}, s{S_T2}, s{S_T0}")
        e(f"s_lshr_b32 s{S_T3}, s{S_XCD}, 1")
        e(f"s_lshl_b32 s{S_T3}, s{S_T3}, 3")
        e(f"s_add_u32 s{S_T0}, s{S_T0}, s{S_T3}")
        e(f"s_and_b32 s{S_T3}, s{S_XCD}, 1")
        e(f"s_lshl_b32 s{S_T3}, s{S_T3}, 2")
        e(f"s_lshr_b32 s{S_T1}, s{S_I}, 3")
        e(f"s_and_b32 s{S_XCD}, s{S_T1}, 1")
        e(f"s_add_u32 s{S_T1}, s{S_T1}, s{S_T3}")
    if not o.rot2:
        e(f"s_mov_b32 s{S_T2}, 0")
        e(f"s_mov_b32 s{S_XCD}, 0")
    e(f"s_mul_i32 s{S_T3}, s{S_WAVE}, 7")
    for b in range(7):
        e(f"s_add_u32 s{S_U+b}, s{S_T2}, {b}")
        e(f"s_mul_i32 s{S_UW+b}, s{S_U+b}, 37")
        e(f"s_lshr_b32 s{S_UW+b}, s{S_UW+b}, 8")
        e(f"s_mul_i32 s{S_UW+b}, s{S_UW+b}, 7")
        e(f"s_sub_u32 s{S_U+b}, s{S_U+b}, s{S_UW+b}")
        e(f"s_add_u32 s{S_U+b}, s{S_U+b}, s{S_T3}")
        e(f"s_lshl_b32 s{S_UW+b}, s{S_U+b}, 16")
        e(f"s_lshl_b32 s{S_U+b}, s{S_U+b}, 12")
    e(f"v_and_b32 v{T+2}, 1, v{T}")
    e(f"v_lshlrev_b32 v{T+2}, 2, v{T+2}")
    e(f"v_xor_b32 v{T+2}, v{T+1}, v{T+2}")
    e(f"v_lshlrev_b32 v{T+2}, 4, v{T+2}")
    e(f"v_lshl_add_u32 v{T+2}, v{T+3}, 10, v{T+2}")
    e(f"s_lshl_b32 s{S_T2}, s{S_T1}, 7")
    e(f"v_add_u32 v{V_OW2}, s{S_T2}, v{T+2}")
    for j in range(1, 4):
        e(f"v_add_u32 v{V_OW2+j}, {7168*j}, v{V_OW2}")
    e(f"v_lshlrev_b32 v{T+2}, 4, v{T+1}")
    e(f"v_lshl_add_u32 v{T+2}, v{T+3}, 10, v{T+2}")
    e(f"s_lshl_b32 s{S_T3}, s{S_T0}, 16")
    e(f"s_add_u32 s{S_T2}, s{S_T2}, s{S_T3}")
    e(f"s_add_u32 s{S_T2}, s{S_T2}, s{S_M0W2}")
    e(f"s_lshl_b32 s{S_T3}, s{S_XCD}, 15")
    e(f"s_add_u32 s{S_T3}, s{S_T3}, s{S_T2}")
    e(f"v_add_u32 v{V_OUTA}, s{S_T3}, v{T+2}")
    e(f"v_xor_b32 v{V_OUTB}, 0x8000, v{V_OUTA}")
    e(f"s_lshl_b32 s{S_T2}, s{S_T0}, 1")
    e(f"s_add_u32 s{S_T3}, s{S_T2}, s{S_XCD}")
    e(f"s_mul_i32 s{S_T3}, s{S_T3}, 114688")
    e(f"v_lshl_add_u32 v{V_HF}, v{L}, 4, s{S_T3}")
    e(f"s_xor_b32 s{S_T3}, s{S_XCD}, 1")
    e(f"s_add_u32 s{S_T3}, s{S_T3}, s{S_T2}")
    e(f"s_mul_i32 s{S_T3}, s{S_T3}, 114688")
    e(f"v_lshl_add_u32 v{V_HS}, v{L}, 4, s{S_T3}")
    e(f"s_mul_i32 s{S_T2}, s{S_T0}, 28")
    e(f"s_mul_i32 s{S_T3}, s{S_WAVE}, 7")
    e(f"s_add_u32 s{S_T2}, s{S_T2}, s{S_T3}")
    e(f"s_lshl_b32 s{S_T2}, s{S_T2}, 7")
    e(f"s_add_u32 s{S_T2}, s{S_T2}, {hex(FLAGS_OFF)}")
    e(f"v_min_u32 v{T+2}, 6, v{L}")
    e(f"v_lshl_add_u32 v{V_POLLA}, v{T+2}, 7, s{S_T2}")
    e(f"s_lshr_b32 s{S_T0}, s{S_WAVE}, 1")
    e(f"s_and_b32 s{S_T1}, s{S_WAVE}, 1")
    e(f"s_lshl_b32 s{S_T2}, s3, 1")
    e(f"s_add_u32 s{S_T2}, s{S_T2}, s{S_T0}")
    e(f"s_lshl_b32 s{S_T3}, s{S_SPIN}, 1")
    e(f"s_add_u32 s{S_T3}, s{S_T3}, s{S_T1}")
    e(f"s_mul_i32 s3, s{S_T2}, 28")
    e(f"s_add_u32 s3, s3, s{S_T3}")
    e(f"s_lshl_b32 s3, s3, 7")
    e(f"s_add_u32 s3, s3, {hex(FLAGS_OFF)}")
    e(f"v_mov_b32 v{V_FLAGA}, s3")
    e(f"s_mul_i32 s{S_T2}, s{S_T2}, {2*114688}")
    e(f"s_lshl_b32 s{S_T3}, s{S_T3}, 12")
    e(f"s_add_u32 s{S_T2}, s{S_T2}, s{S_T3}")
    e(f"v_lshl_add_u32 v{V_HST}, v{L}, 4, s{S_T2}")
    e(f"v_and_b32 v{T+2}, 31, v{L}")
    e(f"v_lshrrev_b32 v{T+4}, 5, v{L}")
    e(f"v_bfe_u32 v{T+5}, v{L}, 1, 3")
    e(f"v_xor_b32 v{T+5}, v{T+5}, v{T+4}")
    e(f"v_lshlrev_b32 v{T+5}, 4, v{T+5}")
    e(f"v_lshl_add_u32 v{T+5}, v{T+2}, 7, v{T+5}")
    e(f"s_lshl_b32 s{S_T2}, s{S_T0}, 13")
    e(f"v_add_u32 v{V_AX}, s{S_T2}, v{T+5}")
    for s in range(1, 4):
        e(f"v_xor_b32 v{V_AX+s}, {32*s}, v{V_AX}")
    for z in (1, 2):
        for s in range(4):
            e(f"v_add_u32 v{V_AX+4*z+s}, {65536*z}, v{V_AX+s}")
    e(f"v_xor_b32 v{T+5}, v{T+1}, v{T+4}")
    e(f"v_lshlrev_b32 v{T+5}, 4, v{T+5}")
    e(f"v_lshl_add_u32 v{T+5}, v{T+2}, 8, v{T+5}")
    e(f"v_add_u32 v{V_RW}, s{S_M0W2}, v{T+5}")
    for q in range(1, 4):
        e(f"v_xor_b32 v{V_RW+q}, {32*q}, v{V_RW}")
    e(f"v_lshlrev_b32 v{T+5}, 1, v{T+1}")
    e(f"v_xor_b32 v{T+5}, v{T+5}, v{T+3}")
    e(f"v_lshlrev_b32 v{T+5}, 4, v{T+5}")
    e(f"v_lshl_add_u32 v{T+5}, v{T+3}, 8, v{T+5}")
    e(f"s_lshl_b32 s{S_T2}, s{S_WAVE}, 11")
    e(f"v_add_u32 v{V_RR}, s{S_T2}, v{T+5}")
    e(f"v_xor_b32 v{V_RR+1}, 16, v{V_RR}")
    e(f"v_bfe_u32 v{T+2}, v{L}, 2, 2")
    e(f"v_and_b32 v{T+5}, 3, v{L}")
    e(f"v_lshlrev_b32 v{T+5}, 3, v{T+5}")
    e(f"v_and_b32 v{T+6}, 1, v{T}")
    e(f"v_lshl_add_u32 v{T+5}, v{T+6}, 5, v{T+5}")
    e(f"v_lshl_add_u32 v{T+6}, v{T+4}, 3, v{T+2}")
    e(f"v_lshl_add_u32 v{V_AW1}, v{T+6}, 8, v{T+5}")
    e(f"s_lshl_b32 s{S_T2}, s{S_T1}, 1")
    e(f"v_xor_b32 v{T+6}, s{S_T2}, v{T+2}")
    e(f"v_lshl_add_u32 v{V_AW1}, v{T+6}, 6, v{V_AW1}")
    e(f"v_xor_b32 v{V_AW1+1}, 64, v{V_AW1}")
    for z in (1, 2):
        for p in range(2):
            e(f"v_add_u32 v{V_AW1+2*z+p}, {65536*z}, v{V_AW1+p}")
    e(f"v_lshl_add_u32 v{T+6}, v{T+4}, 2, v{T+2}")
    e(f"v_lshl_add_u32 v{T+5}, v{T+6}, 7, v{T+5}")
    e(f"v_lshrrev_b32 v{T+6}, 1, v{T+2}")
    e(f"v_lshl_add_u32 v{T+5}, v{T+6}, 6, v{T+5}")
    e(f"v_add_u32 v{V_AW2}, s{S_M0W2}, v{T+5}")
    e(f"v_xor_b32 v{V_AW2+1}, 64, v{V_AW2}")
    for z in (1, 2):
        for p in range(2):
            e(f"v_add_u32 v{V_AW2+2*z+p}, {65536*z}, v{V_AW2+p}")
    e(f"v_mov_b32 v{T}, 0")
    e(f"s_cmp_ge_u32 s{S_I}, 28")
    e("s_cbranch_scc1 L_idle")
    g.stamp("setup")
    rest = dma_p1(g, 1)[o.early1:]
    if 0 < o.early1 < 4:
        rest[0] = [f"s_add_u32 m0, s{S_M0A}, {slot_base(1)}", "s_nop 0"] + rest[0]
    emit_groups(g, rest)
    g.stamp("dma1")
    nonce_step = 3
    for t in range(8):
        g.c(f"---- P1 step {t}")
        extra = 1 if t == nonce_step + 1 else 0
        e(f"s_waitcnt vmcnt({8 + extra}) lgkmcnt(0)")
        g.stamp(f"w{t}")
        e("s_barrier")
        g.stamp(f"bar{t}")
        f = dma_item(g, t + 2)
        R = [p1_reads(t, k) for k in range(4)]
        def grp(mf, gaps):
            for m, gp in zip(mf, gaps):
                if m:
                    e(m)
                for x in gp:
                    e(x)
        grp(p1_mfma(3, False) if t > 0 else [None] * 4, [R[0][0:3], R[0][3:6], R[1][0:3], R[1][3:6] + f[0]])
        e("s_waitcnt lgkmcnt(6)")
        grp(p1_mfma(0, t == 0), [R[2][0:3], R[2][3:6] + f[1], f[2], f[3]])
        e("s_waitcnt lgkmcnt(6)")
        grp(p1_mfma(1, False), [R[3][0:3], R[3][3:6] + f[4], [], f[5]])
        e("s_waitcnt lgkmcnt(6)")
        grp(p1_mfma(2, False), [[], f[6], [], f[7]])
        if t == nonce_step:
            e(f"buffer_load_dwordx2 v[{V_NON}:{V_NON+1}], v{T}, s[{S_DBG}:{S_DBG+3}], 0 offen sc1")
    g.c("---- P1 tail")
    e("s_waitcnt lgkmcnt(0)")
    e("s_barrier")
    g.stamp("bar8")
    for m in p1_mfma(3, False):
        e(m)
    e(f"v_cmp_ne_u32 vcc, 0, v{V_NON+1}")
    e("s_cbranch_vccnz L_nonce_ok")
    e(f"s_mov_b32 s{S_SPIN}, 0x40000")
    g.lab("L_nonce_spin")
    e(f"buffer_load_dwordx2 v[{V_NON}:{V_NON+1}], v{T}, s[{S_DBG}:{S_DBG+3}], 0 offen sc1")
    e("s_waitcnt vmcnt(0)")
    e(f"v_cmp_ne_u32 vcc, 0, v{V_NON+1}")
    e("s_cbranch_vccnz L_nonce_ok")
    e(f"s_sub_u32 s{S_SPIN}, s{S_SPIN}, 1")
    e(f"s_cmp_lg_u32 s{S_SPIN}, 0")
    e("s_cbranch_scc1 L_nonce_spin")
    g.lab("L_nonce_ok")
    e(f"s_mov_b32 s{S_T0}, 114688")
    e("s_nop 7")
    k = 0
    for phi in range(2):
        for rho in range(2):
            a = V_ACC + (phi * 2 + rho) * 16
            for ee in range(2):
                d = V_EP + 4 * k
                for jj in range(4):
                    e(f"v_cvt_pk_bf16_f32 v{d+jj}, v{a+8*ee+2*jj}, v{a+8*ee+2*jj+1}")
                for jj in range(4):
                    e(f"v_pk_max_i16 v{d+jj}, v{d+jj}, 0")
                so = "0" if rho == 0 else f"s{S_T0}"
                e(f"buffer_store_dwordx4 v[{d}:{d+3}], v{V_HST}, s[{S_WS}:{S_WS+3}], {so} offen offset:{(2*phi+ee)*1024} sc1")
                k += 1
    g.stamp("Hst")
    emit_groups(g, dma_w2(g, 2))
    e("s_waitcnt vmcnt(24)")
    emit_tr(g, 0)
    e("s_waitcnt vmcnt(16) lgkmcnt(4)")
    emit_tr(g, 1)
    e("s_waitcnt vmcnt(8)")
    e("s_mov_b64 exec, 1")
    e(f"buffer_store_dwordx2 v[{V_NON}:{V_NON+1}], v{V_FLAGA}, s[{S_WS}:{S_WS+3}], 0 offen sc1")
    e("s_mov_b64 exec, -1")
    g.stamp("flag")
    g.lab("L_join")
    emit_groups(g, dma_w2(g, 3))
    emit_groups(g, dma_w2(g, 4))
    e("s_waitcnt vmcnt(17) lgkmcnt(0)")
    emit_tr(g, 2)
    emit_groups(g, dma_w2(g, 5))
    e("s_waitcnt vmcnt(16) lgkmcnt(4)")
    emit_tr(g, 3)
    e(f"buffer_load_dwordx2 v[{V_POLL}:{V_POLL+1}], v{V_POLLA}, s[{S_WS}:{S_WS+3}], 0 offen sc1")
    emit_groups(g, dma_w2(g, 6))
    e("s_waitcnt vmcnt(17) lgkmcnt(4)")
    emit_tr(g, 4)
    e("s_waitcnt vmcnt(8)")
    g.stamp("poll1")
    e(f"v_cmp_ne_u64 vcc, v[{V_POLL}:{V_POLL+1}], v[{V_NON}:{V_NON+1}]")
    e("s_cbranch_vccz L_ready")
    e(f"s_mov_b32 s{S_SPIN}, 0x40000")
    g.lab("L_poll")
    e(f"buffer_load_dwordx2 v[{V_POLL}:{V_POLL+1}], v{V_POLLA}, s[{S_WS}:{S_WS+3}], 0 offen sc1")
    e("s_waitcnt vmcnt(0)")
    e(f"v_cmp_ne_u64 vcc, v[{V_POLL}:{V_POLL+1}], v[{V_NON}:{V_NON+1}]")
    e("s_cbranch_vccz L_ready")
    e(f"s_sub_u32 s{S_SPIN}, s{S_SPIN}, 1")
    e(f"s_cmp_lg_u32 s{S_SPIN}, 0")
    e("s_cbranch_scc1 L_poll")
    g.lab("L_ready")
    g.stamp("ready")

    def hload(i):
        half, p = divmod(i, 28)
        b, kp = divmod(p, 4)
        d = V_HR + 4 * (i % NB)
        return f"buffer_load_dwordx4 v[{d}:{d+3}], v{V_HF+half}, s[{S_WS}:{S_WS+3}], s{S_U+b} offen offset:{kp*1024} sc1"

    for i in range(D):
        e(hload(i))
    e("s_waitcnt lgkmcnt(4)")
    emit_tr(g, 5)
    e(f"s_waitcnt vmcnt({D}) lgkmcnt(4)")
    emit_tr(g, 6)

    def red_write(half):
        r = []
        for nu in range(2):
            for q in range(4):
                a = V_ACC + (half * 2 + nu) * 16 + 4 * q
                r.append(f"ds_write_b128 v{V_RW+q}, v[{a}:{a+3}] offset:{128*nu + 32768*half}")
        return r

    def red_read(half):
        r = []
        for w in range(4):
            for ee in range(2):
                d = V_RD + (w * 2 + ee) * 4
                r.append(f"ds_read_b128 v[{d}:{d+3}], v{V_RR+ee} offset:{8192*w + 32768*half}")
        return r

    def red_sum(dst):
        r = []
        for j in range(8):
            r.append(f"v_add_f32 v{V_RD+j}, v{V_RD+j}, v{V_RD+8+j}")
        for j in range(8):
            r.append(f"v_add_f32 v{V_RD+16+j}, v{V_RD+16+j}, v{V_RD+24+j}")
        for j in range(8):
            r.append(f"v_add_f32 v{V_RD+j}, v{V_RD+j}, v{V_RD+16+j}")
        for j in range(4):
            r.append(f"v_cvt_pk_bf16_f32 v{dst+j}, v{V_RD+2*j}, v{V_RD+2*j+1}")
        return r

    extra = {}
    w0 = red_write(0)
    for n in range(4):
        extra.setdefault(30 + n, []).extend(w0[2 * n:2 * n + 2])
    extra.setdefault(36, []).extend(["s_waitcnt lgkmcnt(0)", "s_barrier"] + red_read(0))
    s0 = red_sum(V_R0)
    extra.setdefault(40, []).append("s_waitcnt lgkmcnt(0)")
    for n in range(7):
        extra.setdefault(40 + n, []).extend(s0[4 * n:4 * n + 4])
    for i in range(56):
        half, p = divmod(i, 28)
        b, kp = divmod(p, 4)
        issued = min(56, i + D)
        wait = f"s_waitcnt vmcnt({issued - i - 1})"
        if i == 3:
            wait += " lgkmcnt(0)"
        e(wait)
        h = V_HR + 4 * (i % NB)
        for nu in range(2):
            a = V_ACC + (half * 2 + nu) * 16
            w = (b * 8 + kp * 2 + nu) * 4
            c = "0" if p == 0 else f"v[{a}:{a+15}]"
            e(f"v_mfma_f32_32x32x16_bf16 v[{a}:{a+15}], a[{w}:{w+3}], v[{h}:{h+3}], {c}")
            if nu == 0 and i + D < 56:
                e(hload(i + D))
        for x in extra.get(i, []):
            e(x)
        g.stamp(f"h{i}")
    g.stamp("loopend")
    e("s_nop 7")
    w1 = red_write(1)
    e("s_nop 2")
    for x in w1:
        e(x)
    e("s_waitcnt lgkmcnt(0)")
    e("s_barrier")
    for x in red_read(1):
        e(x)
    e(f"buffer_store_dwordx4 v[{V_R0}:{V_R0+3}], v{V_OUTA}, s[{S_OUT}:{S_OUT+3}], 0 offen {o.outflag}")
    e("s_waitcnt lgkmcnt(0)")
    for x in red_sum(V_EP):
        e(x)
    e(f"buffer_store_dwordx4 v[{V_EP}:{V_EP+3}], v{V_OUTB}, s[{S_OUT}:{S_OUT+3}], 0 offen {o.outflag}")
    if o.stamps:
        e("s_waitcnt vmcnt(0)")
        g.stamp("final")
        e("s_waitcnt lgkmcnt(0)")
        if o.probe:
            pa, pb, pwg = [int(x) for x in o.probe.split(",")]
            if pwg >= 0:
                e(f"s_cmp_lg_u32 s2, {pwg}")
                e("s_cbranch_scc1 L_end")
            e(f"s_sub_u32 s{S_T0}, s{S_ST+2*pb}, s{S_ST+2*pa}")
            e(f"s_min_u32 s{S_T0}, s{S_T0}, 5000")
            e(f"s_mul_i32 s{S_T0}, s{S_T0}, 10")
            e(f"s_add_u32 s{S_T0}, s{S_T0}, s{S_ST+16}")
            g.lab("L_probe")
            e(f"s_memrealtime s[{S_EX}:{S_EX+1}]")
            e("s_waitcnt lgkmcnt(0)")
            e(f"s_sub_u32 s{S_T1}, s{S_EX}, s{S_T0}")
            e(f"s_cmp_lt_i32 s{S_T1}, 0")
            e("s_cbranch_scc1 L_probe")
            e("s_endpgm")
        for n in range(9):
            e(f"v_mov_b32 v{96+n}, s{S_ST+2*n}")
        e(f"s_lshl_b32 s{S_T0}, s2, 8")
        e(f"s_lshl_b32 s{S_T1}, s{S_WAVE}, 6")
        e(f"s_add_u32 s{S_T0}, s{S_T0}, s{S_T1}")
        e(f"s_add_u32 s{S_T0}, s{S_T0}, {hex(STAMP_OFF)}")
        e("v_mov_b32 v108, 0")
        e("s_mov_b64 exec, 1")
        for n in range(3):
            e(f"buffer_store_dwordx4 v[{96+4*n}:{99+4*n}], v108, s[{S_WS}:{S_WS+3}], s{S_T0} offen offset:{16*n} sc1")
    g.lab("L_end")
    e("s_endpgm")
    g.lab("L_idle")
    emit_groups(g, dma_w2(g, 0))
    emit_groups(g, dma_w2(g, 1))
    emit_groups(g, dma_w2(g, 2))
    e("s_waitcnt vmcnt(16)")
    emit_tr(g, 0)
    e("s_waitcnt vmcnt(8) lgkmcnt(4)")
    emit_tr(g, 1)
    e(f"s_mov_b32 s{S_SPIN}, 0x40000")
    g.lab("L_idle_nonce")
    e(f"buffer_load_dwordx2 v[{V_NON}:{V_NON+1}], v{T}, s[{S_DBG}:{S_DBG+3}], 0 offen sc1")
    e("s_waitcnt vmcnt(0)")
    e(f"v_cmp_ne_u32 vcc, 0, v{V_NON+1}")
    e("s_cbranch_vccnz L_join")
    e(f"s_sub_u32 s{S_SPIN}, s{S_SPIN}, 1")
    e(f"s_cmp_lg_u32 s{S_SPIN}, 0")
    e("s_cbranch_scc1 L_idle_nonce")
    e("s_branch L_join")

    body = "\n".join(g.L)
    txt = HEADER + f""".amdgcn_target "amdgcn-amd-amdhsa--gfx950"
.text
.globl {KNAME}
.p2align 8
.type {KNAME},@function
{body}
.section .rodata,"a"
.p2align 6
.amdhsa_kernel {KNAME}
  .amdhsa_next_free_vgpr 512
  .amdhsa_next_free_sgpr 102
  .amdhsa_accum_offset 256
  .amdhsa_group_segment_fixed_size 0
  .amdhsa_kernarg_size 48
  .amdhsa_user_sgpr_count 2
  .amdhsa_user_sgpr_kernarg_segment_ptr 1
  .amdhsa_system_sgpr_workgroup_id_x 1
.end_amdhsa_kernel
"""
    return txt


META = f"""
.amdgpu_metadata
---
amdhsa.version: [1, 2]
amdhsa.kernels:
  - .name: {KNAME}
    .symbol: {KNAME}.kd
    .kernarg_segment_size: 48
    .kernarg_segment_align: 8
    .group_segment_fixed_size: 0
    .private_segment_fixed_size: 0
    .wavefront_size: 64
    .sgpr_count: 102
    .vgpr_count: 512
    .max_flat_workgroup_size: 256
    .args:
      - {{.name: kernargs, .size: 48, .offset: 0, .value_kind: by_value}}
...
.end_amdgpu_metadata
"""


def parse(argv):
    p = argparse.ArgumentParser()
    p.add_argument("-o", default=None)
    p.add_argument("--co", default=None)
    p.add_argument("--stamps", default="")
    p.add_argument("--rt", type=int, default=0)
    p.add_argument("--depth", type=int, default=12)
    p.add_argument("--nbuf", type=int, default=16)
    p.add_argument("--map1", type=int, default=0)
    p.add_argument("--map2", type=int, default=0)
    p.add_argument("--rot1", type=int, default=1)
    p.add_argument("--rot2", type=int, default=1)
    p.add_argument("--outflag", default="sc1")
    p.add_argument("--probe", default="")
    p.add_argument("--early1", type=int, default=3)
    return p.parse_args(argv)


if __name__ == "__main__":
    o = parse(sys.argv[1:])
    txt = gen(o)
    if o.o:
        open(o.o, "w").write(txt)
    if o.co:
        open(o.co + ".s", "w").write(txt + META)
        r = subprocess.run(["clang", "-x", "assembler", "-target", "amdgcn-amd-amdhsa",
                            "-mcpu=gfx950", o.co + ".s", "-o", o.co + ".co"], capture_output=True, text=True)
        if r.returncode:
            print(r.stderr[:4000])
            sys.exit(1)
```

```python
import sys, subprocess, argparse
from gen import HEADER, KNAME, META

FLAGS_OFF = 0x800000
STAMP_OFF = 0x8000000

S_X, S_W1, S_W2, S_OUT, S_WS = 16, 20, 24, 28, 36
S_DBG = 32
S_WAVE = 40
S_XCD = 41
S_I = 42
S_T0, S_T1, S_T2, S_T3 = 43, 44, 45, 46
S_M0A = 47
S_U = 48
S_M0W2 = 55
S_UW = 56
S_SPIN = 63
S_KX = 64
S_KW = 72
S_POLL = 64
S_NON = 80
S_PA = 82
S_ST = 84
S_Q = 3
S_FA = 8

V_LANE = 1
V_OX = 2
V_OW1 = 6
V_OW2 = 10
V_HF = 14
V_HS = 15
V_NON = 16
V_FD = 28
V_FLAGA = 19
V_ZERO = 18
V_HST = 22
V_OUTA = 23
V_OUTB = 24
V_T = 25
V_ACC = 32
V_FR = 96
V_EP = 160
V_AX = 192
V_AW1 = 204
V_AW2 = 210
V_RW = 216
V_RR = 220
V_RD = 224
V_R0 = 26
V_HR = 96
NONCE_POS = 2


class G:
    def __init__(self, o):
        self.o = o
        self.L = []

    def e(self, s):
        self.L.append("    " + s)

    def es(self, l):
        for x in l:
            self.e(x)

    def lab(self, s):
        self.L.append(s + ":")

    def c(self, s):
        self.L.append("    ; " + s)

    def stamp(self, name):
        if not self.o.stamps:
            return
        names = self.o.stamps.split(",")
        if name == "final":
            idx = 8
        elif name in names[:8]:
            idx = names.index(name)
        else:
            return
        r = S_ST + 2 * idx
        self.e(f"s_memrealtime s[{r}:{r+1}]" if self.o.rt else f"s_memtime s[{r}:{r+1}]")


def srd(g, d, lo, nbytes):
    g.e(f"s_mov_b32 s{d}, s{lo}")
    g.e(f"s_mov_b32 s{d+1}, s{lo+1}")
    g.e(f"s_mov_b32 s{d+2}, {hex(nbytes)}")
    g.e(f"s_mov_b32 s{d+3}, 0x20000")


def slot_base(pos):
    return (pos % 5) * 32768


def zone(pos):
    s = pos % 5
    return s // 2, (s % 2) * 32768


def dma_c(t, pos):
    sb = slot_base(pos)
    out = []
    for part, (vo, sr, so, add) in enumerate(((V_OW1, S_W1, S_KW + t, 0), (V_OX, S_X, S_KX + t, 16384))):
        for j in range(4):
            ins = f"buffer_load_dwordx4 v{vo+j}, s[{sr}:{sr+3}], s{so} offen offset:{1024*j} lds"
            if j == 0:
                out.append([f"s_add_u32 m0, s{S_M0A}, {sb+add}", "s_nop 0", ins])
            else:
                out.append([ins])
    return out


def dma_w(b, pos, vo=None):
    vo = V_OW2 if vo is None else vo
    sb = slot_base(pos)
    out = []
    for half in range(2):
        for j in range(4):
            so = f"s{S_UW+b}" if half == 0 else f"s{S_T3}"
            ins = f"buffer_load_dwordx4 v{vo+j}, s[{S_W2}:{S_W2+3}], {so} offen offset:{1024*j} lds"
            if j == 0:
                pre = [f"s_add_u32 m0, s{S_M0W2}, {sb + 4096*half}"]
                pre.append(f"s_add_u32 s{S_T3}, s{S_UW+b}, 32768" if half == 1 else "s_nop 0")
                out.append(pre + [ins])
            else:
                out.append([ins])
    return out


def flat(groups):
    return [x for gr in groups for x in gr]


def fr(s, k):
    return V_FR + 16 * s + 4 * k


def p1_reads(pos, s):
    z, add = zone(pos)
    r = []
    for phi in range(2):
        for e in range(2):
            d = fr(s, phi) + 2 * e
            r.append(f"ds_read_b64_tr_b16 v[{d}:{d+1}], v{V_AW1+2*z+phi} offset:{add + (16*s+4*e)*256}")
    for rho in range(2):
        d = fr(s, 2 + rho)
        r.append(f"ds_read_b128 v[{d}:{d+3}], v{V_AX+4*z+s} offset:{add + 16384 + rho*4096}")
    return [r[0], r[1], r[4], r[5], r[2], r[3]]


def p1_mfma(s, first):
    r = []
    for phi in range(2):
        for rho in range(2):
            a = V_ACC + (phi * 2 + rho) * 16
            A = fr(s, phi)
            B = fr(s, 2 + rho)
            c = "0" if first else f"v[{a}:{a+15}]"
            r.append(f"v_mfma_f32_32x32x16_bf16 v[{a}:{a+15}], v[{A}:{A+3}], v[{B}:{B+3}], {c}")
    return r


def w2_tr(b, pos):
    z, add = zone(pos)
    r = []
    for kp in range(4):
        for nu in range(2):
            for e in range(2):
                d = (b * 8 + kp * 2 + nu) * 4 + 2 * e
                r.append(f"ds_read_b64_tr_b16 a[{d}:{d+1}], v{V_AW2+2*z+nu} offset:{add + (16*kp+8*e)*128}")
    return r


def emit_tr(g, b, pos):
    for i, x in enumerate(w2_tr(b, pos)):
        if i == 8:
            g.e("s_waitcnt lgkmcnt(4)")
        g.e(x)


def grp(g, mf, gaps):
    for m, gp in zip(mf, gaps):
        if m:
            g.e(m)
        g.es(gp)


def emit_poll(g, tag):
    e = g.e
    e(f"s_mov_b32 s{S_SPIN}, 0x40000")
    g.lab(f"L_poll_{tag}")
    e(f"s_load_dwordx16 s[{S_POLL}:{S_POLL+15}], s[{S_PA}:{S_PA+1}], 0 glc")
    e(f"s_sub_u32 s{S_SPIN}, s{S_SPIN}, 1")
    e(f"s_cbranch_scc1 L_ready_{tag}")
    e("s_waitcnt lgkmcnt(0)")
    for k in range(7):
        e(f"s_cmp_lg_u64 s[{S_POLL+2*k}:{S_POLL+2*k+1}], s[{S_NON}:{S_NON+1}]")
        e(f"s_cbranch_scc1 L_poll_{tag}")
    g.lab(f"L_ready_{tag}")


def nonce_load():
    return f"buffer_load_dwordx2 v[{V_NON}:{V_NON+1}], v{V_ZERO}, s[{S_DBG}:{S_DBG+3}], 0 offen sc1"


def emit_nonce_check(g, tag):
    e = g.e
    e(f"v_readfirstlane_b32 s{S_NON+1}, v{V_NON+1}")
    e(f"s_mov_b32 s{S_SPIN}, 0x40000")
    g.lab(f"L_non_{tag}")
    e(f"s_cmp_lg_u32 s{S_NON+1}, 0")
    e(f"s_cbranch_scc1 L_nonok_{tag}")
    e(nonce_load())
    e("s_waitcnt vmcnt(0)")
    e(f"v_readfirstlane_b32 s{S_NON+1}, v{V_NON+1}")
    e(f"s_sub_u32 s{S_SPIN}, s{S_SPIN}, 1")
    e(f"s_cbranch_scc0 L_non_{tag}")
    g.lab(f"L_nonok_{tag}")
    e(f"v_readfirstlane_b32 s{S_NON}, v{V_NON}")


def emit_p1(g, tag, stream):
    e = g.e
    o = g.o
    last = stream.index(('c', 7))
    pending = False
    for p in range(last + 1):
        kind, idx = stream[p]
        g.c(f"---- {tag} pos {p}: {kind}{idx}")
        e(f"s_waitcnt vmcnt({9 if p == NONCE_POS + 1 else 8}) lgkmcnt(0)")
        e("s_barrier")
        g.stamp(f"bar{kind}{idx}")
        nk, ni = stream[p + 2]
        f = dma_c(ni, p + 2) if nk == 'c' else dma_w(ni, p + 2)
        m3 = p1_mfma(3, False) if pending else [None] * 4
        if kind == 'c':
            R = [p1_reads(p, k) for k in range(4)]
            grp(g, m3, [R[0][0:3], R[0][3:6], R[1][0:3], R[1][3:6] + f[0]])
            e("s_waitcnt lgkmcnt(6)")
            grp(g, p1_mfma(0, idx == 0), [R[2][0:3], R[2][3:6] + f[1], f[2], f[3]])
            e("s_waitcnt lgkmcnt(6)")
            if idx < 7:
                grp(g, p1_mfma(1, False), [R[3][0:3], R[3][3:6] + f[4], [], f[5]])
                e("s_waitcnt lgkmcnt(6)")
                grp(g, p1_mfma(2, False), [[], f[6], [], f[7]])
            else:
                grp(g, p1_mfma(1, False), [R[3][0:3], R[3][3:6] + f[4], f[5], f[6] + f[7]])
            pending = True
        else:
            T = w2_tr(idx, p)
            grp(g, m3, [T[0:3], T[3:6], T[6:9], T[9:12]])
            e("s_waitcnt lgkmcnt(4)")
            g.es(T[12:16])
            g.es(flat(f))
            pending = False
        if p == NONCE_POS:
            e(nonce_load())
    g.c(f"---- {tag} P1 tail (tile-major, epilogue interleaved)")
    emit_nonce_check(g, tag)
    e(f"s_mov_b32 s{S_T0}, 114688")
    m2, m3 = p1_mfma(2, False), p1_mfma(3, False)

    def epi(tile):
        phi, rho = divmod(tile, 2)
        a = V_ACC + tile * 16
        r = []
        for ee in range(2):
            d = V_EP + 4 * (2 * tile + ee)
            for jj in range(4):
                r.append(f"v_cvt_pk_bf16_f32 v{d+jj}, v{a+8*ee+2*jj}, v{a+8*ee+2*jj+1}")
            for jj in range(4):
                r.append(f"v_pk_max_i16 v{d+jj}, v{d+jj}, 0")
            so = "0" if rho == 0 else f"s{S_T0}"
            r.append(f"buffer_store_dwordx4 v[{d}:{d+3}], v{V_HST}, s[{S_WS}:{S_WS+3}], {so} offen offset:{(2*phi+ee)*1024} sc1")
        return r
    e("s_waitcnt lgkmcnt(6)")
    e(m2[0])
    e("s_waitcnt lgkmcnt(0)")
    g.stamp("bar8")
    e(m3[0])
    e(m2[1])
    e(m3[1])
    e(m2[2])
    e("s_nop 7")
    e("s_nop 0")
    E0, E1, E2, E3 = epi(0), epi(1), epi(2), epi(3)
    g.es(E0[0:4])
    e(m3[2])
    g.es(E0[4:9])
    e(m2[3])
    g.es(E0[9:14])
    e(m3[3])
    g.es(E0[14:18])
    g.es(E1)
    g.es(E2)
    g.es(E3)
    g.stamp("Hst")


def emit_flag(g):
    g.e(f"s_atomic_swap_x2 s[{S_NON}:{S_NON+1}], s[{S_FA}:{S_FA+1}], 0")
    g.stamp("flag")


def gen(o):
    g = G(o)
    e = g.e
    D = o.depth
    NB = o.nbuf
    L = V_LANE
    T = V_T
    g.lab(KNAME)
    g.stamp("entry")
    e("s_load_dwordx8 s[4:11], s[0:1], 0")
    e("s_load_dwordx4 s[12:15], s[0:1], 32")
    e(f"s_memrealtime s[{S_PA}:{S_PA+1}]")
    e("s_cmp_ge_u32 s2, 256")
    e("s_cbranch_scc1 L_end")
    e(f"v_lshrrev_b32 v{T}, 6, v0")
    e(f"v_and_b32 v{L}, 63, v0")
    e(f"s_and_b32 s{S_XCD}, s2, 7")
    e(f"v_readfirstlane_b32 s{S_WAVE}, v{T}")
    e(f"s_lshr_b32 s{S_I}, s2, 3")
    e(f"s_and_b32 s{S_Q}, s{S_I}, 3")
    e(f"s_lshr_b32 s{S_T1}, s{S_I}, 2")
    e(f"s_lshl_b32 s{S_T2}, s{S_Q}, 1")
    e(f"s_add_u32 s{S_T2}, s{S_T2}, s{S_T1}")
    if o.rot1 == 1:
        e(f"s_add_u32 s{S_T2}, s{S_Q}, s{S_T1}")
        e(f"s_lshl_b32 s{S_T2}, s{S_T2}, 1")
    elif o.rot1 == 2:
        e(f"s_add_u32 s{S_T2}, s{S_T2}, s{S_XCD}")
    e(f"s_and_b32 s{S_T3}, s{S_XCD}, 6")
    e(f"s_lshl_b32 s{S_T3}, s{S_T3}, 1")
    e(f"s_add_u32 s{S_U}, s{S_Q}, s{S_T3}")
    e(f"s_and_b32 s{S_T3}, s{S_XCD}, 1")
    e(f"s_mul_i32 s{S_T3}, s{S_T3}, 7")
    e(f"s_add_u32 s{S_SPIN}, s{S_T1}, s{S_T3}")
    e(f"s_lshl_b32 s{S_T0}, s{S_U}, 17")
    e(f"s_lshl_b32 s{S_T1}, s{S_SPIN}, 8")

    def kofs(t):
        e(f"s_add_u32 s{S_T3}, s{S_T2}, {t}")
        e(f"s_and_b32 s{S_T3}, s{S_T3}, 7")
        e(f"s_mul_i32 s{S_KW+t}, s{S_T3}, {64*3584}")
        e(f"s_lshl_b32 s{S_T3}, s{S_T3}, 7")
        e(f"s_add_u32 s{S_KX+t}, s{S_T3}, s{S_T0}")
        e(f"s_add_u32 s{S_KW+t}, s{S_KW+t}, s{S_T1}")
    kofs(0)
    kofs(1)
    e(f"s_lshl_b32 s{S_M0A}, s{S_WAVE}, 12")
    e(f"s_lshl_b32 s{S_M0W2}, s{S_WAVE}, 13")
    e(f"v_lshrrev_b32 v{T}, 4, v{L}")
    e(f"v_and_b32 v{T+1}, 15, v{L}")
    e(f"v_lshlrev_b32 v{T+2}, 2, v{T}")
    e(f"v_xor_b32 v{T+1}, v{T+1}, v{T+2}")
    e(f"v_lshlrev_b32 v{T+1}, 4, v{T+1}")
    e(f"s_lshl_b32 s{S_T3}, s{S_WAVE}, 4")
    e(f"v_add_u32 v{T+2}, s{S_T3}, v{T}")
    e(f"v_mul_u32_u24 v{T+2}, 3584, v{T+2}")
    e(f"v_add_u32 v{V_OW1}, v{T+1}, v{T+2}")
    for j in range(1, 4):
        e(f"v_add_u32 v{V_OW1+j}, {13312*j}, v{V_OW1}")
    e(f"v_and_b32 v{T+1}, 7, v{L}")
    e(f"v_xor_b32 v{T+2}, v{T+1}, v{T}")
    e(f"v_lshlrev_b32 v{T+2}, 4, v{T+2}")
    e(f"v_lshrrev_b32 v{T+3}, 3, v{L}")
    e(f"s_lshl_b32 s{S_T3}, s{S_WAVE}, 15")
    e(f"v_lshl_add_u32 v{T+4}, v{T+3}, 10, s{S_T3}")
    e(f"v_add_u32 v{V_OX}, v{T+4}, v{T+2}")
    e(f"v_xor_b32 v{T+2}, 64, v{T+2}")
    e(f"v_add_u32 v{T+2}, v{T+4}, v{T+2}")
    e(f"v_add_u32 v{V_OX+1}, 7168, v{T+2}")
    e(f"v_add_u32 v{V_OX+2}, {7168*2}, v{V_OX}")
    e(f"v_add_u32 v{V_OX+3}, {7168*3}, v{T+2}")
    e("s_waitcnt lgkmcnt(0)")
    g.stamp("karg")
    srd(g, S_W1, 6, 512 * 1792 * 2)
    srd(g, S_X, 4, 2048 * 512 * 2)
    e(f"s_cmp_ge_u32 s{S_I}, 28")
    e("s_cbranch_scc1 L_setup2")
    g.es(flat(dma_c(0, 0)))
    g.es(flat(dma_c(1, 1)[:3]))
    g.stamp("dma0")
    g.lab("L_setup2")
    srd(g, S_DBG, 12, 256)
    e(f"v_mov_b32 v{V_ZERO}, 0")
    e(f"s_or_b32 s{S_T3}, s2, s{S_WAVE}")
    e(f"s_cmp_lg_u32 s{S_T3}, 0")
    e("s_cbranch_scc1 L_nonce_done")
    e(f"s_or_b32 s{S_PA+1}, s{S_PA+1}, 0x80000000")
    e(f"s_atomic_swap_x2 s[{S_PA}:{S_PA+1}], s[12:13], 0")
    e("s_waitcnt lgkmcnt(0)")
    g.lab("L_nonce_done")
    for t in range(2, 8):
        kofs(t)
    srd(g, S_W2, 8, 512 * 1792 * 2)
    srd(g, S_OUT, 10, 2048 * 512 * 2)
    if o.hoff:
        e(f"s_add_u32 s{S_WS}, s14, {hex(o.hoff)}")
        e(f"s_addc_u32 s{S_WS+1}, s15, 0")
        e(f"s_mov_b32 s{S_WS+2}, 0x1000000")
        e(f"s_mov_b32 s{S_WS+3}, 0x20000")
    else:
        srd(g, S_WS, 14, 0x10000000)
    e(f"s_lshr_b32 s{S_T0}, s{S_WAVE}, 1")
    e(f"s_and_b32 s{S_T1}, s{S_WAVE}, 1")
    e(f"s_lshl_b32 s{S_T2}, s{S_U}, 1")
    e(f"s_add_u32 s{S_T2}, s{S_T2}, s{S_T0}")
    e(f"s_lshl_b32 s{S_T3}, s{S_SPIN}, 1")
    e(f"s_add_u32 s{S_T3}, s{S_T3}, s{S_T1}")
    e(f"s_mul_i32 s4, s{S_T3}, 37")
    e(f"s_lshr_b32 s4, s4, 8")
    e(f"s_mul_i32 s5, s4, 7")
    e(f"s_sub_u32 s5, s{S_T3}, s5")
    e(f"s_lshl_b32 s6, s{S_T2}, 2")
    e(f"s_add_u32 s4, s4, s6")
    e(f"s_lshl_b32 s4, s4, 7")
    e(f"s_lshl_b32 s5, s5, 3")
    e(f"s_add_u32 s4, s4, s5")
    e(f"s_add_u32 s4, s4, {hex(o.hoff + FLAGS_OFF)}")
    e(f"s_add_u32 s{S_FA}, s14, s4")
    e(f"s_addc_u32 s{S_FA+1}, s15, 0")
    e(f"s_mul_i32 s{S_T2}, s{S_T2}, {2*114688}")
    e(f"s_lshl_b32 s{S_T3}, s{S_T3}, 12")
    e(f"s_add_u32 s{S_T2}, s{S_T2}, s{S_T3}")
    e(f"v_lshl_add_u32 v{V_HST}, v{L}, 4, s{S_T2}")
    e(f"v_and_b32 v{T+2}, 31, v{L}")
    e(f"v_lshrrev_b32 v{T+4}, 5, v{L}")
    e(f"v_bfe_u32 v{T+5}, v{L}, 1, 3")
    e(f"v_xor_b32 v{T+5}, v{T+5}, v{T+4}")
    e(f"v_lshlrev_b32 v{T+5}, 4, v{T+5}")
    e(f"v_lshl_add_u32 v{T+5}, v{T+2}, 7, v{T+5}")
    e(f"s_lshl_b32 s{S_T2}, s{S_T0}, 13")
    e(f"v_add_u32 v{V_AX}, s{S_T2}, v{T+5}")
    for s in range(1, 4):
        e(f"v_xor_b32 v{V_AX+s}, {32*s}, v{V_AX}")
    for z in (1, 2):
        for s in range(4):
            e(f"v_add_u32 v{V_AX+4*z+s}, {65536*z}, v{V_AX+s}")
    e(f"v_xor_b32 v{T+5}, v{T+1}, v{T+4}")
    e(f"v_lshlrev_b32 v{T+5}, 4, v{T+5}")
    e(f"v_lshl_add_u32 v{T+5}, v{T+2}, 8, v{T+5}")
    e(f"v_add_u32 v{V_RW}, s{S_M0W2}, v{T+5}")
    for q in range(1, 4):
        e(f"v_xor_b32 v{V_RW+q}, {32*q}, v{V_RW}")
    e(f"v_lshlrev_b32 v{T+5}, 1, v{T+1}")
    e(f"v_xor_b32 v{T+5}, v{T+5}, v{T+3}")
    e(f"v_lshlrev_b32 v{T+5}, 4, v{T+5}")
    e(f"v_lshl_add_u32 v{T+5}, v{T+3}, 8, v{T+5}")
    e(f"s_lshl_b32 s{S_T2}, s{S_WAVE}, 11")
    e(f"v_add_u32 v{V_RR}, s{S_T2}, v{T+5}")
    e(f"v_xor_b32 v{V_RR+1}, 16, v{V_RR}")
    e(f"v_bfe_u32 v{T+2}, v{L}, 2, 2")
    e(f"v_and_b32 v{T+5}, 3, v{L}")
    e(f"v_lshlrev_b32 v{T+5}, 3, v{T+5}")
    e(f"v_and_b32 v{T+6}, 1, v{T}")
    e(f"v_lshl_add_u32 v{T+5}, v{T+6}, 5, v{T+5}")
    e(f"v_lshl_add_u32 v{T+6}, v{T+4}, 3, v{T+2}")
    e(f"v_lshl_add_u32 v{V_AW1}, v{T+6}, 8, v{T+5}")
    e(f"s_lshl_b32 s{S_T2}, s{S_T1}, 1")
    e(f"v_xor_b32 v{T+6}, s{S_T2}, v{T+2}")
    e(f"v_lshl_add_u32 v{V_AW1}, v{T+6}, 6, v{V_AW1}")
    e(f"v_xor_b32 v{V_AW1+1}, 64, v{V_AW1}")
    for z in (1, 2):
        for p in range(2):
            e(f"v_add_u32 v{V_AW1+2*z+p}, {65536*z}, v{V_AW1+p}")
    e(f"v_lshl_add_u32 v{T+6}, v{T+4}, 2, v{T+2}")
    e(f"v_lshl_add_u32 v{T+5}, v{T+6}, 7, v{T+5}")
    e(f"v_lshrrev_b32 v{T+6}, 1, v{T+2}")
    e(f"v_lshl_add_u32 v{T+5}, v{T+6}, 6, v{T+5}")
    e(f"v_add_u32 v{V_AW2}, s{S_M0W2}, v{T+5}")
    e(f"v_xor_b32 v{V_AW2+1}, 64, v{V_AW2}")
    for z in (1, 2):
        for p in range(2):
            e(f"v_add_u32 v{V_AW2+2*z+p}, {65536*z}, v{V_AW2+p}")
    e(f"s_and_b32 s4, s{S_Q}, 1")
    e(f"s_xor_b32 s4, s4, 1")
    e(f"s_lshl_b32 s4, s4, 1")
    e(f"s_lshr_b32 s5, s{S_Q}, 1")
    e(f"s_add_u32 s4, s4, s5")
    e(f"s_lshl_b32 s5, s{S_XCD}, 2")
    e(f"s_add_u32 s{S_T0}, s4, s5")
    e(f"s_lshr_b32 s4, s{S_I}, 2")
    e(f"s_lshl_b32 s5, s{S_Q}, 1")
    e(f"s_add_u32 s4, s4, s5")
    e(f"s_and_b32 s5, s{S_XCD}, 1")
    e(f"s_add_u32 s4, s4, s5")
    e(f"s_and_b32 s{S_T1}, s4, 7")
    e(f"s_lshr_b32 s4, s{S_T1}, 1")
    e(f"s_lshr_b32 s5, s{S_XCD}, 1")
    e(f"s_add_u32 s5, s5, s4")
    e(f"s_add_u32 s4, s4, s{S_Q}")
    e(f"s_and_b32 s4, s4, 3")
    e(f"s_bitcmp1_b32 s{S_I}, 2")
    e(f"s_cselect_b32 s{S_T2}, s5, s4")
    e(f"s_mov_b32 s7, s{S_XCD}")
    e(f"s_and_b32 s{S_XCD}, s{S_T1}, 1")
    e(f"s_mul_i32 s{S_T3}, s{S_WAVE}, 7")
    for b in range(7):
        if b < 5:
            e(f"s_add_u32 s5, s{S_T2}, {b}")
            e(f"s_mul_i32 s6, s5, 52")
            e(f"s_lshr_b32 s6, s6, 8")
            e(f"s_mul_i32 s6, s6, 5")
            e(f"s_sub_u32 s5, s5, s6")
            e(f"s_add_u32 s5, s5, s{S_T3}")
            e(f"s_add_u32 s5, s5, 2")
        else:
            e(f"s_add_u32 s5, s{S_T3}, {b-5}")
        e(f"s_lshl_b32 s{S_UW+b}, s5, 16")
        e(f"s_lshl_b32 s{S_U+b}, s5, 12")
    e(f"v_and_b32 v{T+2}, 1, v{T}")
    e(f"v_lshlrev_b32 v{T+2}, 2, v{T+2}")
    e(f"v_xor_b32 v{T+2}, v{T+1}, v{T+2}")
    e(f"v_lshlrev_b32 v{T+2}, 4, v{T+2}")
    e(f"v_lshl_add_u32 v{T+2}, v{T+3}, 10, v{T+2}")
    e(f"s_lshl_b32 s{S_T2}, s{S_T1}, 7")
    e(f"v_add_u32 v{V_OW2}, s{S_T2}, v{T+2}")
    for j in range(1, 4):
        e(f"v_add_u32 v{V_OW2+j}, {7168*j}, v{V_OW2}")
    e(f"v_lshlrev_b32 v{T+2}, 4, v{T+1}")
    e(f"v_lshl_add_u32 v{T+2}, v{T+3}, 10, v{T+2}")
    e(f"s_lshl_b32 s{S_T3}, s{S_T0}, 16")
    e(f"s_add_u32 s{S_T2}, s{S_T2}, s{S_T3}")
    e(f"s_add_u32 s{S_T2}, s{S_T2}, s{S_M0W2}")
    e(f"s_lshl_b32 s{S_T3}, s{S_XCD}, 15")
    e(f"s_add_u32 s{S_T3}, s{S_T3}, s{S_T2}")
    e(f"v_add_u32 v{V_OUTA}, s{S_T3}, v{T+2}")
    e(f"v_xor_b32 v{V_OUTB}, 0x8000, v{V_OUTA}")
    e(f"s_lshl_b32 s{S_T2}, s{S_T0}, 1")
    e(f"s_add_u32 s{S_T3}, s{S_T2}, s{S_XCD}")
    e(f"s_mul_i32 s{S_T3}, s{S_T3}, 114688")
    e(f"v_lshl_add_u32 v{V_HF}, v{L}, 4, s{S_T3}")
    e(f"s_xor_b32 s{S_T3}, s{S_XCD}, 1")
    e(f"s_add_u32 s{S_T3}, s{S_T3}, s{S_T2}")
    e(f"s_mul_i32 s{S_T3}, s{S_T3}, 114688")
    e(f"v_lshl_add_u32 v{V_HS}, v{L}, 4, s{S_T3}")
    e(f"s_lshl_b32 s{S_T2}, s{S_T0}, 2")
    e(f"s_add_u32 s{S_T2}, s{S_T2}, s{S_WAVE}")
    e(f"s_lshl_b32 s{S_T2}, s{S_T2}, 7")
    e(f"s_add_u32 s{S_T2}, s{S_T2}, {hex(o.hoff + FLAGS_OFF)}")
    e(f"s_add_u32 s{S_PA}, s14, s{S_T2}")
    e(f"s_addc_u32 s{S_PA+1}, s15, 0")
    e(f"s_load_dword s10, s[{S_PA}:{S_PA+1}], 0 glc")
    e(f"s_cmp_ge_u32 s{S_I}, 28")
    e("s_cbranch_scc1 L_idle")
    g.stamp("setup")
    rest = dma_c(1, 1)[3:]
    rest[0] = [f"s_add_u32 m0, s{S_M0A}, {slot_base(1)}", "s_nop 0"] + rest[0]
    g.es(flat(rest))
    def hload(i):
        half, p = divmod(i, 28)
        b, kp = divmod(p, 4)
        d = V_HR + 4 * (i % NB)
        return f"buffer_load_dwordx4 v[{d}:{d+3}], v{V_HF+half}, s[{S_WS}:{S_WS+3}], s{S_U+b} offen offset:{kp*1024} sc1"

    def p2_mfma(i):
        half, p = divmod(i, 28)
        b, kp = divmod(p, 4)
        h = V_HR + 4 * (i % NB)
        r = []
        for nu in range(2):
            a = V_ACC + (half * 2 + nu) * 16
            w = (b * 8 + kp * 2 + nu) * 4
            c = "0" if p == 0 else f"v[{a}:{a+15}]"
            r.append(f"v_mfma_f32_32x32x16_bf16 v[{a}:{a+15}], a[{w}:{w+3}], v[{h}:{h+3}], {c}")
        return r

    def producer(tag, stream):
        emit_p1(g, tag, stream)
        e("s_barrier")
        last = stream.index(('c', 7))
        it = [(stream[p][1], p) for p in range(last + 1, 15)]
        g.es(flat(dma_w(*it[2])))
        e("s_waitcnt vmcnt(24) lgkmcnt(4)")
        emit_tr(g, *it[0])
        e("s_waitcnt vmcnt(16) lgkmcnt(4)")
        emit_tr(g, *it[1])
        e("s_waitcnt vmcnt(8) lgkmcnt(0)")
        emit_flag(g)
        n = len(it)
        g.es(flat(dma_w(*it[3])))
        for k in range(2, n - 2):
            g.es(flat(dma_w(*it[k + 2])))
            e("s_waitcnt vmcnt(16) lgkmcnt(4)")
            g.stamp(f"wl{k+7-n}")
            emit_tr(g, *it[k])
        g.stamp("poll1")
        emit_poll(g, tag)
        g.stamp("ready")
        for i in range(D):
            e(hload(i))
        e(f"s_waitcnt vmcnt({D+8})")
        emit_tr(g, *it[n - 2])
        e(f"s_waitcnt vmcnt({D}) lgkmcnt(4)")
        g.stamp("wl6")
        emit_tr(g, *it[n - 1])

    if o.ins:
        e(f"s_bitcmp0_b32 s{S_I}, 2")
        e("s_cbranch_scc1 L_unled")
    C = [('c', t) for t in range(8)]
    producer("E", C + [('w', b) for b in (5, 6, 0, 1, 2, 3, 4)])
    g.lab("L_p2")

    def red_write(half):
        r = []
        for nu in range(2):
            for q in range(4):
                a = V_ACC + (half * 2 + nu) * 16 + 4 * q
                r.append(f"ds_write_b128 v{V_RW+q}, v[{a}:{a+3}] offset:{128*nu + 32768*half}")
        return r

    def red_read(half):
        r = []
        for w in range(4):
            for ee in range(2):
                d = V_RD + (w * 2 + ee) * 4
                r.append(f"ds_read_b128 v[{d}:{d+3}], v{V_RR+ee} offset:{8192*w + 32768*half}")
        return r

    def red_sum(dst):
        r = []
        for j in range(8):
            r.append(f"v_add_f32 v{V_RD+j}, v{V_RD+j}, v{V_RD+8+j}")
        for j in range(8):
            r.append(f"v_add_f32 v{V_RD+16+j}, v{V_RD+16+j}, v{V_RD+24+j}")
        for j in range(8):
            r.append(f"v_add_f32 v{V_RD+j}, v{V_RD+j}, v{V_RD+16+j}")
        for j in range(4):
            r.append(f"v_cvt_pk_bf16_f32 v{dst+j}, v{V_RD+2*j}, v{V_RD+2*j+1}")
        return r

    extra = {}
    w0 = red_write(0)
    for n in range(4):
        extra.setdefault(30 + n, []).extend(w0[2 * n:2 * n + 2])
    extra.setdefault(36, []).extend(["s_waitcnt lgkmcnt(0)", "s_barrier"] + red_read(0))
    s0 = red_sum(V_R0)
    extra.setdefault(40, []).append("s_waitcnt lgkmcnt(0)")
    for n in range(7):
        extra.setdefault(40 + n, []).extend(s0[4 * n:4 * n + 4])
    for i in range(56):
        issued = min(56, i + D)
        wait = f"s_waitcnt vmcnt({issued - i - 1})"
        if i == 3:
            wait += " lgkmcnt(0)"
        e(wait)
        m = p2_mfma(i)
        e(m[0])
        if i + D < 56:
            e(hload(i + D))
        e(m[1])
        g.es(extra.get(i, []))
        g.stamp(f"h{i}")
    g.stamp("loopend")
    e("s_nop 7")
    e("s_nop 2")
    g.es(red_write(1))
    e("s_waitcnt lgkmcnt(0)")
    e("s_barrier")
    g.es(red_read(1))
    e(f"buffer_store_dwordx4 v[{V_R0}:{V_R0+3}], v{V_OUTA}, s[{S_OUT}:{S_OUT+3}], 0 offen {o.outflag}")
    e("s_waitcnt lgkmcnt(0)")
    g.es(red_sum(V_EP))
    e(f"buffer_store_dwordx4 v[{V_EP}:{V_EP+3}], v{V_OUTB}, s[{S_OUT}:{S_OUT+3}], 0 offen {o.outflag}")
    if o.stamps:
        e("s_waitcnt vmcnt(0)")
        g.stamp("final")
        e("s_waitcnt lgkmcnt(0)")
        if o.probe:
            pa, pb, pwg = [int(x) for x in o.probe.split(",")]
            if pwg >= 0:
                e(f"s_cmp_lg_u32 s2, {pwg}")
                e("s_cbranch_scc1 L_end")
            e(f"s_sub_u32 s{S_T0}, s{S_ST+2*pb}, s{S_ST+2*pa}")
            e(f"s_min_u32 s{S_T0}, s{S_T0}, 5000")
            e(f"s_mul_i32 s{S_T0}, s{S_T0}, 10")
            e(f"s_add_u32 s{S_T0}, s{S_T0}, s{S_ST+16}")
            g.lab("L_probe")
            e(f"s_memrealtime s[4:5]")
            e("s_waitcnt lgkmcnt(0)")
            e(f"s_sub_u32 s{S_T1}, s4, s{S_T0}")
            e(f"s_cmp_lt_i32 s{S_T1}, 0")
            e("s_cbranch_scc1 L_probe")
            e("s_endpgm")
        for n in range(9):
            e(f"v_mov_b32 v{96+n}, s{S_ST+2*n}")
        e(f"s_lshl_b32 s{S_T0}, s2, 8")
        e(f"s_lshl_b32 s{S_T1}, s{S_WAVE}, 6")
        e(f"s_add_u32 s{S_T0}, s{S_T0}, s{S_T1}")
        e(f"s_add_u32 s{S_T0}, s{S_T0}, {hex(STAMP_OFF)}")
        e("v_mov_b32 v108, 0")
        e("s_mov_b64 exec, 1")
        for n in range(3):
            e(f"buffer_store_dwordx4 v[{96+4*n}:{99+4*n}], v108, s[{S_WS}:{S_WS+3}], s{S_T0} offen offset:{16*n} sc1")
    g.lab("L_end")
    e("s_endpgm")

    g.lab("L_idle")
    for _ in range(o.idlesleep):
        e("s_sleep 8")
    for j in range(4):
        e(f"v_xor_b32 v{V_OX+j}, 128, v{V_OW2+j}")
    e(f"s_mul_i32 s4, s{S_WAVE}, 7")
    e(f"s_add_u32 s4, s4, 6")
    e(f"s_lshl_b32 s4, s4, 16")
    seq = []
    for tok in o.idleseq.split(","):
        seq.append((tok[0], int(tok[1:])))
    def idle_dma(k):
        kind, b = seq[k]
        if kind == 'o':
            return flat(dma_w(b, k))
        if b == 7:
            return [x.replace(f"s{S_UW+0},", "s4,").replace(f"s{S_UW+0} ", "s4 ") for x in flat(dma_w(0, k, V_OX))]
        return flat(dma_w(b, k, V_OX))
    e(nonce_load())
    g.es(idle_dma(0))
    g.es(idle_dma(1))
    for k in range(len(seq)):
        if k + 2 < len(seq):
            if k + 2 >= 5:
                e("s_waitcnt lgkmcnt(0)")
            g.es(idle_dma(k + 2))
        if seq[k][0] == 'o':
            e(f"s_waitcnt vmcnt({8*min(2, len(seq)-1-k)}) lgkmcnt(4)")
            emit_tr(g, seq[k][1], k)
    e("s_waitcnt vmcnt(0)")
    emit_nonce_check(g, "i")
    emit_poll(g, "I")
    g.stamp("ready")
    for i in range(D):
        e(hload(i))
    e("s_branch L_p2")

    if o.ins:
        g.lab("L_unled")
        producer("U", C[:o.ins] + [('w', 0)] + C[o.ins:] + [('w', b) for b in (5, 6, 1, 2, 3, 4)])
        e("s_branch L_p2")

    body = "\n".join(g.L)
    txt = HEADER + f""".amdgcn_target "amdgcn-amd-amdhsa--gfx950"
.text
.globl {KNAME}
.p2align 8
.type {KNAME},@function
{body}
.section .rodata,"a"
.p2align 6
.amdhsa_kernel {KNAME}
  .amdhsa_next_free_vgpr 512
  .amdhsa_next_free_sgpr 102
  .amdhsa_accum_offset 256
  .amdhsa_group_segment_fixed_size 0
  .amdhsa_kernarg_size 48
  .amdhsa_user_sgpr_count 2
  .amdhsa_user_sgpr_kernarg_segment_ptr 1
  .amdhsa_system_sgpr_workgroup_id_x 1
.end_amdhsa_kernel
"""
    return txt


def parse(argv):
    p = argparse.ArgumentParser()
    p.add_argument("-o", default=None)
    p.add_argument("--co", default=None)
    p.add_argument("--stamps", default="")
    p.add_argument("--rt", type=int, default=0)
    p.add_argument("--depth", type=int, default=12)
    p.add_argument("--nbuf", type=int, default=16)
    p.add_argument("--stagger", type=int, default=1)
    p.add_argument("--ins", type=int, default=4)
    p.add_argument("--idleseq", default="o0,o1,p5,o5,p6,o6,o2,p7,o3,o4")
    p.add_argument("--kpre", type=int, default=2)
    p.add_argument("--perms", default="0145623,0123456,2365401,2301456")
    p.add_argument("--cmask", type=int, default=6)
    p.add_argument("--outflag", default="sc1")
    p.add_argument("--probe", default="")
    p.add_argument("--npre", type=int, default=2)
    p.add_argument("--hoff", type=lambda v: int(v, 0), default=0)
    p.add_argument("--rot5", default="1,1,1")
    p.add_argument("--idlep", type=int, default=0)
    p.add_argument("--idlea", type=int, default=0)
    p.add_argument("--idleb", type=int, default=0)
    p.add_argument("--partner", type=int, default=1)
    p.add_argument("--idlesleep", type=int, default=0)
    p.add_argument("--rot1", type=int, default=1)
    return p.parse_args(argv)


if __name__ == "__main__":
    o = parse(sys.argv[1:])
    txt = gen(o)
    if o.o:
        open(o.o, "w").write(txt)
    if o.co:
        open(o.co + ".s", "w").write(txt + META)
        r = subprocess.run(["clang", "-x", "assembler", "-target", "amdgcn-amd-amdhsa",
                            "-mcpu=gfx950", o.co + ".s", "-o", o.co + ".co"], capture_output=True, text=True)
        if r.returncode:
            print(r.stderr[:4000])
            sys.exit(1)
```

```python
import sys, subprocess, argparse
from gen import HEADER, KNAME, META

FLAGS_OFF = 0x800000
STAMP_OFF = 0x8000000

S_X, S_W1, S_W2, S_OUT, S_WS = 16, 20, 24, 28, 36
S_DBG = 32
S_WAVE = 40
S_XCD = 41
S_I = 42
S_T0, S_T1, S_T2, S_T3 = 43, 44, 45, 46
S_M0A = 47
S_U = 48
S_M0W2 = 55
S_UW = 56
S_SPIN = 63
S_KX = 64
S_KW = 72
S_POLL = 64
S_NON = 80
S_PA = 82
S_ST = 84
S_Q = 3
S_FA = 8

V_LANE = 1
V_OX = 2
V_OW1 = 6
V_OW2 = 10
V_HF = 14
V_HS = 15
V_NON = 16
V_FD = 28
V_FLAGA = 19
V_ZERO = 18
V_HST = 22
V_OUTA = 23
V_OUTB = 24
V_T = 25
V_ACC = 32
V_FR = 96
V_EP = 160
V_AX = 192
V_AW1 = 204
V_AW2 = 210
V_RW = 216
V_RR = 220
V_RD = 224
V_R0 = 26
V_HR = 96
NONCE_POS = 2


class G:
    def __init__(self, o):
        self.o = o
        self.L = []

    def e(self, s):
        self.L.append("    " + s)

    def es(self, l):
        for x in l:
            self.e(x)

    def lab(self, s):
        self.L.append(s + ":")

    def c(self, s):
        self.L.append("    ; " + s)

    def stamp(self, name):
        if not self.o.stamps:
            return
        names = self.o.stamps.split(",")
        if name == "final":
            idx = 8
        elif name in names[:8]:
            idx = names.index(name)
        else:
            return
        r = S_ST + 2 * idx
        self.e(f"s_memrealtime s[{r}:{r+1}]" if self.o.rt else f"s_memtime s[{r}:{r+1}]")


def srd(g, d, lo, nbytes):
    g.e(f"s_mov_b32 s{d}, s{lo}")
    g.e(f"s_mov_b32 s{d+1}, s{lo+1}")
    g.e(f"s_mov_b32 s{d+2}, {hex(nbytes)}")
    g.e(f"s_mov_b32 s{d+3}, 0x20000")


def slot_base(pos):
    return (pos % 5) * 32768


def zone(pos):
    s = pos % 5
    return s // 2, (s % 2) * 32768


def dma_c(t, pos):
    sb = slot_base(pos)
    out = []
    for part, (vo, sr, so, add) in enumerate(((V_OW1, S_W1, S_KW + t, 0), (V_OX, S_X, S_KX + t, 16384))):
        for j in range(4):
            ins = f"buffer_load_dwordx4 v{vo+j}, s[{sr}:{sr+3}], s{so} offen offset:{1024*j} lds"
            if j == 0:
                out.append([f"s_add_u32 m0, s{S_M0A}, {sb+add}", "s_nop 0", ins])
            else:
                out.append([ins])
    return out


def dma_w(b, pos, vo=None):
    vo = V_OW2 if vo is None else vo
    sb = slot_base(pos)
    out = []
    for half in range(2):
        for j in range(4):
            so = f"s{S_UW+b}" if half == 0 else f"s{S_T3}"
            ins = f"buffer_load_dwordx4 v{vo+j}, s[{S_W2}:{S_W2+3}], {so} offen offset:{1024*j} lds"
            if j == 0:
                pre = [f"s_add_u32 m0, s{S_M0W2}, {sb + 4096*half}"]
                pre.append(f"s_add_u32 s{S_T3}, s{S_UW+b}, 32768" if half == 1 else "s_nop 0")
                out.append(pre + [ins])
            else:
                out.append([ins])
    return out


def flat(groups):
    return [x for gr in groups for x in gr]


def fr(s, k):
    return V_FR + 16 * s + 4 * k


def p1_reads(pos, s):
    z, add = zone(pos)
    r = []
    for phi in range(2):
        for e in range(2):
            d = fr(s, phi) + 2 * e
            r.append(f"ds_read_b64_tr_b16 v[{d}:{d+1}], v{V_AW1+2*z+phi} offset:{add + (16*s+4*e)*256}")
    for rho in range(2):
        d = fr(s, 2 + rho)
        r.append(f"ds_read_b128 v[{d}:{d+3}], v{V_AX+4*z+s} offset:{add + 16384 + rho*4096}")
    return [r[0], r[1], r[4], r[5], r[2], r[3]]


def p1_mfma(s, first):
    r = []
    for phi in range(2):
        for rho in range(2):
            a = V_ACC + (phi * 2 + rho) * 16
            A = fr(s, phi)
            B = fr(s, 2 + rho)
            c = "0" if first else f"v[{a}:{a+15}]"
            r.append(f"v_mfma_f32_32x32x16_bf16 v[{a}:{a+15}], v[{A}:{A+3}], v[{B}:{B+3}], {c}")
    return r


def w2_tr(b, pos):
    z, add = zone(pos)
    r = []
    for kp in range(4):
        for nu in range(2):
            for e in range(2):
                d = (b * 8 + kp * 2 + nu) * 4 + 2 * e
                r.append(f"ds_read_b64_tr_b16 a[{d}:{d+1}], v{V_AW2+2*z+nu} offset:{add + (16*kp+8*e)*128}")
    return r


def emit_tr(g, b, pos):
    for i, x in enumerate(w2_tr(b, pos)):
        if i == 8:
            g.e("s_waitcnt lgkmcnt(4)")
        g.e(x)


def grp(g, mf, gaps):
    for m, gp in zip(mf, gaps):
        if m:
            g.e(m)
        g.es(gp)


def emit_poll(g, tag):
    e = g.e
    e(f"s_mov_b32 s{S_SPIN}, 0x40000")
    g.lab(f"L_poll_{tag}")
    e(f"s_load_dwordx16 s[{S_POLL}:{S_POLL+15}], s[{S_PA}:{S_PA+1}], 0 glc")
    e(f"s_sub_u32 s{S_SPIN}, s{S_SPIN}, 1")
    e(f"s_cbranch_scc1 L_ready_{tag}")
    e("s_waitcnt lgkmcnt(0)")
    for k in range(7):
        e(f"s_cmp_lg_u64 s[{S_POLL+2*k}:{S_POLL+2*k+1}], s[{S_NON}:{S_NON+1}]")
        e(f"s_cbranch_scc1 L_poll_{tag}")
    g.lab(f"L_ready_{tag}")


def nonce_load():
    return f"buffer_load_dwordx2 v[{V_NON}:{V_NON+1}], v{V_ZERO}, s[{S_DBG}:{S_DBG+3}], 0 offen sc1"


def emit_nonce_check(g, tag):
    e = g.e
    e(f"v_readfirstlane_b32 s{S_NON+1}, v{V_NON+1}")
    e(f"s_mov_b32 s{S_SPIN}, 0x40000")
    g.lab(f"L_non_{tag}")
    e(f"s_cmp_lg_u32 s{S_NON+1}, 0")
    e(f"s_cbranch_scc1 L_nonok_{tag}")
    e(nonce_load())
    e("s_waitcnt vmcnt(0)")
    e(f"v_readfirstlane_b32 s{S_NON+1}, v{V_NON+1}")
    e(f"s_sub_u32 s{S_SPIN}, s{S_SPIN}, 1")
    e(f"s_cbranch_scc0 L_non_{tag}")
    g.lab(f"L_nonok_{tag}")
    e(f"v_readfirstlane_b32 s{S_NON}, v{V_NON}")


def emit_p1(g, tag, stream):
    e = g.e
    o = g.o
    last = stream.index(('c', 7))
    pending = False
    for p in range(last + 1):
        kind, idx = stream[p]
        g.c(f"---- {tag} pos {p}: {kind}{idx}")
        e(f"s_waitcnt vmcnt({9 if p == NONCE_POS + 1 else 8}) lgkmcnt(0)")
        e("s_barrier")
        g.stamp(f"bar{kind}{idx}")
        nk, ni = stream[p + 2]
        f = dma_c(ni, p + 2) if nk == 'c' else dma_w(ni, p + 2)
        m3 = p1_mfma(3, False) if pending else [None] * 4
        if kind == 'c':
            R = [p1_reads(p, k) for k in range(4)]
            grp(g, m3, [R[0][0:3], R[0][3:6], R[1][0:3], R[1][3:6] + f[0]])
            e("s_waitcnt lgkmcnt(6)")
            grp(g, p1_mfma(0, idx == 0), [R[2][0:3], R[2][3:6] + f[1], f[2], f[3]])
            e("s_waitcnt lgkmcnt(6)")
            if idx < 7:
                grp(g, p1_mfma(1, False), [R[3][0:3], R[3][3:6] + f[4], [], f[5]])
                e("s_waitcnt lgkmcnt(6)")
                grp(g, p1_mfma(2, False), [[], f[6], [], f[7]])
            else:
                grp(g, p1_mfma(1, False), [R[3][0:3], R[3][3:6] + f[4], f[5], f[6] + f[7]])
            pending = True
        else:
            T = w2_tr(idx, p)
            grp(g, m3, [T[0:3], T[3:6], T[6:9], T[9:12]])
            e("s_waitcnt lgkmcnt(4)")
            g.es(T[12:16])
            g.es(flat(f))
            pending = False
        if p == NONCE_POS:
            e(nonce_load())
    g.c(f"---- {tag} P1 tail (tile-major, epilogue interleaved)")
    emit_nonce_check(g, tag)
    e(f"s_mov_b32 s{S_T0}, 114688")
    m2, m3 = p1_mfma(2, False), p1_mfma(3, False)

    def epi(tile):
        phi, rho = divmod(tile, 2)
        a = V_ACC + tile * 16
        r = []
        for ee in range(2):
            d = V_EP + 4 * (2 * tile + ee)
            for jj in range(4):
                r.append(f"v_cvt_pk_bf16_f32 v{d+jj}, v{a+8*ee+2*jj}, v{a+8*ee+2*jj+1}")
            for jj in range(4):
                r.append(f"v_pk_max_i16 v{d+jj}, v{d+jj}, 0")
            so = "0" if rho == 0 else f"s{S_T0}"
            r.append(f"buffer_store_dwordx4 v[{d}:{d+3}], v{V_HST}, s[{S_WS}:{S_WS+3}], {so} offen offset:{(2*phi+ee)*1024} sc1")
        return r
    e("s_waitcnt lgkmcnt(6)")
    e(m2[0])
    e("s_waitcnt lgkmcnt(0)")
    g.stamp("bar8")
    e(m3[0])
    e(m2[1])
    e(m3[1])
    e(m2[2])
    e("s_nop 7")
    e("s_nop 0")
    E0, E1, E2, E3 = epi(0), epi(1), epi(2), epi(3)
    g.es(E0[0:4])
    e(m3[2])
    g.es(E0[4:9])
    e(m2[3])
    g.es(E0[9:14])
    e(m3[3])
    g.es(E0[14:18])
    g.es(E1)
    g.es(E2)
    g.es(E3)
    g.stamp("Hst")


def emit_flag(g):
    g.e(f"s_atomic_swap_x2 s[{S_NON}:{S_NON+1}], s[{S_FA}:{S_FA+1}], 0")
    g.stamp("flag")


def gen(o):
    g = G(o)
    e = g.e
    D = o.depth
    NB = o.nbuf
    L = V_LANE
    T = V_T
    g.lab(KNAME)
    g.stamp("entry")
    e("s_load_dwordx8 s[4:11], s[0:1], 0")
    e("s_load_dwordx4 s[12:15], s[0:1], 32")
    e(f"s_memrealtime s[{S_PA}:{S_PA+1}]")
    e("s_cmp_ge_u32 s2, 256")
    e("s_cbranch_scc1 L_end")
    e(f"v_lshrrev_b32 v{T}, 6, v0")
    e(f"v_and_b32 v{L}, 63, v0")
    e(f"s_and_b32 s{S_XCD}, s2, 7")
    e(f"v_readfirstlane_b32 s{S_WAVE}, v{T}")
    e(f"s_lshr_b32 s{S_I}, s2, 3")
    e(f"s_and_b32 s{S_Q}, s{S_I}, 3")
    e(f"s_lshr_b32 s{S_T1}, s{S_I}, 2")
    e(f"s_lshl_b32 s{S_T2}, s{S_Q}, 1")
    e(f"s_add_u32 s{S_T2}, s{S_T2}, s{S_T1}")
    if o.rot1 == 1:
        e(f"s_add_u32 s{S_T2}, s{S_Q}, s{S_T1}")
        e(f"s_lshl_b32 s{S_T2}, s{S_T2}, 1")
    elif o.rot1 == 2:
        e(f"s_add_u32 s{S_T2}, s{S_T2}, s{S_XCD}")
    e(f"s_and_b32 s{S_T3}, s{S_XCD}, 6")
    e(f"s_lshl_b32 s{S_T3}, s{S_T3}, 1")
    e(f"s_add_u32 s{S_U}, s{S_Q}, s{S_T3}")
    e(f"s_and_b32 s{S_T3}, s{S_XCD}, 1")
    e(f"s_mul_i32 s{S_T3}, s{S_T3}, 7")
    e(f"s_add_u32 s{S_SPIN}, s{S_T1}, s{S_T3}")
    e(f"s_lshl_b32 s{S_T0}, s{S_U}, 17")
    e(f"s_lshl_b32 s{S_T1}, s{S_SPIN}, 8")

    def kofs(t):
        e(f"s_add_u32 s{S_T3}, s{S_T2}, {t}")
        e(f"s_and_b32 s{S_T3}, s{S_T3}, 7")
        e(f"s_mul_i32 s{S_KW+t}, s{S_T3}, {64*3584}")
        e(f"s_lshl_b32 s{S_T3}, s{S_T3}, 7")
        e(f"s_add_u32 s{S_KX+t}, s{S_T3}, s{S_T0}")
        e(f"s_add_u32 s{S_KW+t}, s{S_KW+t}, s{S_T1}")
    kofs(0)
    kofs(1)
    e(f"s_lshl_b32 s{S_M0A}, s{S_WAVE}, 12")
    e(f"s_lshl_b32 s{S_M0W2}, s{S_WAVE}, 13")
    e(f"v_lshrrev_b32 v{T}, 4, v{L}")
    e(f"v_and_b32 v{T+1}, 15, v{L}")
    e(f"v_lshlrev_b32 v{T+2}, 2, v{T}")
    e(f"v_xor_b32 v{T+1}, v{T+1}, v{T+2}")
    e(f"v_lshlrev_b32 v{T+1}, 4, v{T+1}")
    e(f"s_lshl_b32 s{S_T3}, s{S_WAVE}, 4")
    e(f"v_add_u32 v{T+2}, s{S_T3}, v{T}")
    e(f"v_mul_u32_u24 v{T+2}, 3584, v{T+2}")
    e(f"v_add_u32 v{V_OW1}, v{T+1}, v{T+2}")
    for j in range(1, 4):
        e(f"v_add_u32 v{V_OW1+j}, {13312*j}, v{V_OW1}")
    e(f"v_and_b32 v{T+1}, 7, v{L}")
    e(f"v_xor_b32 v{T+2}, v{T+1}, v{T}")
    e(f"v_lshlrev_b32 v{T+2}, 4, v{T+2}")
    e(f"v_lshrrev_b32 v{T+3}, 3, v{L}")
    e(f"s_lshl_b32 s{S_T3}, s{S_WAVE}, 15")
    e(f"v_lshl_add_u32 v{T+4}, v{T+3}, 10, s{S_T3}")
    e(f"v_add_u32 v{V_OX}, v{T+4}, v{T+2}")
    e(f"v_xor_b32 v{T+2}, 64, v{T+2}")
    e(f"v_add_u32 v{T+2}, v{T+4}, v{T+2}")
    e(f"v_add_u32 v{V_OX+1}, 7168, v{T+2}")
    e(f"v_add_u32 v{V_OX+2}, {7168*2}, v{V_OX}")
    e(f"v_add_u32 v{V_OX+3}, {7168*3}, v{T+2}")
    e("s_waitcnt lgkmcnt(0)")
    g.stamp("karg")
    srd(g, S_W1, 6, 512 * 1792 * 2)
    srd(g, S_X, 4, 2048 * 512 * 2)
    e(f"s_cmp_ge_u32 s{S_I}, 28")
    e("s_cbranch_scc1 L_setup2")
    g.es(flat(dma_c(0, 0)))
    g.es(flat(dma_c(1, 1)[:3]))
    g.stamp("dma0")
    g.lab("L_setup2")
    srd(g, S_DBG, 12, 256)
    e(f"v_mov_b32 v{V_ZERO}, 0")
    e(f"s_or_b32 s{S_T3}, s2, s{S_WAVE}")
    e(f"s_cmp_lg_u32 s{S_T3}, 0")
    e("s_cbranch_scc1 L_nonce_done")
    e(f"s_or_b32 s{S_PA+1}, s{S_PA+1}, 0x80000000")
    e(f"s_atomic_swap_x2 s[{S_PA}:{S_PA+1}], s[12:13], 0")
    e("s_waitcnt lgkmcnt(0)")
    g.lab("L_nonce_done")
    for t in range(2, 8):
        kofs(t)
    srd(g, S_W2, 8, 512 * 1792 * 2)
    srd(g, S_OUT, 10, 2048 * 512 * 2)
    if o.hoff:
        e(f"s_add_u32 s{S_WS}, s14, {hex(o.hoff)}")
        e(f"s_addc_u32 s{S_WS+1}, s15, 0")
        e(f"s_mov_b32 s{S_WS+2}, 0x1000000")
        e(f"s_mov_b32 s{S_WS+3}, 0x20000")
    else:
        srd(g, S_WS, 14, 0x10000000)
    e(f"s_lshr_b32 s{S_T0}, s{S_WAVE}, 1")
    e(f"s_and_b32 s{S_T1}, s{S_WAVE}, 1")
    e(f"s_lshl_b32 s{S_T2}, s{S_U}, 1")
    e(f"s_add_u32 s{S_T2}, s{S_T2}, s{S_T0}")
    e(f"s_lshl_b32 s{S_T3}, s{S_SPIN}, 1")
    e(f"s_add_u32 s{S_T3}, s{S_T3}, s{S_T1}")
    e(f"s_mul_i32 s4, s{S_T3}, 37")
    e(f"s_lshr_b32 s4, s4, 8")
    e(f"s_mul_i32 s5, s4, 7")
    e(f"s_sub_u32 s5, s{S_T3}, s5")
    e(f"s_lshl_b32 s6, s{S_T2}, 2")
    e(f"s_add_u32 s4, s4, s6")
    e(f"s_lshl_b32 s4, s4, 7")
    e(f"s_lshl_b32 s5, s5, 3")
    e(f"s_add_u32 s4, s4, s5")
    e(f"s_add_u32 s4, s4, {hex(o.hoff + FLAGS_OFF)}")
    e(f"s_add_u32 s{S_FA}, s14, s4")
    e(f"s_addc_u32 s{S_FA+1}, s15, 0")
    e(f"s_mul_i32 s{S_T2}, s{S_T2}, {2*114688}")
    e(f"s_lshl_b32 s{S_T3}, s{S_T3}, 12")
    e(f"s_add_u32 s{S_T2}, s{S_T2}, s{S_T3}")
    e(f"v_lshl_add_u32 v{V_HST}, v{L}, 4, s{S_T2}")
    e(f"v_and_b32 v{T+2}, 31, v{L}")
    e(f"v_lshrrev_b32 v{T+4}, 5, v{L}")
    e(f"v_bfe_u32 v{T+5}, v{L}, 1, 3")
    e(f"v_xor_b32 v{T+5}, v{T+5}, v{T+4}")
    e(f"v_lshlrev_b32 v{T+5}, 4, v{T+5}")
    e(f"v_lshl_add_u32 v{T+5}, v{T+2}, 7, v{T+5}")
    e(f"s_lshl_b32 s{S_T2}, s{S_T0}, 13")
    e(f"v_add_u32 v{V_AX}, s{S_T2}, v{T+5}")
    for s in range(1, 4):
        e(f"v_xor_b32 v{V_AX+s}, {32*s}, v{V_AX}")
    for z in (1, 2):
        for s in range(4):
            e(f"v_add_u32 v{V_AX+4*z+s}, {65536*z}, v{V_AX+s}")
    e(f"v_xor_b32 v{T+5}, v{T+1}, v{T+4}")
    e(f"v_lshlrev_b32 v{T+5}, 4, v{T+5}")
    e(f"v_lshl_add_u32 v{T+5}, v{T+2}, 8, v{T+5}")
    e(f"v_add_u32 v{V_RW}, s{S_M0W2}, v{T+5}")
    for q in range(1, 4):
        e(f"v_xor_b32 v{V_RW+q}, {32*q}, v{V_RW}")
    e(f"v_lshlrev_b32 v{T+5}, 1, v{T+1}")
    e(f"v_xor_b32 v{T+5}, v{T+5}, v{T+3}")
    e(f"v_lshlrev_b32 v{T+5}, 4, v{T+5}")
    e(f"v_lshl_add_u32 v{T+5}, v{T+3}, 8, v{T+5}")
    e(f"s_lshl_b32 s{S_T2}, s{S_WAVE}, 11")
    e(f"v_add_u32 v{V_RR}, s{S_T2}, v{T+5}")
    e(f"v_xor_b32 v{V_RR+1}, 16, v{V_RR}")
    e(f"v_bfe_u32 v{T+2}, v{L}, 2, 2")
    e(f"v_and_b32 v{T+5}, 3, v{L}")
    e(f"v_lshlrev_b32 v{T+5}, 3, v{T+5}")
    e(f"v_and_b32 v{T+6}, 1, v{T}")
    e(f"v_lshl_add_u32 v{T+5}, v{T+6}, 5, v{T+5}")
    e(f"v_lshl_add_u32 v{T+6}, v{T+4}, 3, v{T+2}")
    e(f"v_lshl_add_u32 v{V_AW1}, v{T+6}, 8, v{T+5}")
    e(f"s_lshl_b32 s{S_T2}, s{S_T1}, 1")
    e(f"v_xor_b32 v{T+6}, s{S_T2}, v{T+2}")
    e(f"v_lshl_add_u32 v{V_AW1}, v{T+6}, 6, v{V_AW1}")
    e(f"v_xor_b32 v{V_AW1+1}, 64, v{V_AW1}")
    for z in (1, 2):
        for p in range(2):
            e(f"v_add_u32 v{V_AW1+2*z+p}, {65536*z}, v{V_AW1+p}")
    e(f"v_lshl_add_u32 v{T+6}, v{T+4}, 2, v{T+2}")
    e(f"v_lshl_add_u32 v{T+5}, v{T+6}, 7, v{T+5}")
    e(f"v_lshrrev_b32 v{T+6}, 1, v{T+2}")
    e(f"v_lshl_add_u32 v{T+5}, v{T+6}, 6, v{T+5}")
    e(f"v_add_u32 v{V_AW2}, s{S_M0W2}, v{T+5}")
    e(f"v_xor_b32 v{V_AW2+1}, 64, v{V_AW2}")
    for z in (1, 2):
        for p in range(2):
            e(f"v_add_u32 v{V_AW2+2*z+p}, {65536*z}, v{V_AW2+p}")
    e(f"s_and_b32 s4, s{S_Q}, 1")
    e(f"s_xor_b32 s4, s4, 1")
    e(f"s_lshl_b32 s4, s4, 1")
    e(f"s_lshr_b32 s5, s{S_Q}, 1")
    e(f"s_add_u32 s4, s4, s5")
    e(f"s_lshl_b32 s5, s{S_XCD}, 2")
    e(f"s_add_u32 s{S_T0}, s4, s5")
    e(f"s_lshr_b32 s4, s{S_I}, 2")
    e(f"s_lshl_b32 s5, s{S_Q}, 1")
    e(f"s_add_u32 s4, s4, s5")
    e(f"s_and_b32 s5, s{S_XCD}, 1")
    e(f"s_add_u32 s4, s4, s5")
    e(f"s_and_b32 s{S_T1}, s4, 7")
    e(f"s_lshr_b32 s4, s{S_T1}, 1")
    e(f"s_lshr_b32 s5, s{S_XCD}, 1")
    e(f"s_add_u32 s5, s5, s4")
    e(f"s_add_u32 s4, s4, s{S_Q}")
    e(f"s_and_b32 s4, s4, 3")
    e(f"s_bitcmp1_b32 s{S_I}, 2")
    e(f"s_cselect_b32 s{S_T2}, s5, s4")
    e(f"s_mov_b32 s7, s{S_XCD}")
    e(f"s_and_b32 s{S_XCD}, s{S_T1}, 1")
    e(f"s_mul_i32 s{S_T3}, s{S_WAVE}, 7")
    for b in range(7):
        if b < 5:
            e(f"s_add_u32 s5, s{S_T2}, {b}")
            e(f"s_mul_i32 s6, s5, 52")
            e(f"s_lshr_b32 s6, s6, 8")
            e(f"s_mul_i32 s6, s6, 5")
            e(f"s_sub_u32 s5, s5, s6")
            e(f"s_add_u32 s5, s5, s{S_T3}")
            e(f"s_add_u32 s5, s5, 2")
        else:
            e(f"s_add_u32 s5, s{S_T3}, {b-5}")
        e(f"s_lshl_b32 s{S_UW+b}, s5, 16")
        e(f"s_lshl_b32 s{S_U+b}, s5, 12")
    e(f"v_and_b32 v{T+2}, 1, v{T}")
    e(f"v_lshlrev_b32 v{T+2}, 2, v{T+2}")
    e(f"v_xor_b32 v{T+2}, v{T+1}, v{T+2}")
    e(f"v_lshlrev_b32 v{T+2}, 4, v{T+2}")
    e(f"v_lshl_add_u32 v{T+2}, v{T+3}, 10, v{T+2}")
    e(f"s_lshl_b32 s{S_T2}, s{S_T1}, 7")
    e(f"v_add_u32 v{V_OW2}, s{S_T2}, v{T+2}")
    for j in range(1, 4):
        e(f"v_add_u32 v{V_OW2+j}, {7168*j}, v{V_OW2}")
    e(f"v_lshlrev_b32 v{T+2}, 4, v{T+1}")
    e(f"v_lshl_add_u32 v{T+2}, v{T+3}, 10, v{T+2}")
    e(f"s_lshl_b32 s{S_T3}, s{S_T0}, 16")
    e(f"s_add_u32 s{S_T2}, s{S_T2}, s{S_T3}")
    e(f"s_add_u32 s{S_T2}, s{S_T2}, s{S_M0W2}")
    e(f"s_lshl_b32 s{S_T3}, s{S_XCD}, 15")
    e(f"s_add_u32 s{S_T3}, s{S_T3}, s{S_T2}")
    e(f"v_add_u32 v{V_OUTA}, s{S_T3}, v{T+2}")
    e(f"v_xor_b32 v{V_OUTB}, 0x8000, v{V_OUTA}")
    e(f"s_lshl_b32 s{S_T2}, s{S_T0}, 1")
    e(f"s_add_u32 s{S_T3}, s{S_T2}, s{S_XCD}")
    e(f"s_mul_i32 s{S_T3}, s{S_T3}, 114688")
    e(f"v_lshl_add_u32 v{V_HF}, v{L}, 4, s{S_T3}")
    e(f"s_xor_b32 s{S_T3}, s{S_XCD}, 1")
    e(f"s_add_u32 s{S_T3}, s{S_T3}, s{S_T2}")
    e(f"s_mul_i32 s{S_T3}, s{S_T3}, 114688")
    e(f"v_lshl_add_u32 v{V_HS}, v{L}, 4, s{S_T3}")
    e(f"s_lshl_b32 s{S_T2}, s{S_T0}, 2")
    e(f"s_add_u32 s{S_T2}, s{S_T2}, s{S_WAVE}")
    e(f"s_lshl_b32 s{S_T2}, s{S_T2}, 7")
    e(f"s_add_u32 s{S_T2}, s{S_T2}, {hex(o.hoff + FLAGS_OFF)}")
    e(f"s_add_u32 s{S_PA}, s14, s{S_T2}")
    e(f"s_addc_u32 s{S_PA+1}, s15, 0")
    e(f"s_load_dword s10, s[{S_PA}:{S_PA+1}], 0 glc")
    e(f"s_cmp_ge_u32 s{S_I}, 28")
    e("s_cbranch_scc1 L_idle")
    g.stamp("setup")
    rest = dma_c(1, 1)[3:]
    rest[0] = [f"s_add_u32 m0, s{S_M0A}, {slot_base(1)}", "s_nop 0"] + rest[0]
    g.es(flat(rest))
    def hload(i):
        half, p = divmod(i, 28)
        b, kp = divmod(p, 4)
        d = V_HR + 4 * (i % NB)
        return f"buffer_load_dwordx4 v[{d}:{d+3}], v{V_HF+half}, s[{S_WS}:{S_WS+3}], s{S_U+b} offen offset:{kp*1024} sc1"

    def p2_mfma(i):
        half, p = divmod(i, 28)
        b, kp = divmod(p, 4)
        h = V_HR + 4 * (i % NB)
        r = []
        for nu in range(2):
            a = V_ACC + (half * 2 + nu) * 16
            w = (b * 8 + kp * 2 + nu) * 4
            c = "0" if p == 0 else f"v[{a}:{a+15}]"
            r.append(f"v_mfma_f32_32x32x16_bf16 v[{a}:{a+15}], a[{w}:{w+3}], v[{h}:{h+3}], {c}")
        return r

    def producer(tag, stream):
        emit_p1(g, tag, stream)
        e("s_barrier")
        last = stream.index(('c', 7))
        it = [(stream[p][1], p) for p in range(last + 1, 15)]
        g.es(flat(dma_w(*it[2])))
        e("s_waitcnt vmcnt(24) lgkmcnt(4)")
        emit_tr(g, *it[0])
        e("s_waitcnt vmcnt(16) lgkmcnt(4)")
        emit_tr(g, *it[1])
        e("s_waitcnt vmcnt(8) lgkmcnt(0)")
        emit_flag(g)
        n = len(it)
        g.es(flat(dma_w(*it[3])))
        for k in range(2, n - 2):
            g.es(flat(dma_w(*it[k + 2])))
            e("s_waitcnt vmcnt(16) lgkmcnt(4)")
            g.stamp(f"wl{k+7-n}")
            emit_tr(g, *it[k])
        g.stamp("poll1")
        emit_poll(g, tag)
        g.stamp("ready")
        for i in range(D):
            e(hload(i))
        e(f"s_waitcnt vmcnt({D+8})")
        emit_tr(g, *it[n - 2])
        e(f"s_waitcnt vmcnt({D}) lgkmcnt(4)")
        g.stamp("wl6")
        emit_tr(g, *it[n - 1])

    if o.ins:
        e(f"s_bitcmp0_b32 s{S_I}, 2")
        e("s_cbranch_scc1 L_unled")
    C = [('c', t) for t in range(8)]
    producer("E", C + [('w', b) for b in (5, 6, 0, 1, 2, 3, 4)])
    g.lab("L_p2")

    def red_write(half):
        r = []
        for nu in range(2):
            for q in range(4):
                a = V_ACC + (half * 2 + nu) * 16 + 4 * q
                r.append(f"ds_write_b128 v{V_RW+q}, v[{a}:{a+3}] offset:{128*nu + 32768*half}")
        return r

    def red_read(half):
        r = []
        for w in range(4):
            for ee in range(2):
                d = V_RD + (w * 2 + ee) * 4
                r.append(f"ds_read_b128 v[{d}:{d+3}], v{V_RR+ee} offset:{8192*w + 32768*half}")
        return r

    def red_sum(dst):
        r = []
        for j in range(8):
            r.append(f"v_add_f32 v{V_RD+j}, v{V_RD+j}, v{V_RD+8+j}")
        for j in range(8):
            r.append(f"v_add_f32 v{V_RD+16+j}, v{V_RD+16+j}, v{V_RD+24+j}")
        for j in range(8):
            r.append(f"v_add_f32 v{V_RD+j}, v{V_RD+j}, v{V_RD+16+j}")
        for j in range(4):
            r.append(f"v_cvt_pk_bf16_f32 v{dst+j}, v{V_RD+2*j}, v{V_RD+2*j+1}")
        return r

    extra = {}
    w0 = red_write(0)
    for n in range(4):
        extra.setdefault(30 + n, []).extend(w0[2 * n:2 * n + 2])
    extra.setdefault(36, []).extend(["s_waitcnt lgkmcnt(0)", "s_barrier"] + red_read(0))
    s0 = red_sum(V_R0)
    extra.setdefault(40, []).append("s_waitcnt lgkmcnt(0)")
    for n in range(7):
        extra.setdefault(40 + n, []).extend(s0[4 * n:4 * n + 4])
    for i in range(56):
        issued = min(56, i + D)
        wait = f"s_waitcnt vmcnt({issued - i - 1})"
        if i == 3:
            wait += " lgkmcnt(0)"
        e(wait)
        m = p2_mfma(i)
        e(m[0])
        if i + D < 56:
            e(hload(i + D))
        e(m[1])
        g.es(extra.get(i, []))
        g.stamp(f"h{i}")
    g.stamp("loopend")
    e("s_nop 7")
    e("s_nop 2")
    g.es(red_write(1))
    e("s_waitcnt lgkmcnt(0)")
    e("s_barrier")
    g.es(red_read(1))
    e(f"buffer_store_dwordx4 v[{V_R0}:{V_R0+3}], v{V_OUTA}, s[{S_OUT}:{S_OUT+3}], 0 offen {o.outflag}")
    e("s_waitcnt lgkmcnt(0)")
    g.es(red_sum(V_EP))
    e(f"buffer_store_dwordx4 v[{V_EP}:{V_EP+3}], v{V_OUTB}, s[{S_OUT}:{S_OUT+3}], 0 offen {o.outflag}")
    if o.stamps:
        e("s_waitcnt vmcnt(0)")
        g.stamp("final")
        e("s_waitcnt lgkmcnt(0)")
        if o.probe:
            pa, pb, pwg = [int(x) for x in o.probe.split(",")]
            if pwg >= 0:
                e(f"s_cmp_lg_u32 s2, {pwg}")
                e("s_cbranch_scc1 L_end")
            if pwg == -2:
                e(f"s_cmp_ge_u32 s{S_I}, 28")
                e("s_cbranch_scc1 L_end")
            e(f"s_sub_u32 s{S_T0}, s{S_ST+2*pb}, s{S_NON if pa == 9 else S_ST+2*pa}")
            e(f"s_min_u32 s{S_T0}, s{S_T0}, 5000")
            e(f"s_mul_i32 s{S_T0}, s{S_T0}, 10")
            e(f"s_add_u32 s{S_T0}, s{S_T0}, s{S_ST+16}")
            g.lab("L_probe")
            e(f"s_memrealtime s[4:5]")
            e("s_waitcnt lgkmcnt(0)")
            e(f"s_sub_u32 s{S_T1}, s4, s{S_T0}")
            e(f"s_cmp_lt_i32 s{S_T1}, 0")
            e("s_cbranch_scc1 L_probe")
            e("s_endpgm")
        for n in range(9):
            e(f"v_mov_b32 v{96+n}, s{S_ST+2*n}")
        e(f"s_lshl_b32 s{S_T0}, s2, 8")
        e(f"s_lshl_b32 s{S_T1}, s{S_WAVE}, 6")
        e(f"s_add_u32 s{S_T0}, s{S_T0}, s{S_T1}")
        e(f"s_add_u32 s{S_T0}, s{S_T0}, {hex(STAMP_OFF)}")
        e("v_mov_b32 v108, 0")
        e("s_mov_b64 exec, 1")
        for n in range(3):
            e(f"buffer_store_dwordx4 v[{96+4*n}:{99+4*n}], v108, s[{S_WS}:{S_WS+3}], s{S_T0} offen offset:{16*n} sc1")
    g.lab("L_end")
    e("s_endpgm")

    g.lab("L_idle")
    for _ in range(o.idlesleep):
        e("s_sleep 8")
    for j in range(4):
        e(f"v_xor_b32 v{V_OX+j}, 128, v{V_OW2+j}")
    e(f"s_mul_i32 s4, s{S_WAVE}, 7")
    e(f"s_add_u32 s4, s4, 6")
    e(f"s_lshl_b32 s4, s4, 16")
    seq = []
    for tok in o.idleseq.split(","):
        seq.append((tok[0], int(tok[1:])))
    def idle_dma(k):
        kind, b = seq[k]
        if kind == 'o':
            return flat(dma_w(b, k))
        if b == 7:
            return [x.replace(f"s{S_UW+0},", "s4,").replace(f"s{S_UW+0} ", "s4 ") for x in flat(dma_w(0, k, V_OX))]
        return flat(dma_w(b, k, V_OX))
    e(nonce_load())
    g.es(idle_dma(0))
    g.es(idle_dma(1))
    for k in range(len(seq)):
        if k + 2 < len(seq):
            if k + 2 >= 5:
                e("s_waitcnt lgkmcnt(0)")
            g.es(idle_dma(k + 2))
        if seq[k][0] == 'o':
            e(f"s_waitcnt vmcnt({8*min(2, len(seq)-1-k)}) lgkmcnt(4)")
            emit_tr(g, seq[k][1], k)
    e("s_waitcnt vmcnt(0)")
    emit_nonce_check(g, "i")
    emit_poll(g, "I")
    g.stamp("ready")
    for i in range(D):
        e(hload(i))
    e("s_branch L_p2")

    if o.ins:
        g.lab("L_unled")
        producer("U", C[:o.ins] + [('w', 0)] + C[o.ins:] + [('w', b) for b in (5, 6, 1, 2, 3, 4)])
        e("s_branch L_p2")

    body = "\n".join(g.L)
    txt = HEADER + f""".amdgcn_target "amdgcn-amd-amdhsa--gfx950"
.text
.globl {KNAME}
.p2align 8
.type {KNAME},@function
{body}
.section .rodata,"a"
.p2align 6
.amdhsa_kernel {KNAME}
  .amdhsa_next_free_vgpr 512
  .amdhsa_next_free_sgpr 102
  .amdhsa_accum_offset 256
  .amdhsa_group_segment_fixed_size 0
  .amdhsa_kernarg_size 48
  .amdhsa_user_sgpr_count 2
  .amdhsa_user_sgpr_kernarg_segment_ptr 1
  .amdhsa_system_sgpr_workgroup_id_x 1
.end_amdhsa_kernel
"""
    return txt


def parse(argv):
    p = argparse.ArgumentParser()
    p.add_argument("-o", default=None)
    p.add_argument("--co", default=None)
    p.add_argument("--stamps", default="")
    p.add_argument("--rt", type=int, default=0)
    p.add_argument("--depth", type=int, default=12)
    p.add_argument("--nbuf", type=int, default=16)
    p.add_argument("--stagger", type=int, default=1)
    p.add_argument("--ins", type=int, default=4)
    p.add_argument("--idleseq", default="o0,o1,p5,o5,p6,o6,o2,p7,o3,o4")
    p.add_argument("--kpre", type=int, default=2)
    p.add_argument("--perms", default="0145623,0123456,2365401,2301456")
    p.add_argument("--cmask", type=int, default=6)
    p.add_argument("--outflag", default="sc1")
    p.add_argument("--probe", default="")
    p.add_argument("--npre", type=int, default=2)
    p.add_argument("--hoff", type=lambda v: int(v, 0), default=0)
    p.add_argument("--rot5", default="1,1,1")
    p.add_argument("--idlep", type=int, default=0)
    p.add_argument("--idlea", type=int, default=0)
    p.add_argument("--idleb", type=int, default=0)
    p.add_argument("--partner", type=int, default=1)
    p.add_argument("--idlesleep", type=int, default=0)
    p.add_argument("--rot1", type=int, default=1)
    return p.parse_args(argv)


if __name__ == "__main__":
    o = parse(sys.argv[1:])
    txt = gen(o)
    if o.o:
        open(o.o, "w").write(txt)
    if o.co:
        open(o.co + ".s", "w").write(txt + META)
        r = subprocess.run(["clang", "-x", "assembler", "-target", "amdgcn-amd-amdhsa",
                            "-mcpu=gfx950", o.co + ".s", "-o", o.co + ".co"], capture_output=True, text=True)
        if r.returncode:
            print(r.stderr[:4000])
            sys.exit(1)
```

```python
import sys, subprocess, argparse
from gen import HEADER, KNAME, META

FLAGS_OFF = 0x800000
STAMP_OFF = 0x8000000

S_X, S_W1, S_W2, S_OUT, S_WS = 16, 20, 24, 28, 36
S_DBG = 32
S_WAVE = 40
S_XCD = 41
S_I = 42
S_T0, S_T1, S_T2, S_T3 = 43, 44, 45, 46
S_M0A = 47
S_U = 48
S_M0W2 = 55
S_UW = 56
S_SPIN = 63
S_KX = 64
S_KW = 72
S_POLL = 64
S_NON = 80
S_PA = 82
S_ST = 84
S_Q = 3
S_FA = 8

V_LANE = 1
V_OX = 2
V_OW1 = 6
V_OW2 = 10
V_HF = 14
V_HS = 15
V_NON = 16
V_FD = 28
V_FLAGA = 19
V_ZERO = 18
V_HST = 22
V_OUTA = 23
V_OUTB = 24
V_T = 25
V_ACC = 32
V_FR = 96
V_EP = 160
V_AX = 192
V_AW1 = 204
V_AW2 = 210
V_RW = 216
V_RR = 220
V_RD = 224
V_R0 = 26
V_HR = 96
NONCE_POS = 2


class G:
    def __init__(self, o):
        self.o = o
        self.L = []

    def e(self, s):
        self.L.append("    " + s)

    def es(self, l):
        for x in l:
            self.e(x)

    def lab(self, s):
        self.L.append(s + ":")

    def c(self, s):
        self.L.append("    ; " + s)

    def stamp(self, name):
        if not self.o.stamps:
            return
        names = self.o.stamps.split(",")
        if name == "final":
            idx = 8
        elif name in names[:8]:
            idx = names.index(name)
        else:
            return
        r = S_ST + 2 * idx
        self.e(f"s_memrealtime s[{r}:{r+1}]" if self.o.rt else f"s_memtime s[{r}:{r+1}]")


def srd(g, d, lo, nbytes):
    g.e(f"s_mov_b32 s{d}, s{lo}")
    g.e(f"s_mov_b32 s{d+1}, s{lo+1}")
    g.e(f"s_mov_b32 s{d+2}, {hex(nbytes)}")
    g.e(f"s_mov_b32 s{d+3}, 0x20000")


def slot_base(pos):
    return (pos % 5) * 32768


def zone(pos):
    s = pos % 5
    return s // 2, (s % 2) * 32768


def dma_c(t, pos):
    sb = slot_base(pos)
    out = []
    for part, (vo, sr, so, add) in enumerate(((V_OW1, S_W1, S_KW + t, 0), (V_OX, S_X, S_KX + t, 16384))):
        for j in range(4):
            ins = f"buffer_load_dwordx4 v{vo+j}, s[{sr}:{sr+3}], s{so} offen offset:{1024*j} lds"
            if j == 0:
                out.append([f"s_add_u32 m0, s{S_M0A}, {sb+add}", "s_nop 0", ins])
            else:
                out.append([ins])
    return out


def dma_w(b, pos, vo=None):
    vo = V_OW2 if vo is None else vo
    sb = slot_base(pos)
    out = []
    for half in range(2):
        for j in range(4):
            so = f"s{S_UW+b}" if half == 0 else f"s{S_T3}"
            ins = f"buffer_load_dwordx4 v{vo+j}, s[{S_W2}:{S_W2+3}], {so} offen offset:{1024*j} lds"
            if j == 0:
                pre = [f"s_add_u32 m0, s{S_M0W2}, {sb + 4096*half}"]
                pre.append(f"s_add_u32 s{S_T3}, s{S_UW+b}, 32768" if half == 1 else "s_nop 0")
                out.append(pre + [ins])
            else:
                out.append([ins])
    return out


def flat(groups):
    return [x for gr in groups for x in gr]


def fr(s, k):
    return V_FR + 16 * s + 4 * k


def p1_reads(pos, s):
    z, add = zone(pos)
    r = []
    for phi in range(2):
        for e in range(2):
            d = fr(s, phi) + 2 * e
            r.append(f"ds_read_b64_tr_b16 v[{d}:{d+1}], v{V_AW1+2*z+phi} offset:{add + (16*s+4*e)*256}")
    for rho in range(2):
        d = fr(s, 2 + rho)
        r.append(f"ds_read_b128 v[{d}:{d+3}], v{V_AX+4*z+s} offset:{add + 16384 + rho*4096}")
    return [r[0], r[1], r[4], r[5], r[2], r[3]]


def p1_mfma(s, first):
    r = []
    for phi in range(2):
        for rho in range(2):
            a = V_ACC + (phi * 2 + rho) * 16
            A = fr(s, phi)
            B = fr(s, 2 + rho)
            c = "0" if first else f"v[{a}:{a+15}]"
            r.append(f"v_mfma_f32_32x32x16_bf16 v[{a}:{a+15}], v[{A}:{A+3}], v[{B}:{B+3}], {c}")
    return r


def w2_tr(b, pos):
    z, add = zone(pos)
    r = []
    for kp in range(4):
        for nu in range(2):
            for e in range(2):
                d = (b * 8 + kp * 2 + nu) * 4 + 2 * e
                r.append(f"ds_read_b64_tr_b16 a[{d}:{d+1}], v{V_AW2+2*z+nu} offset:{add + (16*kp+8*e)*128}")
    return r


def emit_tr(g, b, pos):
    for i, x in enumerate(w2_tr(b, pos)):
        if i == 8:
            g.e("s_waitcnt lgkmcnt(4)")
        g.e(x)


def grp(g, mf, gaps):
    for m, gp in zip(mf, gaps):
        if m:
            g.e(m)
        g.es(gp)


def emit_poll(g, tag):
    e = g.e
    e(f"s_mov_b32 s{S_SPIN}, 0x40000")
    g.lab(f"L_poll_{tag}")
    e(f"s_load_dwordx16 s[{S_POLL}:{S_POLL+15}], s[{S_PA}:{S_PA+1}], 0 glc")
    e(f"s_sub_u32 s{S_SPIN}, s{S_SPIN}, 1")
    e(f"s_cbranch_scc1 L_ready_{tag}")
    e("s_waitcnt lgkmcnt(0)")
    for k in range(7):
        e(f"s_cmp_lg_u64 s[{S_POLL+2*k}:{S_POLL+2*k+1}], s[{S_NON}:{S_NON+1}]")
        e(f"s_cbranch_scc1 L_poll_{tag}")
    g.lab(f"L_ready_{tag}")


def nonce_load():
    return f"buffer_load_dwordx2 v[{V_NON}:{V_NON+1}], v{V_ZERO}, s[{S_DBG}:{S_DBG+3}], 0 offen sc1"


def emit_nonce_check(g, tag):
    e = g.e
    e(f"v_readfirstlane_b32 s{S_NON+1}, v{V_NON+1}")
    e(f"s_mov_b32 s{S_SPIN}, 0x40000")
    g.lab(f"L_non_{tag}")
    e(f"s_cmp_lg_u32 s{S_NON+1}, 0")
    e(f"s_cbranch_scc1 L_nonok_{tag}")
    e(nonce_load())
    e("s_waitcnt vmcnt(0)")
    e(f"v_readfirstlane_b32 s{S_NON+1}, v{V_NON+1}")
    e(f"s_sub_u32 s{S_SPIN}, s{S_SPIN}, 1")
    e(f"s_cbranch_scc0 L_non_{tag}")
    g.lab(f"L_nonok_{tag}")
    e(f"v_readfirstlane_b32 s{S_NON}, v{V_NON}")


def emit_p1(g, tag, stream):
    e = g.e
    o = g.o
    last = stream.index(('c', 7))
    pending = False
    for p in range(last + 1):
        kind, idx = stream[p]
        g.c(f"---- {tag} pos {p}: {kind}{idx}")
        e(f"s_waitcnt vmcnt({9 if p == NONCE_POS + 1 else 8}) lgkmcnt(0)")
        e("s_barrier")
        g.stamp(f"bar{kind}{idx}")
        nk, ni = stream[p + 2]
        f = dma_c(ni, p + 2) if nk == 'c' else dma_w(ni, p + 2)
        m3 = p1_mfma(3, False) if pending else [None] * 4
        if kind == 'c':
            R = [p1_reads(p, k) for k in range(4)]
            grp(g, m3, [R[0][0:3], R[0][3:6], R[1][0:3], R[1][3:6] + f[0]])
            e("s_waitcnt lgkmcnt(6)")
            grp(g, p1_mfma(0, idx == 0), [R[2][0:3], R[2][3:6] + f[1], f[2], f[3]])
            e("s_waitcnt lgkmcnt(6)")
            if idx < 7:
                grp(g, p1_mfma(1, False), [R[3][0:3], R[3][3:6] + f[4], [], f[5]])
                e("s_waitcnt lgkmcnt(6)")
                grp(g, p1_mfma(2, False), [[], f[6], [], f[7]])
            else:
                grp(g, p1_mfma(1, False), [R[3][0:3], R[3][3:6] + f[4], f[5], f[6] + f[7]])
            pending = True
        else:
            T = w2_tr(idx, p)
            grp(g, m3, [T[0:3], T[3:6], T[6:9], T[9:12]])
            e("s_waitcnt lgkmcnt(4)")
            g.es(T[12:16])
            g.es(flat(f))
            pending = False
        if p == NONCE_POS:
            e(nonce_load())
    g.c(f"---- {tag} P1 tail (tile-major, epilogue interleaved)")
    emit_nonce_check(g, tag)
    e(f"s_mov_b32 s{S_T0}, 114688")
    m2, m3 = p1_mfma(2, False), p1_mfma(3, False)

    def epi(tile):
        phi, rho = divmod(tile, 2)
        a = V_ACC + tile * 16
        r = []
        for ee in range(2):
            d = V_EP + 4 * (2 * tile + ee)
            for jj in range(4):
                r.append(f"v_cvt_pk_bf16_f32 v{d+jj}, v{a+8*ee+2*jj}, v{a+8*ee+2*jj+1}")
            for jj in range(4):
                r.append(f"v_pk_max_i16 v{d+jj}, v{d+jj}, 0")
            so = "0" if rho == 0 else f"s{S_T0}"
            r.append(f"buffer_store_dwordx4 v[{d}:{d+3}], v{V_HST}, s[{S_WS}:{S_WS+3}], {so} offen offset:{(2*phi+ee)*1024} sc1")
        return r
    e("s_waitcnt lgkmcnt(6)")
    e(m2[0])
    e("s_waitcnt lgkmcnt(0)")
    g.stamp("bar8")
    e(m3[0])
    e(m2[1])
    e(m3[1])
    e(m2[2])
    e("s_nop 7")
    e("s_nop 0")
    E0, E1, E2, E3 = epi(0), epi(1), epi(2), epi(3)
    g.es(E0[0:4])
    e(m3[2])
    g.es(E0[4:9])
    e(m2[3])
    g.es(E0[9:14])
    e(m3[3])
    g.es(E0[14:18])
    g.es(E1)
    g.es(E2)
    g.es(E3)
    g.stamp("Hst")


def emit_flag(g):
    g.e(f"s_atomic_swap_x2 s[{S_NON}:{S_NON+1}], s[{S_FA}:{S_FA+1}], 0")
    g.stamp("flag")


def gen(o):
    g = G(o)
    e = g.e
    D = o.depth
    NB = o.nbuf
    L = V_LANE
    T = V_T
    g.lab(KNAME)
    g.stamp("entry")
    e("s_load_dwordx8 s[4:11], s[0:1], 0")
    e("s_load_dwordx4 s[12:15], s[0:1], 32")
    e(f"s_memrealtime s[{S_PA}:{S_PA+1}]")
    e("s_cmp_ge_u32 s2, 256")
    e("s_cbranch_scc1 L_end")
    e(f"v_lshrrev_b32 v{T}, 6, v0")
    e(f"v_and_b32 v{L}, 63, v0")
    e(f"s_and_b32 s{S_XCD}, s2, 7")
    e(f"v_readfirstlane_b32 s{S_WAVE}, v{T}")
    e(f"s_lshr_b32 s{S_I}, s2, 3")
    if o.cpf:
        e(f"s_cmp_lt_u32 s{S_I}, {o.cpf_first}")
        e("s_cbranch_scc1 L_nocpf")
        e("s_getpc_b64 s[20:21]")
        g.lab("L_pc")
        e(f"v_lshlrev_b32 v{V_ACC}, 7, v0")
        e(f"v_mov_b32 v{V_ACC+3}, s21")
        e(f"v_add_co_u32 v{V_ACC+2}, vcc, s20, v{V_ACC}")
        e("s_nop 1")
        e(f"v_addc_co_u32 v{V_ACC+3}, vcc, 0, v{V_ACC+3}, vcc")
        e(f"v_cmp_gt_u32 vcc, L_code_end-L_pc, v{V_ACC}")
        e("s_and_saveexec_b64 s[22:23], vcc")
        e("s_cbranch_execz L_cpf_done")
        e(f"global_load_dword v{V_ACC+1}, v[{V_ACC+2}:{V_ACC+3}], off")
        g.lab("L_cpf_done")
        e("s_mov_b64 exec, s[22:23]")
        g.lab("L_nocpf")
    e(f"s_and_b32 s{S_Q}, s{S_I}, 3")
    e(f"s_lshr_b32 s{S_T1}, s{S_I}, 2")
    e(f"s_lshl_b32 s{S_T2}, s{S_Q}, 1")
    e(f"s_add_u32 s{S_T2}, s{S_T2}, s{S_T1}")
    if o.rot1 == 1:
        e(f"s_add_u32 s{S_T2}, s{S_Q}, s{S_T1}")
        e(f"s_lshl_b32 s{S_T2}, s{S_T2}, 1")
    elif o.rot1 == 3:
        e(f"s_add_u32 s{S_T2}, s{S_Q}, s{S_T1}")
        e(f"s_lshl_b32 s{S_T2}, s{S_T2}, 2")
    elif o.rot1 == 4:
        e(f"s_add_u32 s{S_T2}, s{S_Q}, s{S_T1}")
        e(f"s_lshl_b32 s{S_T2}, s{S_T2}, 1")
        e(f"s_bfe_u32 s{S_T3}, s{S_XCD}, 0x10001")
        e(f"s_add_u32 s{S_T2}, s{S_T2}, s{S_T3}")
    elif o.rot1 == 5:
        e(f"s_add_u32 s{S_T2}, s{S_Q}, s{S_T1}")
        e(f"s_lshl_b32 s{S_T2}, s{S_T2}, 2")
        e(f"s_lshr_b32 s{S_T3}, s{S_XCD}, 1")
        e(f"s_add_u32 s{S_T2}, s{S_T2}, s{S_T3}")
    elif o.rot1 == 6:
        e(f"s_mov_b32 s{S_T2}, 0")
    elif o.rot1 == 7:
        e(f"s_mov_b32 s{S_T2}, s{S_XCD}")
    elif o.rot1 == 8:
        e(f"s_lshl_b32 s{S_T2}, s{S_Q}, 2")
    elif o.rot1 == 9:
        e(f"s_lshl_b32 s{S_T2}, s{S_T1}, 2")
    elif o.rot1 == 2:
        e(f"s_add_u32 s{S_T2}, s{S_T2}, s{S_XCD}")
    e(f"s_and_b32 s{S_T3}, s{S_XCD}, 6")
    e(f"s_lshl_b32 s{S_T3}, s{S_T3}, 1")
    e(f"s_add_u32 s{S_U}, s{S_Q}, s{S_T3}")
    e(f"s_and_b32 s{S_T3}, s{S_XCD}, 1")
    e(f"s_mul_i32 s{S_T3}, s{S_T3}, 7")
    e(f"s_add_u32 s{S_SPIN}, s{S_T1}, s{S_T3}")
    e(f"s_lshl_b32 s{S_T0}, s{S_U}, 17")
    e(f"s_lshl_b32 s{S_T1}, s{S_SPIN}, 8")

    def kofs(t):
        e(f"s_add_u32 s{S_T3}, s{S_T2}, {t}")
        e(f"s_and_b32 s{S_T3}, s{S_T3}, 7")
        e(f"s_mul_i32 s{S_KW+t}, s{S_T3}, {64*3584}")
        e(f"s_lshl_b32 s{S_T3}, s{S_T3}, 7")
        e(f"s_add_u32 s{S_KX+t}, s{S_T3}, s{S_T0}")
        e(f"s_add_u32 s{S_KW+t}, s{S_KW+t}, s{S_T1}")
    kofs(0)
    kofs(1)
    e(f"s_lshl_b32 s{S_M0A}, s{S_WAVE}, 12")
    e(f"s_lshl_b32 s{S_M0W2}, s{S_WAVE}, 13")
    e(f"v_lshrrev_b32 v{T}, 4, v{L}")
    e(f"v_and_b32 v{T+1}, 15, v{L}")
    e(f"v_lshlrev_b32 v{T+2}, 2, v{T}")
    e(f"v_xor_b32 v{T+1}, v{T+1}, v{T+2}")
    e(f"v_lshlrev_b32 v{T+1}, 4, v{T+1}")
    e(f"s_lshl_b32 s{S_T3}, s{S_WAVE}, 4")
    e(f"v_add_u32 v{T+2}, s{S_T3}, v{T}")
    e(f"v_mul_u32_u24 v{T+2}, 3584, v{T+2}")
    e(f"v_add_u32 v{V_OW1}, v{T+1}, v{T+2}")
    for j in range(1, 4):
        e(f"v_add_u32 v{V_OW1+j}, {13312*j}, v{V_OW1}")
    e(f"v_and_b32 v{T+1}, 7, v{L}")
    e(f"v_xor_b32 v{T+2}, v{T+1}, v{T}")
    e(f"v_lshlrev_b32 v{T+2}, 4, v{T+2}")
    e(f"v_lshrrev_b32 v{T+3}, 3, v{L}")
    e(f"s_lshl_b32 s{S_T3}, s{S_WAVE}, 15")
    e(f"v_lshl_add_u32 v{T+4}, v{T+3}, 10, s{S_T3}")
    e(f"v_add_u32 v{V_OX}, v{T+4}, v{T+2}")
    e(f"v_xor_b32 v{T+2}, 64, v{T+2}")
    e(f"v_add_u32 v{T+2}, v{T+4}, v{T+2}")
    e(f"v_add_u32 v{V_OX+1}, 7168, v{T+2}")
    e(f"v_add_u32 v{V_OX+2}, {7168*2}, v{V_OX}")
    e(f"v_add_u32 v{V_OX+3}, {7168*3}, v{T+2}")
    e("s_waitcnt lgkmcnt(0)")
    g.stamp("karg")
    srd(g, S_W1, 6, 512 * 1792 * 2)
    srd(g, S_X, 4, 2048 * 512 * 2)
    e(f"s_cmp_ge_u32 s{S_I}, 28")
    e("s_cbranch_scc1 L_setup2")
    g.es(flat(dma_c(0, 0)))
    g.es(flat(dma_c(1, 1)[:3]))
    g.stamp("dma0")
    g.lab("L_setup2")
    srd(g, S_DBG, 12, 256)
    e(f"v_mov_b32 v{V_ZERO}, 0")
    e(f"s_or_b32 s{S_T3}, s2, s{S_WAVE}")
    e(f"s_cmp_lg_u32 s{S_T3}, 0")
    e("s_cbranch_scc1 L_nonce_done")
    e(f"s_or_b32 s{S_PA+1}, s{S_PA+1}, 0x80000000")
    e(f"s_atomic_swap_x2 s[{S_PA}:{S_PA+1}], s[12:13], 0")
    e("s_waitcnt lgkmcnt(0)")
    g.lab("L_nonce_done")
    for t in range(2, 8):
        kofs(t)
    srd(g, S_W2, 8, 512 * 1792 * 2)
    srd(g, S_OUT, 10, 2048 * 512 * 2)
    if o.hoff:
        e(f"s_add_u32 s{S_WS}, s14, {hex(o.hoff)}")
        e(f"s_addc_u32 s{S_WS+1}, s15, 0")
        e(f"s_mov_b32 s{S_WS+2}, 0x1000000")
        e(f"s_mov_b32 s{S_WS+3}, 0x20000")
    else:
        srd(g, S_WS, 14, 0x10000000)
    e(f"s_lshr_b32 s{S_T0}, s{S_WAVE}, 1")
    e(f"s_and_b32 s{S_T1}, s{S_WAVE}, 1")
    e(f"s_lshl_b32 s{S_T2}, s{S_U}, 1")
    e(f"s_add_u32 s{S_T2}, s{S_T2}, s{S_T0}")
    e(f"s_lshl_b32 s{S_T3}, s{S_SPIN}, 1")
    e(f"s_add_u32 s{S_T3}, s{S_T3}, s{S_T1}")
    e(f"s_mul_i32 s4, s{S_T3}, 37")
    e(f"s_lshr_b32 s4, s4, 8")
    e(f"s_mul_i32 s5, s4, 7")
    e(f"s_sub_u32 s5, s{S_T3}, s5")
    e(f"s_lshl_b32 s6, s{S_T2}, 2")
    e(f"s_add_u32 s4, s4, s6")
    e(f"s_lshl_b32 s4, s4, 7")
    e(f"s_lshl_b32 s5, s5, 3")
    e(f"s_add_u32 s4, s4, s5")
    e(f"s_add_u32 s4, s4, {hex(o.hoff + FLAGS_OFF)}")
    e(f"s_add_u32 s{S_FA}, s14, s4")
    e(f"s_addc_u32 s{S_FA+1}, s15, 0")
    e(f"s_mul_i32 s{S_T2}, s{S_T2}, {2*114688}")
    e(f"s_lshl_b32 s{S_T3}, s{S_T3}, 12")
    e(f"s_add_u32 s{S_T2}, s{S_T2}, s{S_T3}")
    e(f"v_lshl_add_u32 v{V_HST}, v{L}, 4, s{S_T2}")
    e(f"v_and_b32 v{T+2}, 31, v{L}")
    e(f"v_lshrrev_b32 v{T+4}, 5, v{L}")
    e(f"v_bfe_u32 v{T+5}, v{L}, 1, 3")
    e(f"v_xor_b32 v{T+5}, v{T+5}, v{T+4}")
    e(f"v_lshlrev_b32 v{T+5}, 4, v{T+5}")
    e(f"v_lshl_add_u32 v{T+5}, v{T+2}, 7, v{T+5}")
    e(f"s_lshl_b32 s{S_T2}, s{S_T0}, 13")
    e(f"v_add_u32 v{V_AX}, s{S_T2}, v{T+5}")
    for s in range(1, 4):
        e(f"v_xor_b32 v{V_AX+s}, {32*s}, v{V_AX}")
    for z in (1, 2):
        for s in range(4):
            e(f"v_add_u32 v{V_AX+4*z+s}, {65536*z}, v{V_AX+s}")
    e(f"v_xor_b32 v{T+5}, v{T+1}, v{T+4}")
    e(f"v_lshlrev_b32 v{T+5}, 4, v{T+5}")
    e(f"v_lshl_add_u32 v{T+5}, v{T+2}, 8, v{T+5}")
    e(f"v_add_u32 v{V_RW}, s{S_M0W2}, v{T+5}")
    for q in range(1, 4):
        e(f"v_xor_b32 v{V_RW+q}, {32*q}, v{V_RW}")
    e(f"v_lshlrev_b32 v{T+5}, 1, v{T+1}")
    e(f"v_xor_b32 v{T+5}, v{T+5}, v{T+3}")
    e(f"v_lshlrev_b32 v{T+5}, 4, v{T+5}")
    e(f"v_lshl_add_u32 v{T+5}, v{T+3}, 8, v{T+5}")
    e(f"s_lshl_b32 s{S_T2}, s{S_WAVE}, 11")
    e(f"v_add_u32 v{V_RR}, s{S_T2}, v{T+5}")
    e(f"v_xor_b32 v{V_RR+1}, 16, v{V_RR}")
    e(f"v_bfe_u32 v{T+2}, v{L}, 2, 2")
    e(f"v_and_b32 v{T+5}, 3, v{L}")
    e(f"v_lshlrev_b32 v{T+5}, 3, v{T+5}")
    e(f"v_and_b32 v{T+6}, 1, v{T}")
    e(f"v_lshl_add_u32 v{T+5}, v{T+6}, 5, v{T+5}")
    e(f"v_lshl_add_u32 v{T+6}, v{T+4}, 3, v{T+2}")
    e(f"v_lshl_add_u32 v{V_AW1}, v{T+6}, 8, v{T+5}")
    e(f"s_lshl_b32 s{S_T2}, s{S_T1}, 1")
    e(f"v_xor_b32 v{T+6}, s{S_T2}, v{T+2}")
    e(f"v_lshl_add_u32 v{V_AW1}, v{T+6}, 6, v{V_AW1}")
    e(f"v_xor_b32 v{V_AW1+1}, 64, v{V_AW1}")
    for z in (1, 2):
        for p in range(2):
            e(f"v_add_u32 v{V_AW1+2*z+p}, {65536*z}, v{V_AW1+p}")
    e(f"v_lshl_add_u32 v{T+6}, v{T+4}, 2, v{T+2}")
    e(f"v_lshl_add_u32 v{T+5}, v{T+6}, 7, v{T+5}")
    e(f"v_lshrrev_b32 v{T+6}, 1, v{T+2}")
    e(f"v_lshl_add_u32 v{T+5}, v{T+6}, 6, v{T+5}")
    e(f"v_add_u32 v{V_AW2}, s{S_M0W2}, v{T+5}")
    e(f"v_xor_b32 v{V_AW2+1}, 64, v{V_AW2}")
    for z in (1, 2):
        for p in range(2):
            e(f"v_add_u32 v{V_AW2+2*z+p}, {65536*z}, v{V_AW2+p}")
    e(f"s_and_b32 s4, s{S_Q}, 1")
    e(f"s_xor_b32 s4, s4, 1")
    e(f"s_lshl_b32 s4, s4, 1")
    e(f"s_lshr_b32 s5, s{S_Q}, 1")
    e(f"s_add_u32 s4, s4, s5")
    e(f"s_lshl_b32 s5, s{S_XCD}, 2")
    e(f"s_add_u32 s{S_T0}, s4, s5")
    e(f"s_lshr_b32 s4, s{S_I}, 2")
    e(f"s_lshl_b32 s5, s{S_Q}, 1")
    e(f"s_add_u32 s4, s4, s5")
    e(f"s_and_b32 s5, s{S_XCD}, 1")
    e(f"s_add_u32 s4, s4, s5")
    e(f"s_and_b32 s{S_T1}, s4, 7")
    e(f"s_lshr_b32 s4, s{S_T1}, 1")
    e(f"s_lshr_b32 s5, s{S_XCD}, 1")
    e(f"s_add_u32 s5, s5, s4")
    e(f"s_add_u32 s4, s4, s{S_Q}")
    e(f"s_and_b32 s4, s4, 3")
    e(f"s_bitcmp1_b32 s{S_I}, 2")
    e(f"s_cselect_b32 s{S_T2}, s5, s4")
    e(f"s_mov_b32 s7, s{S_XCD}")
    e(f"s_and_b32 s{S_XCD}, s{S_T1}, 1")
    e(f"s_mul_i32 s{S_T3}, s{S_WAVE}, 7")
    for b in range(7):
        if b < 5:
            e(f"s_add_u32 s5, s{S_T2}, {b}")
            e(f"s_mul_i32 s6, s5, 52")
            e(f"s_lshr_b32 s6, s6, 8")
            e(f"s_mul_i32 s6, s6, 5")
            e(f"s_sub_u32 s5, s5, s6")
            e(f"s_add_u32 s5, s5, s{S_T3}")
            e(f"s_add_u32 s5, s5, 2")
        else:
            e(f"s_add_u32 s5, s{S_T3}, {b-5}")
        e(f"s_lshl_b32 s{S_UW+b}, s5, 16")
        e(f"s_lshl_b32 s{S_U+b}, s5, 12")
    e(f"v_and_b32 v{T+2}, 1, v{T}")
    e(f"v_lshlrev_b32 v{T+2}, 2, v{T+2}")
    e(f"v_xor_b32 v{T+2}, v{T+1}, v{T+2}")
    e(f"v_lshlrev_b32 v{T+2}, 4, v{T+2}")
    e(f"v_lshl_add_u32 v{T+2}, v{T+3}, 10, v{T+2}")
    e(f"s_lshl_b32 s{S_T2}, s{S_T1}, 7")
    e(f"v_add_u32 v{V_OW2}, s{S_T2}, v{T+2}")
    for j in range(1, 4):
        e(f"v_add_u32 v{V_OW2+j}, {7168*j}, v{V_OW2}")
    e(f"v_lshlrev_b32 v{T+2}, 4, v{T+1}")
    e(f"v_lshl_add_u32 v{T+2}, v{T+3}, 10, v{T+2}")
    e(f"s_lshl_b32 s{S_T3}, s{S_T0}, 16")
    e(f"s_add_u32 s{S_T2}, s{S_T2}, s{S_T3}")
    e(f"s_add_u32 s{S_T2}, s{S_T2}, s{S_M0W2}")
    e(f"s_lshl_b32 s{S_T3}, s{S_XCD}, 15")
    e(f"s_add_u32 s{S_T3}, s{S_T3}, s{S_T2}")
    e(f"v_add_u32 v{V_OUTA}, s{S_T3}, v{T+2}")
    e(f"v_xor_b32 v{V_OUTB}, 0x8000, v{V_OUTA}")
    e(f"s_lshl_b32 s{S_T2}, s{S_T0}, 1")
    e(f"s_add_u32 s{S_T3}, s{S_T2}, s{S_XCD}")
    e(f"s_mul_i32 s{S_T3}, s{S_T3}, 114688")
    e(f"v_lshl_add_u32 v{V_HF}, v{L}, 4, s{S_T3}")
    e(f"s_xor_b32 s{S_T3}, s{S_XCD}, 1")
    e(f"s_add_u32 s{S_T3}, s{S_T3}, s{S_T2}")
    e(f"s_mul_i32 s{S_T3}, s{S_T3}, 114688")
    e(f"v_lshl_add_u32 v{V_HS}, v{L}, 4, s{S_T3}")
    e(f"s_lshl_b32 s{S_T2}, s{S_T0}, 2")
    e(f"s_add_u32 s{S_T2}, s{S_T2}, s{S_WAVE}")
    e(f"s_lshl_b32 s{S_T2}, s{S_T2}, 7")
    e(f"s_add_u32 s{S_T2}, s{S_T2}, {hex(o.hoff + FLAGS_OFF)}")
    e(f"s_add_u32 s{S_PA}, s14, s{S_T2}")
    e(f"s_addc_u32 s{S_PA+1}, s15, 0")
    e(f"s_load_dword s10, s[{S_PA}:{S_PA+1}], 0 glc")
    e(f"s_cmp_ge_u32 s{S_I}, 28")
    e("s_cbranch_scc1 L_idle")
    g.stamp("setup")
    rest = dma_c(1, 1)[3:]
    rest[0] = [f"s_add_u32 m0, s{S_M0A}, {slot_base(1)}", "s_nop 0"] + rest[0]
    g.es(flat(rest))
    def hload(i):
        half, p = divmod(i, 28)
        b, kp = divmod(p, 4)
        d = V_HR + 4 * (i % NB)
        return f"buffer_load_dwordx4 v[{d}:{d+3}], v{V_HF+half}, s[{S_WS}:{S_WS+3}], s{S_U+b} offen offset:{kp*1024} sc1"

    def p2_mfma(i):
        half, p = divmod(i, 28)
        b, kp = divmod(p, 4)
        h = V_HR + 4 * (i % NB)
        r = []
        for nu in range(2):
            a = V_ACC + (half * 2 + nu) * 16
            w = (b * 8 + kp * 2 + nu) * 4
            c = "0" if p == 0 else f"v[{a}:{a+15}]"
            r.append(f"v_mfma_f32_32x32x16_bf16 v[{a}:{a+15}], a[{w}:{w+3}], v[{h}:{h+3}], {c}")
        return r

    def producer(tag, stream):
        emit_p1(g, tag, stream)
        e("s_barrier")
        last = stream.index(('c', 7))
        it = [(stream[p][1], p) for p in range(last + 1, 15)]
        g.es(flat(dma_w(*it[2])))
        e("s_waitcnt vmcnt(24) lgkmcnt(4)")
        emit_tr(g, *it[0])
        e("s_waitcnt vmcnt(16) lgkmcnt(4)")
        emit_tr(g, *it[1])
        e("s_waitcnt vmcnt(8) lgkmcnt(0)")
        emit_flag(g)
        n = len(it)
        g.es(flat(dma_w(*it[3])))
        for k in range(2, n - 2):
            g.es(flat(dma_w(*it[k + 2])))
            e("s_waitcnt vmcnt(16) lgkmcnt(4)")
            g.stamp(f"wl{k+7-n}")
            emit_tr(g, *it[k])
        g.stamp("poll1")
        emit_poll(g, tag)
        g.stamp("ready")
        for i in range(D):
            e(hload(i))
        e(f"s_waitcnt vmcnt({D+8})")
        emit_tr(g, *it[n - 2])
        e(f"s_waitcnt vmcnt({D}) lgkmcnt(4)")
        g.stamp("wl6")
        emit_tr(g, *it[n - 1])

    C = [('c', t) for t in range(8)]
    if o.allu:
        producer("U", C[:o.ins] + [('w', 0)] + C[o.ins:] + [('w', b) for b in (5, 6, 1, 2, 3, 4)])
    else:
        if o.ins:
            e(f"s_bitcmp0_b32 s{S_I}, 2")
            e("s_cbranch_scc1 L_unled")
        producer("E", C + [('w', b) for b in (5, 6, 0, 1, 2, 3, 4)])
    g.lab("L_p2")

    def red_write(half):
        r = []
        for nu in range(2):
            for q in range(4):
                a = V_ACC + (half * 2 + nu) * 16 + 4 * q
                r.append(f"ds_write_b128 v{V_RW+q}, v[{a}:{a+3}] offset:{128*nu + 32768*half}")
        return r

    def red_read(half):
        r = []
        for w in range(4):
            for ee in range(2):
                d = V_RD + (w * 2 + ee) * 4
                r.append(f"ds_read_b128 v[{d}:{d+3}], v{V_RR+ee} offset:{8192*w + 32768*half}")
        return r

    def red_sum(dst):
        r = []
        for j in range(8):
            r.append(f"v_add_f32 v{V_RD+j}, v{V_RD+j}, v{V_RD+8+j}")
        for j in range(8):
            r.append(f"v_add_f32 v{V_RD+16+j}, v{V_RD+16+j}, v{V_RD+24+j}")
        for j in range(8):
            r.append(f"v_add_f32 v{V_RD+j}, v{V_RD+j}, v{V_RD+16+j}")
        for j in range(4):
            r.append(f"v_cvt_pk_bf16_f32 v{dst+j}, v{V_RD+2*j}, v{V_RD+2*j+1}")
        return r

    extra = {}
    w0 = red_write(0)
    for n in range(4):
        extra.setdefault(30 + n, []).extend(w0[2 * n:2 * n + 2])
    extra.setdefault(36, []).extend(["s_waitcnt lgkmcnt(0)", "s_barrier"] + red_read(0))
    s0 = red_sum(V_R0)
    extra.setdefault(40, []).append("s_waitcnt lgkmcnt(0)")
    for n in range(7):
        extra.setdefault(40 + n, []).extend(s0[4 * n:4 * n + 4])
    for i in range(56):
        issued = min(56, i + D)
        wait = f"s_waitcnt vmcnt({issued - i - 1})"
        if i == 3:
            wait += " lgkmcnt(0)"
        e(wait)
        m = p2_mfma(i)
        e(m[0])
        if i + D < 56:
            e(hload(i + D))
        e(m[1])
        g.es(extra.get(i, []))
        g.stamp(f"h{i}")
    g.stamp("loopend")
    e("s_nop 7")
    e("s_nop 2")
    g.es(red_write(1))
    e("s_waitcnt lgkmcnt(0)")
    e("s_barrier")
    g.es(red_read(1))
    e(f"buffer_store_dwordx4 v[{V_R0}:{V_R0+3}], v{V_OUTA}, s[{S_OUT}:{S_OUT+3}], 0 offen {o.outflag}")
    e("s_waitcnt lgkmcnt(0)")
    g.es(red_sum(V_EP))
    e(f"buffer_store_dwordx4 v[{V_EP}:{V_EP+3}], v{V_OUTB}, s[{S_OUT}:{S_OUT+3}], 0 offen {o.outflag}")
    if o.stamps:
        e("s_waitcnt vmcnt(0)")
        g.stamp("final")
        e("s_waitcnt lgkmcnt(0)")
        if o.probe:
            pa, pb, pwg = [int(x) for x in o.probe.split(",")]
            if pwg >= 0:
                e(f"s_cmp_lg_u32 s2, {pwg}")
                e("s_cbranch_scc1 L_end")
            if pwg == -2:
                e(f"s_cmp_ge_u32 s{S_I}, 28")
                e("s_cbranch_scc1 L_end")
            e(f"s_sub_u32 s{S_T0}, s{S_ST+2*pb}, s{S_NON if pa == 9 else S_ST+2*pa}")
            e(f"s_min_u32 s{S_T0}, s{S_T0}, 5000")
            e(f"s_mul_i32 s{S_T0}, s{S_T0}, 10")
            e(f"s_add_u32 s{S_T0}, s{S_T0}, s{S_ST+16}")
            g.lab("L_probe")
            e(f"s_memrealtime s[4:5]")
            e("s_waitcnt lgkmcnt(0)")
            e(f"s_sub_u32 s{S_T1}, s4, s{S_T0}")
            e(f"s_cmp_lt_i32 s{S_T1}, 0")
            e("s_cbranch_scc1 L_probe")
            e("s_endpgm")
        for n in range(9):
            e(f"v_mov_b32 v{96+n}, s{S_ST+2*n}")
        e(f"s_lshl_b32 s{S_T0}, s2, 8")
        e(f"s_lshl_b32 s{S_T1}, s{S_WAVE}, 6")
        e(f"s_add_u32 s{S_T0}, s{S_T0}, s{S_T1}")
        e(f"s_add_u32 s{S_T0}, s{S_T0}, {hex(STAMP_OFF)}")
        e("v_mov_b32 v108, 0")
        e("s_mov_b64 exec, 1")
        for n in range(3):
            e(f"buffer_store_dwordx4 v[{96+4*n}:{99+4*n}], v108, s[{S_WS}:{S_WS+3}], s{S_T0} offen offset:{16*n} sc1")
    g.lab("L_end")
    e("s_endpgm")

    g.lab("L_idle")
    for _ in range(o.idlesleep):
        e("s_sleep 8")
    for j in range(4):
        e(f"v_xor_b32 v{V_OX+j}, 128, v{V_OW2+j}")
    e(f"s_mul_i32 s4, s{S_WAVE}, 7")
    e(f"s_add_u32 s4, s4, 6")
    e(f"s_lshl_b32 s4, s4, 16")
    seq = []
    for tok in o.idleseq.split(","):
        seq.append((tok[0], int(tok[1:])))
    def idle_dma(k):
        kind, b = seq[k]
        if kind == 'o':
            return flat(dma_w(b, k))
        if b == 7:
            return [x.replace(f"s{S_UW+0},", "s4,").replace(f"s{S_UW+0} ", "s4 ") for x in flat(dma_w(0, k, V_OX))]
        return flat(dma_w(b, k, V_OX))
    e(nonce_load())
    g.es(idle_dma(0))
    g.es(idle_dma(1))
    for k in range(len(seq)):
        if k + 2 < len(seq):
            if k + 2 >= 5:
                e("s_waitcnt lgkmcnt(0)")
            g.es(idle_dma(k + 2))
        if seq[k][0] == 'o':
            e(f"s_waitcnt vmcnt({8*min(2, len(seq)-1-k)}) lgkmcnt(4)")
            emit_tr(g, seq[k][1], k)
    e("s_waitcnt vmcnt(0)")
    emit_nonce_check(g, "i")
    emit_poll(g, "I")
    g.stamp("ready")
    for i in range(D):
        e(hload(i))
    e("s_branch L_p2")

    if o.ins and not o.allu:
        g.lab("L_unled")
        producer("U", C[:o.ins] + [('w', 0)] + C[o.ins:] + [('w', b) for b in (5, 6, 1, 2, 3, 4)])
        e("s_branch L_p2")

    g.lab("L_code_end")
    body = "\n".join(g.L)
    txt = HEADER + f""".amdgcn_target "amdgcn-amd-amdhsa--gfx950"
.text
.globl {KNAME}
.p2align 8
.type {KNAME},@function
{body}
.section .rodata,"a"
.p2align 6
.amdhsa_kernel {KNAME}
  .amdhsa_next_free_vgpr 512
  .amdhsa_next_free_sgpr 102
  .amdhsa_accum_offset 256
  .amdhsa_group_segment_fixed_size 0
  .amdhsa_kernarg_size 48
  .amdhsa_user_sgpr_count 2
  .amdhsa_user_sgpr_kernarg_segment_ptr 1
  .amdhsa_system_sgpr_workgroup_id_x 1
.end_amdhsa_kernel
"""
    return txt


def parse(argv):
    p = argparse.ArgumentParser()
    p.add_argument("-o", default=None)
    p.add_argument("--co", default=None)
    p.add_argument("--stamps", default="")
    p.add_argument("--rt", type=int, default=0)
    p.add_argument("--depth", type=int, default=12)
    p.add_argument("--nbuf", type=int, default=16)
    p.add_argument("--stagger", type=int, default=1)
    p.add_argument("--ins", type=int, default=4)
    p.add_argument("--idleseq", default="o0,o1,p5,o5,p6,o6,o2,p7,o3,o4")
    p.add_argument("--kpre", type=int, default=2)
    p.add_argument("--perms", default="0145623,0123456,2365401,2301456")
    p.add_argument("--cmask", type=int, default=6)
    p.add_argument("--outflag", default="sc1")
    p.add_argument("--probe", default="")
    p.add_argument("--npre", type=int, default=2)
    p.add_argument("--allu", type=int, default=0)
    p.add_argument("--cpf", type=int, default=1)
    p.add_argument("--cpf_first", type=int, default=31)
    p.add_argument("--hoff", type=lambda v: int(v, 0), default=0)
    p.add_argument("--rot5", default="1,1,1")
    p.add_argument("--idlep", type=int, default=0)
    p.add_argument("--idlea", type=int, default=0)
    p.add_argument("--idleb", type=int, default=0)
    p.add_argument("--partner", type=int, default=1)
    p.add_argument("--idlesleep", type=int, default=0)
    p.add_argument("--rot1", type=int, default=1)
    return p.parse_args(argv)


if __name__ == "__main__":
    o = parse(sys.argv[1:])
    txt = gen(o)
    if o.o:
        open(o.o, "w").write(txt)
    if o.co:
        open(o.co + ".s", "w").write(txt + META)
        r = subprocess.run(["clang", "-x", "assembler", "-target", "amdgcn-amd-amdhsa",
                            "-mcpu=gfx950", o.co + ".s", "-o", o.co + ".co"], capture_output=True, text=True)
        if r.returncode:
            print(r.stderr[:4000])
            sys.exit(1)
```

```python
import sys, subprocess, argparse
from gen import HEADER, KNAME, META

FLAGS_OFF = 0x800000
STAMP_OFF = 0x8000000

S_X, S_W1, S_W2, S_OUT, S_WS = 16, 20, 24, 28, 36
S_DBG = 32
S_WAVE = 40
S_XCD = 41
S_I = 42
S_T0, S_T1, S_T2, S_T3 = 43, 44, 45, 46
S_M0A = 47
S_U = 48
S_M0W2 = 55
S_UW = 56
S_SPIN = 63
S_KX = 64
S_KW = 72
S_POLL = 64
S_NON = 80
S_PA = 82
S_ST = 84
S_Q = 3
S_FA = 8

V_LANE = 1
V_OX = 2
V_OW1 = 6
V_OW2 = 10
V_HF = 14
V_HS = 15
V_NON = 16
V_FD = 28
V_FLAGA = 19
V_ZERO = 18
V_HST = 22
V_OUTA = 23
V_OUTB = 24
V_T = 25
V_ACC = 32
V_FR = 96
V_EP = 160
V_AX = 192
V_AW1 = 204
V_AW2 = 210
V_RW = 216
V_RR = 220
V_RD = 224
V_R0 = 26
V_HR = 96
NONCE_POS = 2


class G:
    def __init__(self, o):
        self.o = o
        self.L = []

    def e(self, s):
        self.L.append("    " + s)

    def es(self, l):
        for x in l:
            self.e(x)

    def lab(self, s):
        self.L.append(s + ":")

    def c(self, s):
        self.L.append("    ; " + s)

    def stamp(self, name):
        if not self.o.stamps:
            return
        names = self.o.stamps.split(",")
        if name == "final":
            idx = 8
        elif name in names[:8]:
            idx = names.index(name)
        else:
            return
        r = S_ST + 2 * idx
        self.e(f"s_memrealtime s[{r}:{r+1}]" if self.o.rt else f"s_memtime s[{r}:{r+1}]")


def srd(g, d, lo, nbytes):
    g.e(f"s_mov_b32 s{d}, s{lo}")
    g.e(f"s_mov_b32 s{d+1}, s{lo+1}")
    g.e(f"s_mov_b32 s{d+2}, {hex(nbytes)}")
    g.e(f"s_mov_b32 s{d+3}, 0x20000")


def slot_base(pos):
    return (pos % 5) * 32768


def zone(pos):
    s = pos % 5
    return s // 2, (s % 2) * 32768


def dma_c(t, pos):
    sb = slot_base(pos)
    out = []
    for part, (vo, sr, so, add) in enumerate(((V_OW1, S_W1, S_KW + t, 0), (V_OX, S_X, S_KX + t, 16384))):
        for j in range(4):
            ins = f"buffer_load_dwordx4 v{vo+j}, s[{sr}:{sr+3}], s{so} offen offset:{1024*j} lds"
            if j == 0:
                out.append([f"s_add_u32 m0, s{S_M0A}, {sb+add}", "s_nop 0", ins])
            else:
                out.append([ins])
    return out


def dma_w(b, pos, vo=None):
    vo = V_OW2 if vo is None else vo
    sb = slot_base(pos)
    out = []
    for half in range(2):
        for j in range(4):
            so = f"s{S_UW+b}" if half == 0 else f"s{S_T3}"
            ins = f"buffer_load_dwordx4 v{vo+j}, s[{S_W2}:{S_W2+3}], {so} offen offset:{1024*j} lds"
            if j == 0:
                pre = [f"s_add_u32 m0, s{S_M0W2}, {sb + 4096*half}"]
                pre.append(f"s_add_u32 s{S_T3}, s{S_UW+b}, 32768" if half == 1 else "s_nop 0")
                out.append(pre + [ins])
            else:
                out.append([ins])
    return out


def flat(groups):
    return [x for gr in groups for x in gr]


def fr(s, k):
    return V_FR + 16 * s + 4 * k


def p1_reads(pos, s):
    z, add = zone(pos)
    r = []
    for phi in range(2):
        for e in range(2):
            d = fr(s, phi) + 2 * e
            r.append(f"ds_read_b64_tr_b16 v[{d}:{d+1}], v{V_AW1+2*z+phi} offset:{add + (16*s+4*e)*256}")
    for rho in range(2):
        d = fr(s, 2 + rho)
        r.append(f"ds_read_b128 v[{d}:{d+3}], v{V_AX+4*z+s} offset:{add + 16384 + rho*4096}")
    return [r[0], r[1], r[4], r[5], r[2], r[3]]


def p1_mfma(s, first):
    r = []
    for phi in range(2):
        for rho in range(2):
            a = V_ACC + (phi * 2 + rho) * 16
            A = fr(s, phi)
            B = fr(s, 2 + rho)
            c = "0" if first else f"v[{a}:{a+15}]"
            r.append(f"v_mfma_f32_32x32x16_bf16 v[{a}:{a+15}], v[{A}:{A+3}], v[{B}:{B+3}], {c}")
    return r


def w2_tr(b, pos):
    z, add = zone(pos)
    r = []
    for kp in range(4):
        for nu in range(2):
            for e in range(2):
                d = (b * 8 + kp * 2 + nu) * 4 + 2 * e
                r.append(f"ds_read_b64_tr_b16 a[{d}:{d+1}], v{V_AW2+2*z+nu} offset:{add + (16*kp+8*e)*128}")
    return r


def emit_tr(g, b, pos):
    for i, x in enumerate(w2_tr(b, pos)):
        if i == 8:
            g.e("s_waitcnt lgkmcnt(4)")
        g.e(x)


def grp(g, mf, gaps):
    for m, gp in zip(mf, gaps):
        if m:
            g.e(m)
        g.es(gp)


def emit_poll(g, tag):
    e = g.e
    e(f"s_mov_b32 s{S_SPIN}, 0x40000")
    g.lab(f"L_poll_{tag}")
    e(f"s_load_dwordx16 s[{S_POLL}:{S_POLL+15}], s[{S_PA}:{S_PA+1}], 0 glc")
    e(f"s_sub_u32 s{S_SPIN}, s{S_SPIN}, 1")
    e(f"s_cbranch_scc1 L_ready_{tag}")
    e("s_waitcnt lgkmcnt(0)")
    for k in range(7):
        e(f"s_cmp_lg_u64 s[{S_POLL+2*k}:{S_POLL+2*k+1}], s[{S_NON}:{S_NON+1}]")
        e(f"s_cbranch_scc1 L_poll_{tag}")
    g.lab(f"L_ready_{tag}")


def nonce_load():
    return f"buffer_load_dwordx2 v[{V_NON}:{V_NON+1}], v{V_ZERO}, s[{S_DBG}:{S_DBG+3}], 0 offen sc1"


def emit_nonce_check(g, tag):
    e = g.e
    e(f"v_readfirstlane_b32 s{S_NON+1}, v{V_NON+1}")
    e(f"s_mov_b32 s{S_SPIN}, 0x40000")
    g.lab(f"L_non_{tag}")
    e(f"s_cmp_lg_u32 s{S_NON+1}, 0")
    e(f"s_cbranch_scc1 L_nonok_{tag}")
    e(nonce_load())
    e("s_waitcnt vmcnt(0)")
    e(f"v_readfirstlane_b32 s{S_NON+1}, v{V_NON+1}")
    e(f"s_sub_u32 s{S_SPIN}, s{S_SPIN}, 1")
    e(f"s_cbranch_scc0 L_non_{tag}")
    g.lab(f"L_nonok_{tag}")
    e(f"v_readfirstlane_b32 s{S_NON}, v{V_NON}")


def emit_p1(g, tag, stream):
    e = g.e
    o = g.o
    last = stream.index(('c', 7))
    pending = False
    for p in range(last + 1):
        kind, idx = stream[p]
        g.c(f"---- {tag} pos {p}: {kind}{idx}")
        e(f"s_waitcnt vmcnt({9 if p == NONCE_POS + 1 else 8}) lgkmcnt(0)")
        e("s_barrier")
        g.stamp(f"bar{kind}{idx}")
        nk, ni = stream[p + 2]
        f = dma_c(ni, p + 2) if nk == 'c' else dma_w(ni, p + 2)
        m3 = p1_mfma(3, False) if pending else [None] * 4
        if kind == 'c':
            R = [p1_reads(p, k) for k in range(4)]
            grp(g, m3, [R[0][0:3], R[0][3:6], R[1][0:3], R[1][3:6] + f[0]])
            e("s_waitcnt lgkmcnt(6)")
            grp(g, p1_mfma(0, idx == 0), [R[2][0:3], R[2][3:6] + f[1], f[2], f[3]])
            e("s_waitcnt lgkmcnt(6)")
            if idx < 7:
                grp(g, p1_mfma(1, False), [R[3][0:3], R[3][3:6] + f[4], [], f[5]])
                e("s_waitcnt lgkmcnt(6)")
                grp(g, p1_mfma(2, False), [[], f[6], [], f[7]])
            else:
                grp(g, p1_mfma(1, False), [R[3][0:3], R[3][3:6] + f[4], f[5], f[6] + f[7]])
            pending = True
        else:
            T = w2_tr(idx, p)
            grp(g, m3, [T[0:3], T[3:6], T[6:9], T[9:12]])
            e("s_waitcnt lgkmcnt(4)")
            g.es(T[12:16])
            g.es(flat(f))
            pending = False
        if p == NONCE_POS:
            e(nonce_load())
    g.c(f"---- {tag} P1 tail (tile-major, epilogue interleaved)")
    emit_nonce_check(g, tag)
    e(f"s_mov_b32 s{S_T0}, 114688")
    m2, m3 = p1_mfma(2, False), p1_mfma(3, False)

    def epi(tile):
        phi, rho = divmod(tile, 2)
        a = V_ACC + tile * 16
        r = []
        for ee in range(2):
            d = V_EP + 4 * (2 * tile + ee)
            for jj in range(4):
                r.append(f"v_cvt_pk_bf16_f32 v{d+jj}, v{a+8*ee+2*jj}, v{a+8*ee+2*jj+1}")
            for jj in range(4):
                r.append(f"v_pk_max_i16 v{d+jj}, v{d+jj}, 0")
            so = "0" if rho == 0 else f"s{S_T0}"
            r.append(f"buffer_store_dwordx4 v[{d}:{d+3}], v{V_HST}, s[{S_WS}:{S_WS+3}], {so} offen offset:{(2*phi+ee)*1024} sc1")
        return r
    e("s_waitcnt lgkmcnt(6)")
    e(m2[0])
    e("s_waitcnt lgkmcnt(0)")
    g.stamp("bar8")
    e(m3[0])
    e(m2[1])
    e(m3[1])
    e(m2[2])
    e("s_nop 7")
    e("s_nop 0")
    E0, E1, E2, E3 = epi(0), epi(1), epi(2), epi(3)
    g.es(E0[0:4])
    e(m3[2])
    g.es(E0[4:9])
    e(m2[3])
    g.es(E0[9:14])
    e(m3[3])
    g.es(E0[14:18])
    g.es(E1)
    g.es(E2)
    g.es(E3)
    g.stamp("Hst")


def emit_flag(g):
    g.e(f"s_atomic_swap_x2 s[{S_NON}:{S_NON+1}], s[{S_FA}:{S_FA+1}], 0")
    g.stamp("flag")


def gen(o):
    g = G(o)
    e = g.e
    D = o.depth
    NB = o.nbuf
    L = V_LANE
    T = V_T
    g.lab(KNAME)
    g.stamp("entry")
    e("s_load_dwordx8 s[4:11], s[0:1], 0")
    e("s_load_dwordx4 s[12:15], s[0:1], 32")
    e(f"s_memrealtime s[{S_PA}:{S_PA+1}]")
    e("s_cmp_ge_u32 s2, 256")
    e("s_cbranch_scc1 L_end")
    e(f"v_lshrrev_b32 v{T}, 6, v0")
    e(f"v_and_b32 v{L}, 63, v0")
    e(f"s_and_b32 s{S_XCD}, s2, 7")
    e(f"v_readfirstlane_b32 s{S_WAVE}, v{T}")
    e(f"s_lshr_b32 s{S_I}, s2, 3")
    if o.cpf:
        e(f"s_cmp_lt_u32 s{S_I}, {o.cpf_first}")
        e("s_cbranch_scc1 L_nocpf")
        e("s_getpc_b64 s[20:21]")
        g.lab("L_pc")
        e(f"v_lshlrev_b32 v{V_ACC}, 7, v0")
        e(f"v_mov_b32 v{V_ACC+3}, s21")
        e(f"v_add_co_u32 v{V_ACC+2}, vcc, s20, v{V_ACC}")
        e("s_nop 1")
        e(f"v_addc_co_u32 v{V_ACC+3}, vcc, 0, v{V_ACC+3}, vcc")
        e(f"v_cmp_gt_u32 vcc, L_code_end-L_pc, v{V_ACC}")
        e("s_and_saveexec_b64 s[22:23], vcc")
        e("s_cbranch_execz L_cpf_done")
        e(f"global_load_dword v{V_ACC+1}, v[{V_ACC+2}:{V_ACC+3}], off")
        g.lab("L_cpf_done")
        e("s_mov_b64 exec, s[22:23]")
        g.lab("L_nocpf")
    e(f"s_and_b32 s{S_Q}, s{S_I}, 3")
    e(f"s_lshr_b32 s{S_T1}, s{S_I}, 2")
    e(f"s_lshl_b32 s{S_T2}, s{S_Q}, 1")
    e(f"s_add_u32 s{S_T2}, s{S_T2}, s{S_T1}")
    if o.rot1 == 1:
        e(f"s_add_u32 s{S_T2}, s{S_Q}, s{S_T1}")
        e(f"s_lshl_b32 s{S_T2}, s{S_T2}, 1")
    elif o.rot1 == 3:
        e(f"s_add_u32 s{S_T2}, s{S_Q}, s{S_T1}")
        e(f"s_lshl_b32 s{S_T2}, s{S_T2}, 2")
    elif o.rot1 == 4:
        e(f"s_add_u32 s{S_T2}, s{S_Q}, s{S_T1}")
        e(f"s_lshl_b32 s{S_T2}, s{S_T2}, 1")
        e(f"s_bfe_u32 s{S_T3}, s{S_XCD}, 0x10001")
        e(f"s_add_u32 s{S_T2}, s{S_T2}, s{S_T3}")
    elif o.rot1 == 5:
        e(f"s_add_u32 s{S_T2}, s{S_Q}, s{S_T1}")
        e(f"s_lshl_b32 s{S_T2}, s{S_T2}, 2")
        e(f"s_lshr_b32 s{S_T3}, s{S_XCD}, 1")
        e(f"s_add_u32 s{S_T2}, s{S_T2}, s{S_T3}")
    elif o.rot1 == 6:
        e(f"s_mov_b32 s{S_T2}, 0")
    elif o.rot1 == 7:
        e(f"s_mov_b32 s{S_T2}, s{S_XCD}")
    elif o.rot1 == 8:
        e(f"s_lshl_b32 s{S_T2}, s{S_Q}, 2")
    elif o.rot1 == 9:
        e(f"s_lshl_b32 s{S_T2}, s{S_T1}, 2")
    elif o.rot1 == 2:
        e(f"s_add_u32 s{S_T2}, s{S_T2}, s{S_XCD}")
    e(f"s_and_b32 s{S_T3}, s{S_XCD}, 6")
    e(f"s_lshl_b32 s{S_T3}, s{S_T3}, 1")
    e(f"s_add_u32 s{S_U}, s{S_Q}, s{S_T3}")
    e(f"s_and_b32 s{S_T3}, s{S_XCD}, 1")
    e(f"s_mul_i32 s{S_T3}, s{S_T3}, 7")
    e(f"s_add_u32 s{S_SPIN}, s{S_T1}, s{S_T3}")
    e(f"s_lshl_b32 s{S_T0}, s{S_U}, 17")
    e(f"s_lshl_b32 s{S_T1}, s{S_SPIN}, 8")

    def kofs(t):
        e(f"s_add_u32 s{S_T3}, s{S_T2}, {t}")
        e(f"s_and_b32 s{S_T3}, s{S_T3}, 7")
        e(f"s_mul_i32 s{S_KW+t}, s{S_T3}, {64*3584}")
        e(f"s_lshl_b32 s{S_T3}, s{S_T3}, 7")
        e(f"s_add_u32 s{S_KX+t}, s{S_T3}, s{S_T0}")
        e(f"s_add_u32 s{S_KW+t}, s{S_KW+t}, s{S_T1}")
    kofs(0)
    kofs(1)
    e(f"s_lshl_b32 s{S_M0A}, s{S_WAVE}, 12")
    e(f"s_lshl_b32 s{S_M0W2}, s{S_WAVE}, 13")
    e(f"v_lshrrev_b32 v{T}, 4, v{L}")
    e(f"v_and_b32 v{T+1}, 15, v{L}")
    e(f"v_lshlrev_b32 v{T+2}, 2, v{T}")
    e(f"v_xor_b32 v{T+1}, v{T+1}, v{T+2}")
    e(f"v_lshlrev_b32 v{T+1}, 4, v{T+1}")
    e(f"s_lshl_b32 s{S_T3}, s{S_WAVE}, 4")
    e(f"v_add_u32 v{T+2}, s{S_T3}, v{T}")
    e(f"v_mul_u32_u24 v{T+2}, 3584, v{T+2}")
    e(f"v_add_u32 v{V_OW1}, v{T+1}, v{T+2}")
    for j in range(1, 4):
        e(f"v_add_u32 v{V_OW1+j}, {13312*j}, v{V_OW1}")
    e(f"v_and_b32 v{T+1}, 7, v{L}")
    e(f"v_xor_b32 v{T+2}, v{T+1}, v{T}")
    e(f"v_lshlrev_b32 v{T+2}, 4, v{T+2}")
    e(f"v_lshrrev_b32 v{T+3}, 3, v{L}")
    e(f"s_lshl_b32 s{S_T3}, s{S_WAVE}, 15")
    e(f"v_lshl_add_u32 v{T+4}, v{T+3}, 10, s{S_T3}")
    e(f"v_add_u32 v{V_OX}, v{T+4}, v{T+2}")
    e(f"v_xor_b32 v{T+2}, 64, v{T+2}")
    e(f"v_add_u32 v{T+2}, v{T+4}, v{T+2}")
    e(f"v_add_u32 v{V_OX+1}, 7168, v{T+2}")
    e(f"v_add_u32 v{V_OX+2}, {7168*2}, v{V_OX}")
    e(f"v_add_u32 v{V_OX+3}, {7168*3}, v{T+2}")
    e("s_waitcnt lgkmcnt(0)")
    g.stamp("karg")
    srd(g, S_W1, 6, 512 * 1792 * 2)
    srd(g, S_X, 4, 2048 * 512 * 2)
    e(f"s_cmp_ge_u32 s{S_I}, 28")
    e("s_cbranch_scc1 L_setup2")
    g.es(flat(dma_c(0, 0)))
    g.es(flat(dma_c(1, 1)[:3]))
    g.stamp("dma0")
    g.lab("L_setup2")
    srd(g, S_DBG, 12, 256)
    e(f"v_mov_b32 v{V_ZERO}, 0")
    e(f"s_or_b32 s{S_T3}, s2, s{S_WAVE}")
    e(f"s_cmp_lg_u32 s{S_T3}, 0")
    e("s_cbranch_scc1 L_nonce_done")
    e(f"s_or_b32 s{S_PA+1}, s{S_PA+1}, 0x80000000")
    e(f"s_atomic_swap_x2 s[{S_PA}:{S_PA+1}], s[12:13], 0")
    e("s_waitcnt lgkmcnt(0)")
    g.lab("L_nonce_done")
    for t in range(2, 8):
        kofs(t)
    srd(g, S_W2, 8, 512 * 1792 * 2)
    srd(g, S_OUT, 10, 2048 * 512 * 2)
    if o.hoff:
        e(f"s_add_u32 s{S_WS}, s14, {hex(o.hoff)}")
        e(f"s_addc_u32 s{S_WS+1}, s15, 0")
        e(f"s_mov_b32 s{S_WS+2}, 0x1000000")
        e(f"s_mov_b32 s{S_WS+3}, 0x20000")
    else:
        srd(g, S_WS, 14, 0x10000000)
    e(f"s_lshr_b32 s{S_T0}, s{S_WAVE}, 1")
    e(f"s_and_b32 s{S_T1}, s{S_WAVE}, 1")
    e(f"s_lshl_b32 s{S_T2}, s{S_U}, 1")
    e(f"s_add_u32 s{S_T2}, s{S_T2}, s{S_T0}")
    e(f"s_lshl_b32 s{S_T3}, s{S_SPIN}, 1")
    e(f"s_add_u32 s{S_T3}, s{S_T3}, s{S_T1}")
    e(f"s_mul_i32 s4, s{S_T3}, 37")
    e(f"s_lshr_b32 s4, s4, 8")
    e(f"s_mul_i32 s5, s4, 7")
    e(f"s_sub_u32 s5, s{S_T3}, s5")
    e(f"s_lshl_b32 s6, s{S_T2}, 2")
    e(f"s_add_u32 s4, s4, s6")
    e(f"s_lshl_b32 s4, s4, 7")
    e(f"s_lshl_b32 s5, s5, 3")
    e(f"s_add_u32 s4, s4, s5")
    e(f"s_add_u32 s4, s4, {hex(o.hoff + FLAGS_OFF)}")
    e(f"s_add_u32 s{S_FA}, s14, s4")
    e(f"s_addc_u32 s{S_FA+1}, s15, 0")
    e(f"s_mul_i32 s{S_T2}, s{S_T2}, {2*114688}")
    e(f"s_lshl_b32 s{S_T3}, s{S_T3}, 12")
    e(f"s_add_u32 s{S_T2}, s{S_T2}, s{S_T3}")
    e(f"v_lshl_add_u32 v{V_HST}, v{L}, 4, s{S_T2}")
    e(f"v_and_b32 v{T+2}, 31, v{L}")
    e(f"v_lshrrev_b32 v{T+4}, 5, v{L}")
    e(f"v_bfe_u32 v{T+5}, v{L}, 1, 3")
    e(f"v_xor_b32 v{T+5}, v{T+5}, v{T+4}")
    e(f"v_lshlrev_b32 v{T+5}, 4, v{T+5}")
    e(f"v_lshl_add_u32 v{T+5}, v{T+2}, 7, v{T+5}")
    e(f"s_lshl_b32 s{S_T2}, s{S_T0}, 13")
    e(f"v_add_u32 v{V_AX}, s{S_T2}, v{T+5}")
    for s in range(1, 4):
        e(f"v_xor_b32 v{V_AX+s}, {32*s}, v{V_AX}")
    for z in (1, 2):
        for s in range(4):
            e(f"v_add_u32 v{V_AX+4*z+s}, {65536*z}, v{V_AX+s}")
    e(f"v_xor_b32 v{T+5}, v{T+1}, v{T+4}")
    e(f"v_lshlrev_b32 v{T+5}, 4, v{T+5}")
    e(f"v_lshl_add_u32 v{T+5}, v{T+2}, 8, v{T+5}")
    e(f"v_add_u32 v{V_RW}, s{S_M0W2}, v{T+5}")
    for q in range(1, 4):
        e(f"v_xor_b32 v{V_RW+q}, {32*q}, v{V_RW}")
    e(f"v_lshlrev_b32 v{T+5}, 1, v{T+1}")
    e(f"v_xor_b32 v{T+5}, v{T+5}, v{T+3}")
    e(f"v_lshlrev_b32 v{T+5}, 4, v{T+5}")
    e(f"v_lshl_add_u32 v{T+5}, v{T+3}, 8, v{T+5}")
    e(f"s_lshl_b32 s{S_T2}, s{S_WAVE}, 11")
    e(f"v_add_u32 v{V_RR}, s{S_T2}, v{T+5}")
    e(f"v_xor_b32 v{V_RR+1}, 16, v{V_RR}")
    e(f"v_bfe_u32 v{T+2}, v{L}, 2, 2")
    e(f"v_and_b32 v{T+5}, 3, v{L}")
    e(f"v_lshlrev_b32 v{T+5}, 3, v{T+5}")
    e(f"v_and_b32 v{T+6}, 1, v{T}")
    e(f"v_lshl_add_u32 v{T+5}, v{T+6}, 5, v{T+5}")
    e(f"v_lshl_add_u32 v{T+6}, v{T+4}, 3, v{T+2}")
    e(f"v_lshl_add_u32 v{V_AW1}, v{T+6}, 8, v{T+5}")
    e(f"s_lshl_b32 s{S_T2}, s{S_T1}, 1")
    e(f"v_xor_b32 v{T+6}, s{S_T2}, v{T+2}")
    e(f"v_lshl_add_u32 v{V_AW1}, v{T+6}, 6, v{V_AW1}")
    e(f"v_xor_b32 v{V_AW1+1}, 64, v{V_AW1}")
    for z in (1, 2):
        for p in range(2):
            e(f"v_add_u32 v{V_AW1+2*z+p}, {65536*z}, v{V_AW1+p}")
    e(f"v_lshl_add_u32 v{T+6}, v{T+4}, 2, v{T+2}")
    e(f"v_lshl_add_u32 v{T+5}, v{T+6}, 7, v{T+5}")
    e(f"v_lshrrev_b32 v{T+6}, 1, v{T+2}")
    e(f"v_lshl_add_u32 v{T+5}, v{T+6}, 6, v{T+5}")
    e(f"v_add_u32 v{V_AW2}, s{S_M0W2}, v{T+5}")
    e(f"v_xor_b32 v{V_AW2+1}, 64, v{V_AW2}")
    for z in (1, 2):
        for p in range(2):
            e(f"v_add_u32 v{V_AW2+2*z+p}, {65536*z}, v{V_AW2+p}")
    e(f"s_lshl_b32 s5, s{S_XCD}, 2")
    e(f"s_add_u32 s{S_T0}, s{S_Q}, s5")
    e(f"s_lshr_b32 s4, s{S_I}, 2")
    e(f"s_cmp_ge_u32 s4, 3")
    e(f"s_addc_u32 s{S_T1}, s4, 0")
    e(f"s_cmp_eq_u32 s4, 7")
    e(f"s_cselect_b32 s{S_T1}, 3, s{S_T1}")
    e(f"s_lshr_b32 s4, s{S_T1}, 1")
    if o.rot5q == 1:
        e(f"s_add_u32 s4, s4, s{S_Q}")
    elif o.rot5q == 2:
        e(f"s_and_b32 s5, s{S_Q}, 2")
        e(f"s_add_u32 s4, s4, s5")
    e(f"s_and_b32 s{S_T2}, s4, 3")
    e(f"s_mov_b32 s7, s{S_XCD}")
    e(f"s_and_b32 s{S_XCD}, s{S_T1}, 1")
    e(f"s_mul_i32 s{S_T3}, s{S_WAVE}, 7")
    for b in range(7):
        if b < 5:
            e(f"s_add_u32 s5, s{S_T2}, {b}")
            e(f"s_mul_i32 s6, s5, 52")
            e(f"s_lshr_b32 s6, s6, 8")
            e(f"s_mul_i32 s6, s6, 5")
            e(f"s_sub_u32 s5, s5, s6")
            e(f"s_add_u32 s5, s5, s{S_T3}")
            e(f"s_add_u32 s5, s5, 2")
        else:
            e(f"s_add_u32 s5, s{S_T3}, {b-5}")
        e(f"s_lshl_b32 s{S_UW+b}, s5, 16")
        e(f"s_lshl_b32 s{S_U+b}, s5, 12")
    e(f"v_and_b32 v{T+2}, 1, v{T}")
    e(f"v_lshlrev_b32 v{T+2}, 2, v{T+2}")
    e(f"v_xor_b32 v{T+2}, v{T+1}, v{T+2}")
    e(f"v_lshlrev_b32 v{T+2}, 4, v{T+2}")
    e(f"v_lshl_add_u32 v{T+2}, v{T+3}, 10, v{T+2}")
    e(f"s_lshl_b32 s{S_T2}, s{S_T1}, 7")
    e(f"v_add_u32 v{V_OW2}, s{S_T2}, v{T+2}")
    for j in range(1, 4):
        e(f"v_add_u32 v{V_OW2+j}, {7168*j}, v{V_OW2}")
    e(f"v_lshlrev_b32 v{T+2}, 4, v{T+1}")
    e(f"v_lshl_add_u32 v{T+2}, v{T+3}, 10, v{T+2}")
    e(f"s_lshl_b32 s{S_T3}, s{S_T0}, 16")
    e(f"s_add_u32 s{S_T2}, s{S_T2}, s{S_T3}")
    e(f"s_add_u32 s{S_T2}, s{S_T2}, s{S_M0W2}")
    e(f"s_lshl_b32 s{S_T3}, s{S_XCD}, 15")
    e(f"s_add_u32 s{S_T3}, s{S_T3}, s{S_T2}")
    e(f"v_add_u32 v{V_OUTA}, s{S_T3}, v{T+2}")
    e(f"v_xor_b32 v{V_OUTB}, 0x8000, v{V_OUTA}")
    e(f"s_lshl_b32 s{S_T2}, s{S_T0}, 1")
    e(f"s_add_u32 s{S_T3}, s{S_T2}, s{S_XCD}")
    e(f"s_mul_i32 s{S_T3}, s{S_T3}, 114688")
    e(f"v_lshl_add_u32 v{V_HF}, v{L}, 4, s{S_T3}")
    e(f"s_xor_b32 s{S_T3}, s{S_XCD}, 1")
    e(f"s_add_u32 s{S_T3}, s{S_T3}, s{S_T2}")
    e(f"s_mul_i32 s{S_T3}, s{S_T3}, 114688")
    e(f"v_lshl_add_u32 v{V_HS}, v{L}, 4, s{S_T3}")
    e(f"s_lshl_b32 s{S_T2}, s{S_T0}, 2")
    e(f"s_add_u32 s{S_T2}, s{S_T2}, s{S_WAVE}")
    e(f"s_lshl_b32 s{S_T2}, s{S_T2}, 7")
    e(f"s_add_u32 s{S_T2}, s{S_T2}, {hex(o.hoff + FLAGS_OFF)}")
    e(f"s_add_u32 s{S_PA}, s14, s{S_T2}")
    e(f"s_addc_u32 s{S_PA+1}, s15, 0")
    e(f"s_load_dword s10, s[{S_PA}:{S_PA+1}], 0 glc")
    e(f"s_cmp_ge_u32 s{S_I}, 28")
    e("s_cbranch_scc1 L_idle")
    g.stamp("setup")
    rest = dma_c(1, 1)[3:]
    rest[0] = [f"s_add_u32 m0, s{S_M0A}, {slot_base(1)}", "s_nop 0"] + rest[0]
    g.es(flat(rest))
    def hload(i):
        half, p = divmod(i, 28)
        b, kp = divmod(p, 4)
        d = V_HR + 4 * (i % NB)
        return f"buffer_load_dwordx4 v[{d}:{d+3}], v{V_HF+half}, s[{S_WS}:{S_WS+3}], s{S_U+b} offen offset:{kp*1024} sc1"

    def p2_mfma(i):
        half, p = divmod(i, 28)
        b, kp = divmod(p, 4)
        h = V_HR + 4 * (i % NB)
        r = []
        for nu in range(2):
            a = V_ACC + (half * 2 + nu) * 16
            w = (b * 8 + kp * 2 + nu) * 4
            c = "0" if p == 0 else f"v[{a}:{a+15}]"
            r.append(f"v_mfma_f32_32x32x16_bf16 v[{a}:{a+15}], a[{w}:{w+3}], v[{h}:{h+3}], {c}")
        return r

    def producer(tag, stream):
        emit_p1(g, tag, stream)
        e("s_barrier")
        last = stream.index(('c', 7))
        it = [(stream[p][1], p) for p in range(last + 1, 15)]
        g.es(flat(dma_w(*it[2])))
        e("s_waitcnt vmcnt(24) lgkmcnt(4)")
        emit_tr(g, *it[0])
        e("s_waitcnt vmcnt(16) lgkmcnt(4)")
        emit_tr(g, *it[1])
        e("s_waitcnt vmcnt(8) lgkmcnt(0)")
        emit_flag(g)
        n = len(it)
        g.es(flat(dma_w(*it[3])))
        for k in range(2, n - 2):
            g.es(flat(dma_w(*it[k + 2])))
            e("s_waitcnt vmcnt(16) lgkmcnt(4)")
            g.stamp(f"wl{k+7-n}")
            emit_tr(g, *it[k])
        g.stamp("poll1")
        emit_poll(g, tag)
        g.stamp("ready")
        for i in range(D):
            e(hload(i))
        e(f"s_waitcnt vmcnt({D+8})")
        emit_tr(g, *it[n - 2])
        e(f"s_waitcnt vmcnt({D}) lgkmcnt(4)")
        g.stamp("wl6")
        emit_tr(g, *it[n - 1])

    C = [('c', t) for t in range(8)]
    if o.ins:
        producer("U", C[:o.ins] + [('w', 0)] + C[o.ins:] + [('w', b) for b in (5, 6, 1, 2, 3, 4)])
    else:
        producer("E", C + [('w', b) for b in (5, 6, 0, 1, 2, 3, 4)])
    g.lab("L_p2")

    def red_write(half):
        r = []
        for nu in range(2):
            for q in range(4):
                a = V_ACC + (half * 2 + nu) * 16 + 4 * q
                r.append(f"ds_write_b128 v{V_RW+q}, v[{a}:{a+3}] offset:{128*nu + 32768*half}")
        return r

    def red_read(half):
        r = []
        for w in range(4):
            for ee in range(2):
                d = V_RD + (w * 2 + ee) * 4
                r.append(f"ds_read_b128 v[{d}:{d+3}], v{V_RR+ee} offset:{8192*w + 32768*half}")
        return r

    def red_sum(dst):
        r = []
        for j in range(8):
            r.append(f"v_add_f32 v{V_RD+j}, v{V_RD+j}, v{V_RD+8+j}")
        for j in range(8):
            r.append(f"v_add_f32 v{V_RD+16+j}, v{V_RD+16+j}, v{V_RD+24+j}")
        for j in range(8):
            r.append(f"v_add_f32 v{V_RD+j}, v{V_RD+j}, v{V_RD+16+j}")
        for j in range(4):
            r.append(f"v_cvt_pk_bf16_f32 v{dst+j}, v{V_RD+2*j}, v{V_RD+2*j+1}")
        return r

    extra = {}
    w0 = red_write(0)
    for n in range(4):
        extra.setdefault(30 + n, []).extend(w0[2 * n:2 * n + 2])
    extra.setdefault(36, []).extend(["s_waitcnt lgkmcnt(0)", "s_barrier"] + red_read(0))
    s0 = red_sum(V_R0)
    extra.setdefault(40, []).append("s_waitcnt lgkmcnt(0)")
    for n in range(7):
        extra.setdefault(40 + n, []).extend(s0[4 * n:4 * n + 4])
    for i in range(56):
        issued = min(56, i + D)
        wait = f"s_waitcnt vmcnt({issued - i - 1})"
        if i == 3:
            wait += " lgkmcnt(0)"
        e(wait)
        m = p2_mfma(i)
        e(m[0])
        if i + D < 56:
            e(hload(i + D))
        e(m[1])
        g.es(extra.get(i, []))
        g.stamp(f"h{i}")
    g.stamp("loopend")
    e("s_nop 7")
    e("s_nop 2")
    g.es(red_write(1))
    e("s_waitcnt lgkmcnt(0)")
    e("s_barrier")
    g.es(red_read(1))
    e(f"buffer_store_dwordx4 v[{V_R0}:{V_R0+3}], v{V_OUTA}, s[{S_OUT}:{S_OUT+3}], 0 offen {o.outflag}")
    e("s_waitcnt lgkmcnt(0)")
    g.es(red_sum(V_EP))
    e(f"buffer_store_dwordx4 v[{V_EP}:{V_EP+3}], v{V_OUTB}, s[{S_OUT}:{S_OUT+3}], 0 offen {o.outflag}")
    if o.stamps:
        e("s_waitcnt vmcnt(0)")
        g.stamp("final")
        e("s_waitcnt lgkmcnt(0)")
        if o.probe:
            pa, pb, pwg = [int(x) for x in o.probe.split(",")]
            if pwg >= 0:
                e(f"s_cmp_lg_u32 s2, {pwg}")
                e("s_cbranch_scc1 L_end")
            if pwg == -2:
                e(f"s_cmp_ge_u32 s{S_I}, 28")
                e("s_cbranch_scc1 L_end")
            e(f"s_sub_u32 s{S_T0}, s{S_ST+2*pb}, s{S_NON if pa == 9 else S_ST+2*pa}")
            e(f"s_min_u32 s{S_T0}, s{S_T0}, 5000")
            e(f"s_mul_i32 s{S_T0}, s{S_T0}, 10")
            e(f"s_add_u32 s{S_T0}, s{S_T0}, s{S_ST+16}")
            g.lab("L_probe")
            e(f"s_memrealtime s[4:5]")
            e("s_waitcnt lgkmcnt(0)")
            e(f"s_sub_u32 s{S_T1}, s4, s{S_T0}")
            e(f"s_cmp_lt_i32 s{S_T1}, 0")
            e("s_cbranch_scc1 L_probe")
            e("s_endpgm")
        for n in range(9):
            e(f"v_mov_b32 v{96+n}, s{S_ST+2*n}")
        e(f"s_lshl_b32 s{S_T0}, s2, 8")
        e(f"s_lshl_b32 s{S_T1}, s{S_WAVE}, 6")
        e(f"s_add_u32 s{S_T0}, s{S_T0}, s{S_T1}")
        e(f"s_add_u32 s{S_T0}, s{S_T0}, {hex(STAMP_OFF)}")
        e("v_mov_b32 v108, 0")
        e("s_mov_b64 exec, 1")
        for n in range(3):
            e(f"buffer_store_dwordx4 v[{96+4*n}:{99+4*n}], v108, s[{S_WS}:{S_WS+3}], s{S_T0} offen offset:{16*n} sc1")
    g.lab("L_end")
    e("s_endpgm")

    g.lab("L_idle")
    e(f"v_lshlrev_b32 v{T+2}, 4, v{L}")
    e(f"s_mul_i32 s4, s{S_Q}, {448*1024}")
    if o.touch:
        e(f"s_mul_i32 s5, s7, 40")
        e(f"s_mul_i32 s6, s{S_WAVE}, 10")
        e(f"s_add_u32 s5, s5, s6")
        e(f"s_add_u32 s5, s5, 128")
        e(f"s_lshl_b32 s5, s5, 10")
        e(f"s_add_u32 s5, s5, s4")
        for k in range(10):
            if k and k % 4 == 0:
                e(f"s_add_u32 s5, s5, 4096")
            e(f"buffer_load_dwordx4 v[{V_ACC+4*k}:{V_ACC+4*k+3}], v{T+2}, s[{S_W2}:{S_W2+3}], s5 offen offset:{1024*(k%4)}")
    e(f"s_lshl_b32 s5, s{S_WAVE}, 14")
    e(f"s_add_u32 s4, s4, s5")
    e(f"s_mov_b32 s10, 0")
    g.lab("L_pf")
    e(f"s_add_u32 s5, s10, s7")
    e(f"s_and_b32 s5, s5, 7")
    e(f"s_lshl_b32 s5, s5, 11")
    e(f"s_lshr_b32 s6, s10, 3")
    e(f"s_lshl_b32 s6, s6, 16")
    e(f"s_add_u32 s5, s5, s6")
    e(f"s_add_u32 s5, s5, s4")
    e(f"buffer_load_dwordx4 v[{V_ACC+40}:{V_ACC+43}], v{T+2}, s[{S_W2}:{S_W2+3}], s5 offen")
    e(f"buffer_load_dwordx4 v[{V_ACC+44}:{V_ACC+47}], v{T+2}, s[{S_W2}:{S_W2+3}], s5 offen offset:1024")
    e(f"s_waitcnt vmcnt(40)")
    e(f"s_add_u32 s10, s10, 1")
    e(f"s_cmp_lt_u32 s10, {8*o.npf}")
    e("s_cbranch_scc1 L_pf")
    g.stamp("pfdone")
    seq = [0, 5, 6, 1, 2, 3, 4]
    e(nonce_load())
    g.es(flat(dma_w(seq[0], 0)))
    g.es(flat(dma_w(seq[1], 1)))
    for k in range(7):
        if k + 2 < 7:
            g.es(flat(dma_w(seq[k + 2], k + 2)))
        e(f"s_waitcnt vmcnt({8*min(2, 6-k)}) lgkmcnt(4)")
        emit_tr(g, seq[k], k)
    g.stamp("wl6")
    emit_nonce_check(g, "i")
    emit_poll(g, "I")
    g.stamp("ready")
    for i in range(D):
        e(hload(i))
    e("s_branch L_p2")

    g.lab("L_code_end")
    body = "\n".join(g.L)
    txt = HEADER + f""".amdgcn_target "amdgcn-amd-amdhsa--gfx950"
.text
.globl {KNAME}
.p2align 8
.type {KNAME},@function
{body}
.section .rodata,"a"
.p2align 6
.amdhsa_kernel {KNAME}
  .amdhsa_next_free_vgpr 512
  .amdhsa_next_free_sgpr 102
  .amdhsa_accum_offset 256
  .amdhsa_group_segment_fixed_size 0
  .amdhsa_kernarg_size 48
  .amdhsa_user_sgpr_count 2
  .amdhsa_user_sgpr_kernarg_segment_ptr 1
  .amdhsa_system_sgpr_workgroup_id_x 1
.end_amdhsa_kernel
"""
    return txt


def parse(argv):
    p = argparse.ArgumentParser()
    p.add_argument("-o", default=None)
    p.add_argument("--co", default=None)
    p.add_argument("--stamps", default="")
    p.add_argument("--rt", type=int, default=0)
    p.add_argument("--depth", type=int, default=12)
    p.add_argument("--nbuf", type=int, default=16)
    p.add_argument("--stagger", type=int, default=1)
    p.add_argument("--ins", type=int, default=5)
    p.add_argument("--idleseq", default="o0,o1,p5,o5,p6,o6,o2,p7,o3,o4")
    p.add_argument("--kpre", type=int, default=2)
    p.add_argument("--perms", default="0145623,0123456,2365401,2301456")
    p.add_argument("--cmask", type=int, default=6)
    p.add_argument("--outflag", default="sc1")
    p.add_argument("--probe", default="")
    p.add_argument("--npre", type=int, default=2)
    p.add_argument("--touch", type=int, default=1)
    p.add_argument("--rot5q", type=int, default=1)
    p.add_argument("--npf", type=int, default=2)
    p.add_argument("--cpf", type=int, default=1)
    p.add_argument("--cpf_first", type=int, default=31)
    p.add_argument("--hoff", type=lambda v: int(v, 0), default=0)
    p.add_argument("--rot5", default="1,1,1")
    p.add_argument("--idlep", type=int, default=0)
    p.add_argument("--idlea", type=int, default=0)
    p.add_argument("--idleb", type=int, default=0)
    p.add_argument("--partner", type=int, default=1)
    p.add_argument("--idlesleep", type=int, default=0)
    p.add_argument("--rot1", type=int, default=3)
    return p.parse_args(argv)


if __name__ == "__main__":
    o = parse(sys.argv[1:])
    txt = gen(o)
    if o.o:
        open(o.o, "w").write(txt)
    if o.co:
        open(o.co + ".s", "w").write(txt + META)
        r = subprocess.run(["clang", "-x", "assembler", "-target", "amdgcn-amd-amdhsa",
                            "-mcpu=gfx950", o.co + ".s", "-o", o.co + ".co"], capture_output=True, text=True)
        if r.returncode:
            print(r.stderr[:4000])
            sys.exit(1)
```

```python
import sys, subprocess, argparse
from gen import HEADER, KNAME, META

FLAGS_OFF = 0x800000
STAMP_OFF = 0x8000000
RHO = 57344

S_X, S_W1, S_W2, S_OUT, S_DBG, S_WS = 16, 20, 24, 28, 32, 36
S_WAVE = 40
S_XCD = 41
S_I = 42
S_T0, S_T1, S_T2, S_T3 = 43, 44, 45, 46
S_M0A = 47
S_U = 48
S_M0W2 = 55
S_UW = 56
S_SPIN = 63
S_KX = 64
S_KW = 72
S_POLL = 64
S_NON = 80
S_PA = 82
S_ST = 84
S_Q = 3
S_FA = 8
S_QROT = 11

V_LANE = 1
V_OX = 2
V_OW1 = 6
V_OW2 = 10
V_H = 14
V_ZERO = 18
V_NON = 20
V_HST = 22
V_OUT = 23
V_RW = 24
V_RR = 26
V_ACC = 32
V_FR = 96
V_EP = 160
V_AX = 192
V_AW1 = 198
V_AW2 = 210
V_RES = 222
V_RD = 232
V_T = 232
V_HR = 96
NONCE_POS = 2
MF = "v_mfma_f32_16x16x32_bf16"


class G:
    def __init__(self, o):
        self.o = o
        self.L = []

    def e(self, s):
        self.L.append("    " + s)

    def es(self, l):
        for x in l:
            self.e(x)

    def lab(self, s):
        self.L.append(s + ":")

    def c(self, s):
        self.L.append("    ; " + s)

    def stamp(self, name):
        if not self.o.stamps:
            return
        names = self.o.stamps.split(",")
        if name == "final":
            idx = 8
        elif name in names[:8]:
            idx = names.index(name)
        else:
            return
        r = S_ST + 2 * idx
        self.e(f"s_memrealtime s[{r}:{r+1}]" if self.o.rt else f"s_memtime s[{r}:{r+1}]")


def srd(g, d, lo, nbytes):
    g.e(f"s_mov_b32 s{d}, s{lo}")
    g.e(f"s_mov_b32 s{d+1}, s{lo+1}")
    g.e(f"s_mov_b32 s{d+2}, {hex(nbytes)}")
    g.e(f"s_mov_b32 s{d+3}, 0x20000")


def slot_base(pos):
    return (pos % 5) * 32768


def zone(pos):
    s = pos % 5
    return s // 2, (s % 2) * 32768


def dma_c(t, pos):
    sb = slot_base(pos)
    out = []
    for vo, sr, so, add in ((V_OW1, S_W1, S_KW + t, 0), (V_OX, S_X, S_KX + t, 16384)):
        for j in range(4):
            ins = f"buffer_load_dwordx4 v{vo+j}, s[{sr}:{sr+3}], s{so} offen offset:{1024*j} lds"
            if j == 0:
                out.append([f"s_add_u32 m0, s{S_M0A}, {sb+add}", "s_nop 0", ins])
            else:
                out.append([ins])
    return out


def dma_w(b, pos):
    sb = slot_base(pos)
    out = []
    for half in range(2):
        for j in range(4):
            so = f"s{S_UW+b}" if half == 0 else f"s{S_T3}"
            ins = f"buffer_load_dwordx4 v{V_OW2+j}, s[{S_W2}:{S_W2+3}], {so} offen offset:{1024*j} lds"
            if j == 0:
                pre = [f"s_add_u32 m0, s{S_M0W2}, {sb + 4096*half}"]
                pre.append(f"s_add_u32 s{S_T3}, s{S_UW+b}, 32768" if half == 1 else "s_nop 0")
                out.append(pre + [ins])
            else:
                out.append([ins])
    return out


def flat(groups):
    return [x for gr in groups for x in gr]


def frA(s, phi):
    return V_FR + 32 * s + 4 * phi


def frB(s, rho):
    return V_FR + 32 * s + 16 + 4 * rho


def rdA(pos, s, phi):
    z, add = zone(pos)
    return [f"ds_read_b64_tr_b16 v[{frA(s,phi)+2*e}:{frA(s,phi)+2*e+1}], v{V_AW1+4*z+phi} offset:{add + (32*s+4*e)*256}"
            for e in range(2)]


def rdB(pos, s, rho):
    z, add = zone(pos)
    return [f"ds_read_b128 v[{frB(s,rho)}:{frB(s,rho)+3}], v{V_AX+2*z+s} offset:{add + 16384 + rho*2048}"]


def p1_reads(pos, sub):
    s, h = divmod(sub, 2)
    if h == 0:
        return rdA(pos, s, 0) + rdB(pos, s, 0) + rdB(pos, s, 1) + rdB(pos, s, 2) + rdB(pos, s, 3) + rdA(pos, s, 1)
    return rdA(pos, s, 2) + rdA(pos, s, 3)


def acc1(phi, rho):
    return V_ACC + (phi * 4 + rho) * 4


def p1_mfma(sub, first):
    s, h = divmod(sub, 2)
    r = []
    for k, phi in enumerate((2 * h, 2 * h + 1)):
        for rho in (range(4) if k == 0 else range(3, -1, -1)):
            a = acc1(phi, rho)
            A, B = frA(s, phi), frB(s, rho)
            c = "0" if first else f"v[{a}:{a+3}]"
            r.append(f"{MF} v[{a}:{a+3}], v[{A}:{A+3}], v[{B}:{B+3}], {c}")
    return r


def w2_tr(b, pos):
    z, add = zone(pos)
    r = []
    for kp in range(2):
        for nu in range(4):
            for e in range(2):
                d = ((b * 2 + kp) * 4 + nu) * 4 + 2 * e
                r.append(f"ds_read_b64_tr_b16 a[{d}:{d+1}], v{V_AW2+4*z+nu} offset:{add + (32*kp+16*e)*128}")
    return r


def emit_tr(g, b, pos):
    for i, x in enumerate(w2_tr(b, pos)):
        if i == 8:
            g.e("s_waitcnt lgkmcnt(4)")
        g.e(x)


def grp(g, mf, gaps):
    gaps = list(gaps) + [[]] * (len(mf) - len(gaps))
    for m, gp in zip(mf, gaps):
        if m:
            g.e(m)
        g.es(gp)


def emit_poll(g, tag):
    e = g.e
    e(f"s_mov_b32 s{S_SPIN}, 0x40000")
    g.lab(f"L_poll_{tag}")
    e(f"s_load_dwordx16 s[{S_POLL}:{S_POLL+15}], s[{S_PA}:{S_PA+1}], 0 glc")
    e(f"s_sub_u32 s{S_SPIN}, s{S_SPIN}, 1")
    e(f"s_cbranch_scc1 L_ready_{tag}")
    e("s_waitcnt lgkmcnt(0)")
    for k in range(7):
        e(f"s_cmp_lg_u64 s[{S_POLL+2*k}:{S_POLL+2*k+1}], s[{S_NON}:{S_NON+1}]")
        e(f"s_cbranch_scc1 L_poll_{tag}")
    g.lab(f"L_ready_{tag}")


def nonce_load():
    return f"buffer_load_dwordx2 v[{V_NON}:{V_NON+1}], v{V_ZERO}, s[{S_DBG}:{S_DBG+3}], 0 offen sc1"


def emit_nonce_check(g, tag):
    e = g.e
    e(f"v_readfirstlane_b32 s{S_NON+1}, v{V_NON+1}")
    e(f"s_mov_b32 s{S_SPIN}, 0x40000")
    g.lab(f"L_non_{tag}")
    e(f"s_cmp_lg_u32 s{S_NON+1}, 0")
    e(f"s_cbranch_scc1 L_nonok_{tag}")
    e(nonce_load())
    e("s_waitcnt vmcnt(0)")
    e(f"v_readfirstlane_b32 s{S_NON+1}, v{V_NON+1}")
    e(f"s_sub_u32 s{S_SPIN}, s{S_SPIN}, 1")
    e(f"s_cbranch_scc0 L_non_{tag}")
    g.lab(f"L_nonok_{tag}")
    e(f"v_readfirstlane_b32 s{S_NON}, v{V_NON}")


def epi(h, rho):
    d = V_EP + 4 * (4 * h + rho)
    r = []
    for k in range(2):
        a = acc1(2 * h + k, rho)
        r.append(f"v_cvt_pk_bf16_f32 v{d+2*k}, v{a}, v{a+1}")
        r.append(f"v_cvt_pk_bf16_f32 v{d+2*k+1}, v{a+2}, v{a+3}")
    for jj in range(4):
        r.append(f"v_pk_max_i16 v{d+jj}, v{d+jj}, 0")
    so = "0" if rho == 0 else f"s{S_T0+rho-1}"
    r.append(f"buffer_store_dwordx4 v[{d}:{d+3}], v{V_HST}, s[{S_WS}:{S_WS+3}], {so} offen offset:{1024*h} sc1")
    return r


def emit_p1(g, tag, stream):
    e = g.e
    last = stream.index(('c', 7))
    pending = False
    for p in range(last + 1):
        kind, idx = stream[p]
        g.c(f"---- {tag} pos {p}: {kind}{idx}")
        e(f"s_waitcnt vmcnt({9 if p == NONCE_POS + 1 else 8}) lgkmcnt(0)")
        e("s_barrier")
        g.stamp(f"bar{kind}{idx}")
        nk, ni = stream[p + 2]
        f = dma_c(ni, p + 2) if nk == 'c' else dma_w(ni, p + 2)
        m3 = p1_mfma(3, False) if pending else [None] * 8
        pat = g.o.pat
        if kind == 'c' and pat == 0:
            R = [p1_reads(p, k) for k in range(4)]
            grp(g, m3, [R[0][0:2], R[0][2:4], R[0][4:6], R[0][6:8], R[1][0:2], R[1][2:4], [], f[0]])
            e("s_waitcnt lgkmcnt(4)")
            grp(g, p1_mfma(0, idx == 0), [R[2][0:2], R[2][2:4], R[2][4:6], R[2][6:8], f[1], [], f[2], []])
            e("s_waitcnt lgkmcnt(8)")
            if idx < 7:
                grp(g, p1_mfma(1, idx == 0), [R[3][0:2], R[3][2:4], f[3], [], f[4], [], [], f[5]])
                e("s_waitcnt lgkmcnt(4)")
                grp(g, p1_mfma(2, False), [[], [], f[6], [], [], [], f[7], []])
            else:
                grp(g, p1_mfma(1, False), [R[3][0:2], R[3][2:4], f[3], f[4], f[5], f[6], f[7], []])
            pending = True
        elif kind == 'c' and pat in (1, 3):
            R = [[[x] for x in p1_reads(p, k)] for k in range(4)]
            if pat == 1:
                grp(g, m3, [R[0][0] + R[0][1], R[0][2] + R[0][3], R[0][4], R[0][5], R[0][6], R[0][7], [], f[0]])
                e("s_waitcnt lgkmcnt(0)")
                grp(g, p1_mfma(0, idx == 0), [R[1][0], R[1][1], R[1][2], R[1][3], R[2][0] + f[1], R[2][1], R[2][2], R[2][3] + f[2]])
            else:
                grp(g, m3, [R[0][0] + R[0][1], R[0][2], R[0][3], R[0][4], R[0][5], R[0][6], R[0][7], f[0]])
                e("s_waitcnt lgkmcnt(2)")
                m0 = p1_mfma(0, idx == 0)
                grp(g, m0[0:4], [R[1][0], R[1][1], R[1][2], R[1][3]])
                e("s_waitcnt lgkmcnt(4)")
                grp(g, m0[4:8], [R[2][0] + f[1], R[2][1], R[2][2], R[2][3] + f[2]])
            e("s_waitcnt lgkmcnt(4)")
            if idx < 7:
                grp(g, p1_mfma(1, idx == 0), [R[2][4], R[2][5], R[2][6] + f[3], R[2][7], R[3][0], R[3][1] + f[4], R[3][2], R[3][3]])
                e("s_waitcnt lgkmcnt(4)")
                grp(g, p1_mfma(2, False), [f[5], [], [], f[6], [], [], f[7], []])
            else:
                grp(g, p1_mfma(1, False), [R[2][4] + f[3], R[2][5] + f[4], R[2][6] + f[5], R[2][7] + f[6], R[3][0] + f[7], R[3][1], R[3][2], R[3][3]])
            pending = True
        elif kind == 'c' and pat == 2:
            R = [[[x] for x in p1_reads(p, k)] for k in range(4)]
            m2 = p1_mfma(2, False) if pending else [None] * 8
            grp(g, m2, R[0][0:7] + [R[0][7] + f[0]])
            grp(g, m3, R[1][0:4] + [f[1], [], f[2], []])
            e("s_waitcnt lgkmcnt(4)" if pending else "s_waitcnt lgkmcnt(4)")
            grp(g, p1_mfma(0, idx == 0), [R[2][0], R[2][1], R[2][2] + f[3], R[2][3], R[2][4], R[2][5], R[2][6] + f[4], R[2][7]])
            e("s_waitcnt lgkmcnt(8)")
            grp(g, p1_mfma(1, idx == 0), R[3][0:4] + [f[5], f[6], [], f[7]])
            pending = True
        else:
            T = w2_tr(idx, p)
            if pat == 2 and pending:
                g.es(p1_mfma(2, False))
            grp(g, m3, [T[0:2], T[2:4], T[4:6], T[6:8], T[8:10], T[10:12]])
            e("s_waitcnt lgkmcnt(4)")
            g.es(T[12:16])
            g.es(flat(f))
            pending = False
        if p == NONCE_POS:
            e(nonce_load())
    g.c(f"---- {tag} P1 tail")
    e("s_waitcnt lgkmcnt(4)")
    m2, m3 = p1_mfma(2, False), p1_mfma(3, False)
    g.es(m2[0:4])
    emit_nonce_check(g, tag)
    for k in range(3):
        e(f"s_mov_b32 s{S_T0+k}, {RHO*(k+1)}")
    g.es(m2[4:8])
    e("s_waitcnt lgkmcnt(0)")
    g.stamp("bar8")
    E0 = epi(0, 3) + epi(0, 2) + epi(0, 1) + epi(0, 0)
    g.es(m3[0:2])
    e("s_nop 2")
    grp(g, m3[2:8], [E0[0:3], E0[3:6], E0[6:9], E0[9:12], E0[12:15], E0[15:18]])
    g.es(E0[18:])
    g.es(epi(1, 3) + epi(1, 2) + epi(1, 1) + epi(1, 0))
    g.stamp("Hst")


def emit_flag(g):
    g.e(f"s_atomic_swap_x2 s[{S_NON}:{S_NON+1}], s[{S_FA}:{S_FA+1}], 0")
    g.stamp("flag")


def gen(o):
    g = G(o)
    e = g.e
    D = o.depth
    NB = o.nbuf
    L = V_LANE
    T = V_T
    g.lab(KNAME)
    g.stamp("entry")
    e("s_load_dwordx8 s[4:11], s[0:1], 0")
    e("s_load_dwordx4 s[12:15], s[0:1], 32")
    e(f"s_memrealtime s[{S_PA}:{S_PA+1}]")
    e("s_cmp_ge_u32 s2, 256")
    e("s_cbranch_scc1 L_end")
    e(f"v_lshrrev_b32 v{T}, 6, v0")
    e(f"v_and_b32 v{L}, 63, v0")
    e(f"s_and_b32 s{S_XCD}, s2, 7")
    e(f"v_readfirstlane_b32 s{S_WAVE}, v{T}")
    e(f"s_lshr_b32 s{S_I}, s2, 3")
    if o.cpf:
        e(f"s_cmp_lt_u32 s{S_I}, 31")
        e("s_cbranch_scc1 L_nocpf")
        e("s_getpc_b64 s[20:21]")
        g.lab("L_pc")
        e(f"v_lshlrev_b32 v{V_ACC}, 7, v0")
        e(f"v_mov_b32 v{V_ACC+3}, s21")
        e(f"v_add_co_u32 v{V_ACC+2}, vcc, s20, v{V_ACC}")
        e("s_nop 1")
        e(f"v_addc_co_u32 v{V_ACC+3}, vcc, 0, v{V_ACC+3}, vcc")
        e(f"v_cmp_gt_u32 vcc, L_code_end-L_pc, v{V_ACC}")
        e("s_and_saveexec_b64 s[22:23], vcc")
        e("s_cbranch_execz L_cpf_done")
        e(f"global_load_dword v{V_ACC+1}, v[{V_ACC+2}:{V_ACC+3}], off")
        g.lab("L_cpf_done")
        e("s_mov_b64 exec, s[22:23]")
        g.lab("L_nocpf")
    e(f"s_and_b32 s{S_Q}, s{S_I}, 3")
    e(f"s_lshr_b32 s{S_T1}, s{S_I}, 2")
    e(f"s_add_u32 s{S_T2}, s{S_Q}, s{S_T1}")
    e(f"s_lshl_b32 s{S_T2}, s{S_T2}, {o.rotsh}")
    e(f"s_and_b32 s{S_T3}, s{S_XCD}, 6")
    e(f"s_lshl_b32 s{S_T3}, s{S_T3}, 1")
    e(f"s_add_u32 s{S_U}, s{S_Q}, s{S_T3}")
    e(f"s_and_b32 s{S_T3}, s{S_XCD}, 1")
    e(f"s_mul_i32 s{S_T3}, s{S_T3}, 7")
    e(f"s_add_u32 s{S_SPIN}, s{S_T1}, s{S_T3}")
    e(f"s_lshl_b32 s{S_T0}, s{S_U}, 17")
    e(f"s_lshl_b32 s{S_T1}, s{S_SPIN}, 8")

    def kofs(t):
        e(f"s_add_u32 s{S_T3}, s{S_T2}, {t}")
        e(f"s_and_b32 s{S_T3}, s{S_T3}, 7")
        e(f"s_mul_i32 s{S_KW+t}, s{S_T3}, {64*3584}")
        e(f"s_lshl_b32 s{S_T3}, s{S_T3}, 7")
        e(f"s_add_u32 s{S_KX+t}, s{S_T3}, s{S_T0}")
        e(f"s_add_u32 s{S_KW+t}, s{S_KW+t}, s{S_T1}")
    kofs(0)
    kofs(1)
    e(f"s_lshl_b32 s{S_M0A}, s{S_WAVE}, 12")
    e(f"s_lshl_b32 s{S_M0W2}, s{S_WAVE}, 13")
    e(f"v_lshrrev_b32 v{T}, 4, v{L}")
    e(f"v_and_b32 v{T+1}, 15, v{L}")
    e(f"v_lshlrev_b32 v{T+2}, 1, v{T}")
    e(f"v_xor_b32 v{T+1}, v{T+1}, v{T+2}")
    e(f"v_lshlrev_b32 v{T+1}, 4, v{T+1}")
    e(f"s_lshl_b32 s{S_T3}, s{S_WAVE}, 4")
    e(f"v_add_u32 v{T+2}, s{S_T3}, v{T}")
    e(f"v_mul_u32_u24 v{T+2}, 3584, v{T+2}")
    e(f"v_add_u32 v{V_OW1}, v{T+1}, v{T+2}")
    e(f"v_xor_b32 v{T+1}, 128, v{T+1}")
    e(f"v_add_u32 v{T+1}, v{T+1}, v{T+2}")
    e(f"v_add_u32 v{V_OW1+1}, 13312, v{V_OW1}")
    e(f"v_add_u32 v{V_OW1+2}, {13312*2}, v{T+1}")
    e(f"v_add_u32 v{V_OW1+3}, {13312*3}, v{T+1}")
    e(f"v_and_b32 v{T+1}, 7, v{L}")
    e(f"v_xor_b32 v{T+2}, v{T+1}, v{T}")
    e(f"v_lshlrev_b32 v{T+2}, 4, v{T+2}")
    e(f"v_lshrrev_b32 v{T+3}, 3, v{L}")
    e(f"s_lshl_b32 s{S_T3}, s{S_WAVE}, 15")
    e(f"v_lshl_add_u32 v{T+4}, v{T+3}, 10, s{S_T3}")
    e(f"v_add_u32 v{V_OX}, v{T+4}, v{T+2}")
    e(f"v_xor_b32 v{T+2}, 64, v{T+2}")
    e(f"v_add_u32 v{T+2}, v{T+4}, v{T+2}")
    e(f"v_add_u32 v{V_OX+1}, 7168, v{T+2}")
    e(f"v_add_u32 v{V_OX+2}, {7168*2}, v{V_OX}")
    e(f"v_add_u32 v{V_OX+3}, {7168*3}, v{T+2}")
    e("s_waitcnt lgkmcnt(0)")
    g.stamp("karg")
    srd(g, S_W1, 6, 512 * 1792 * 2)
    srd(g, S_X, 4, 2048 * 512 * 2)
    e(f"s_cmp_ge_u32 s{S_I}, 28")
    e("s_cbranch_scc1 L_setup2")
    g.es(flat(dma_c(0, 0)))
    g.es(flat(dma_c(1, 1)[:3]))
    g.stamp("dma0")
    g.lab("L_setup2")
    srd(g, S_DBG, 12, 256)
    e(f"v_mov_b32 v{V_ZERO}, 0")
    e(f"s_or_b32 s{S_T3}, s2, s{S_WAVE}")
    e(f"s_cmp_lg_u32 s{S_T3}, 0")
    e("s_cbranch_scc1 L_nonce_done")
    e(f"s_or_b32 s{S_PA+1}, s{S_PA+1}, 0x80000000")
    e(f"s_atomic_swap_x2 s[{S_PA}:{S_PA+1}], s[12:13], 0")
    e("s_waitcnt lgkmcnt(0)")
    g.lab("L_nonce_done")
    for t in range(2, 8):
        kofs(t)
    srd(g, S_W2, 8, 512 * 1792 * 2)
    srd(g, S_OUT, 10, 2048 * 512 * 2)
    srd(g, S_WS, 14, 0x10000000)
    e(f"s_lshr_b32 s{S_T0}, s{S_WAVE}, 1")
    e(f"s_and_b32 s{S_T1}, s{S_WAVE}, 1")
    e(f"s_lshl_b32 s{S_T2}, s{S_U}, 1")
    e(f"s_add_u32 s{S_T2}, s{S_T2}, s{S_T0}")
    e(f"s_lshl_b32 s{S_T3}, s{S_SPIN}, 1")
    e(f"s_add_u32 s{S_T3}, s{S_T3}, s{S_T1}")
    e(f"s_mul_i32 s4, s{S_T3}, 37")
    e(f"s_lshr_b32 s4, s4, 8")
    e(f"s_mul_i32 s5, s4, 7")
    e(f"s_sub_u32 s5, s{S_T3}, s5")
    e(f"s_lshl_b32 s6, s{S_T2}, 2")
    e(f"s_add_u32 s4, s4, s6")
    e(f"s_lshl_b32 s4, s4, 7")
    e(f"s_lshl_b32 s5, s5, 3")
    e(f"s_add_u32 s4, s4, s5")
    e(f"s_add_u32 s4, s4, {hex(FLAGS_OFF)}")
    e(f"s_add_u32 s{S_FA}, s14, s4")
    e(f"s_addc_u32 s{S_FA+1}, s15, 0")
    e(f"s_mul_i32 s{S_T2}, s{S_T2}, {4*RHO}")
    e(f"s_lshl_b32 s{S_T3}, s{S_T3}, 11")
    e(f"s_add_u32 s{S_T2}, s{S_T2}, s{S_T3}")
    e(f"v_lshl_add_u32 v{V_HST}, v{L}, 4, s{S_T2}")
    e(f"v_and_b32 v{T+2}, 15, v{L}")
    e(f"v_lshrrev_b32 v{T+5}, 1, v{T+2}")
    e(f"v_xor_b32 v{T+5}, v{T+5}, v{T}")
    e(f"v_lshlrev_b32 v{T+5}, 4, v{T+5}")
    e(f"v_lshl_add_u32 v{T+5}, v{T+2}, 7, v{T+5}")
    e(f"s_lshl_b32 s{S_T2}, s{S_T0}, 13")
    e(f"v_add_u32 v{V_AX}, s{S_T2}, v{T+5}")
    e(f"v_xor_b32 v{V_AX+1}, 64, v{V_AX}")
    for z in (1, 2):
        for s in range(2):
            e(f"v_add_u32 v{V_AX+2*z+s}, {65536*z}, v{V_AX+s}")
    e(f"v_xor_b32 v{T+5}, v{T+1}, v{T}")
    e(f"v_lshlrev_b32 v{T+5}, 4, v{T+5}")
    e(f"v_lshl_add_u32 v{T+5}, v{T+2}, 8, v{T+5}")
    e(f"v_add_u32 v{V_RW}, s{S_M0W2}, v{T+5}")
    e(f"v_xor_b32 v{V_RW+1}, 64, v{V_RW}")
    e(f"s_lshl_b32 s{S_T2}, s{S_WAVE}, 2")
    e(f"v_add_u32 v{T+5}, s{S_T2}, v{T}")
    e(f"v_and_b32 v{T+6}, 7, v{T+5}")
    e(f"v_xor_b32 v{T+6}, v{T+6}, v{T+2}")
    e(f"v_lshlrev_b32 v{T+6}, 4, v{T+6}")
    e(f"v_lshl_add_u32 v{V_RR}, v{T+5}, 8, v{T+6}")
    e(f"v_lshlrev_b32 v{T+6}, 3, v{T+2}")
    e(f"v_lshl_add_u32 v{V_OUT}, v{T+5}, 10, v{T+6}")
    e(f"v_bfe_u32 v{T+2}, v{L}, 2, 2")
    e(f"v_and_b32 v{T+4}, 3, v{L}")
    e(f"v_lshlrev_b32 v{T+4}, 3, v{T+4}")
    e(f"v_and_b32 v{T+5}, 1, v{T}")
    e(f"v_lshl_add_u32 v{T+5}, v{T+5}, 2, v{T+2}")
    e(f"s_lshl_b32 s{S_T2}, s{S_T1}, 2")
    e(f"v_xor_b32 v{T+5}, s{S_T2}, v{T+5}")
    e(f"v_lshl_add_u32 v{T+5}, v{T+5}, 5, v{T+4}")
    e(f"v_lshl_add_u32 v{T+6}, v{T}, 3, v{T+2}")
    e(f"v_lshl_add_u32 v{V_AW1}, v{T+6}, 8, v{T+5}")
    for p in range(1, 4):
        e(f"v_xor_b32 v{V_AW1+p}, {32*p}, v{V_AW1}")
    for z in (1, 2):
        for p in range(4):
            e(f"v_add_u32 v{V_AW1+4*z+p}, {65536*z}, v{V_AW1+p}")
    e(f"v_lshl_add_u32 v{T+6}, v{T}, 2, v{T+2}")
    e(f"v_bfe_u32 v{T+5}, v{T+6}, 1, 2")
    e(f"v_lshl_add_u32 v{T+5}, v{T+5}, 5, v{T+4}")
    e(f"v_lshl_add_u32 v{T+5}, v{T+6}, 7, v{T+5}")
    e(f"v_add_u32 v{V_AW2}, s{S_M0W2}, v{T+5}")
    for p in range(1, 4):
        e(f"v_xor_b32 v{V_AW2+p}, {32*p}, v{V_AW2}")
    for z in (1, 2):
        for p in range(4):
            e(f"v_add_u32 v{V_AW2+4*z+p}, {65536*z}, v{V_AW2+p}")
    e(f"s_lshl_b32 s5, s{S_XCD}, 2")
    e(f"s_add_u32 s{S_T0}, s{S_Q}, s5")
    e(f"s_lshr_b32 s4, s{S_I}, 2")
    e(f"s_cmp_ge_u32 s4, 3")
    e(f"s_addc_u32 s{S_T1}, s4, 0")
    e(f"s_cmp_eq_u32 s4, 7")
    e(f"s_cselect_b32 s{S_T1}, 3, s{S_T1}")
    e(f"s_lshr_b32 s4, s{S_T1}, 1")
    e(f"s_add_u32 s4, s4, s{S_Q}")
    e(f"s_and_b32 s{S_T2}, s4, 3")
    e(f"s_and_b32 s{S_QROT}, s{S_T1}, {o.qmask}")
    e(f"s_mul_i32 s{S_T3}, s{S_WAVE}, 7")
    for b in range(7):
        if b < 5:
            e(f"s_add_u32 s5, s{S_T2}, {b}")
            e(f"s_cmp_ge_u32 s5, 5")
            e(f"s_cselect_b32 s6, -3, 2")
            e(f"s_add_u32 s5, s5, s6")
            e(f"s_add_u32 s5, s5, s{S_T3}")
        else:
            e(f"s_add_u32 s5, s{S_T3}, {b-5}")
        e(f"s_lshl_b32 s{S_UW+b}, s5, 16")
        e(f"s_lshl_b32 s{S_U+b}, s5, 11")
    e(f"v_lshlrev_b32 v{T+2}, 1, v{T}")
    e(f"v_xor_b32 v{T+2}, v{T+1}, v{T+2}")
    e(f"v_lshlrev_b32 v{T+2}, 4, v{T+2}")
    e(f"v_lshl_add_u32 v{T+2}, v{T+3}, 10, v{T+2}")
    e(f"s_lshl_b32 s{S_T2}, s{S_T1}, 7")
    e(f"v_add_u32 v{V_OW2}, s{S_T2}, v{T+2}")
    for j in range(1, 4):
        e(f"v_add_u32 v{V_OW2+j}, {7168*j}, v{V_OW2}")
    e(f"s_lshl_b32 s{S_T3}, s{S_T0}, 16")
    e(f"s_add_u32 s{S_T2}, s{S_T2}, s{S_T3}")
    e(f"v_add_u32 v{V_OUT}, s{S_T2}, v{V_OUT}")
    e(f"s_lshl_b32 s{S_T2}, s{S_T0}, 2")
    for Q in range(4):
        e(f"s_add_u32 s4, s{S_QROT}, {Q}")
        e(f"s_and_b32 s4, s4, 3")
        e(f"s_add_u32 s4, s4, s{S_T2}")
        e(f"s_mul_i32 s4, s4, {RHO}")
        e(f"v_lshl_add_u32 v{V_H+Q}, v{L}, 4, s4")
    e(f"s_add_u32 s{S_T2}, s{S_T2}, s{S_WAVE}")
    e(f"s_lshl_b32 s{S_T2}, s{S_T2}, 7")
    e(f"s_add_u32 s{S_T2}, s{S_T2}, {hex(FLAGS_OFF)}")
    e(f"s_add_u32 s{S_PA}, s14, s{S_T2}")
    e(f"s_addc_u32 s{S_PA+1}, s15, 0")
    e(f"s_load_dword s10, s[{S_PA}:{S_PA+1}], 0 glc")
    e(f"s_cmp_ge_u32 s{S_I}, 28")
    e("s_cbranch_scc1 L_idle")
    g.stamp("setup")
    rest = dma_c(1, 1)[3:]
    rest[0] = [f"s_add_u32 m0, s{S_M0A}, {slot_base(1)}", "s_nop 0"] + rest[0]
    g.es(flat(rest))

    def hload(i):
        Q, p = divmod(i, 14)
        b, kp = divmod(p, 2)
        d = V_HR + 4 * (i % NB)
        return f"buffer_load_dwordx4 v[{d}:{d+3}], v{V_H+Q}, s[{S_WS}:{S_WS+3}], s{S_U+b} offen offset:{kp*1024} sc1"

    def p2_mfma(i):
        Q, p = divmod(i, 14)
        h = V_HR + 4 * (i % NB)
        r = []
        for nu in (range(4) if i % 2 == 0 else range(3, -1, -1)):
            a = V_ACC + (Q * 4 + nu) * 4
            w = (p * 4 + nu) * 4
            c = "0" if p == 0 else f"v[{a}:{a+3}]"
            r.append(f"{MF} v[{a}:{a+3}], a[{w}:{w+3}], v[{h}:{h+3}], {c}")
        return r

    def producer(tag, stream):
        emit_p1(g, tag, stream)
        e("s_barrier")
        last = stream.index(('c', 7))
        it = [(stream[p][1], p) for p in range(last + 1, 15)]
        g.es(flat(dma_w(*it[2])))
        e("s_waitcnt vmcnt(24) lgkmcnt(4)")
        emit_tr(g, *it[0])
        e("s_waitcnt vmcnt(16) lgkmcnt(4)")
        emit_tr(g, *it[1])
        e("s_waitcnt vmcnt(8) lgkmcnt(0)")
        emit_flag(g)
        n = len(it)
        g.es(flat(dma_w(*it[3])))
        for k in range(2, n - 2):
            g.es(flat(dma_w(*it[k + 2])))
            e("s_waitcnt vmcnt(16) lgkmcnt(4)")
            emit_tr(g, *it[k])
        g.stamp("poll1")
        emit_poll(g, tag)
        g.stamp("ready")
        for i in range(D):
            e(hload(i))
        e(f"s_waitcnt vmcnt({D+8})")
        emit_tr(g, *it[n - 2])
        e(f"s_waitcnt vmcnt({D}) lgkmcnt(4)")
        g.stamp("wl6")
        emit_tr(g, *it[n - 1])

    C = [('c', t) for t in range(8)]
    W = [('w', b) for b in (5, 6, 1, 2, 3, 4)]
    if o.ins2:
        e(f"s_bitcmp1_b32 s{S_I}, 0")
        e("s_cbranch_scc1 L_path2")
    producer("U", C[:o.ins] + [('w', 0)] + C[o.ins:] + W)
    g.lab("L_p2")

    def img(Q):
        return 32768 * (Q >> 1) + 4096 * (Q & 1)

    def red_write(Q):
        return [f"ds_write_b128 v{V_RW+(nu&1)}, v[{V_ACC+(Q*4+nu)*4}:{V_ACC+(Q*4+nu)*4+3}] offset:{img(Q) + 128*(nu>>1)}"
                for nu in range(4)]

    def red_read(Q):
        return [f"ds_read_b128 v[{V_RD+4*w}:{V_RD+4*w+3}], v{V_RR} offset:{img(Q) + 8192*w}" for w in range(4)]

    def red_sum(Q):
        r = []
        for j in range(4):
            r.append(f"v_add_f32 v{V_RD+j}, v{V_RD+j}, v{V_RD+4+j}")
        for j in range(4):
            r.append(f"v_add_f32 v{V_RD+8+j}, v{V_RD+8+j}, v{V_RD+12+j}")
        for j in range(4):
            r.append(f"v_add_f32 v{V_RD+j}, v{V_RD+j}, v{V_RD+8+j}")
        for j in range(2):
            r.append(f"v_cvt_pk_bf16_f32 v{V_RES+2*Q+j}, v{V_RD+2*j}, v{V_RD+2*j+1}")
        return r

    def out_store(Q):
        return f"buffer_store_dwordx2 v[{V_RES+2*Q}:{V_RES+2*Q+1}], v{V_OUT}, s[{S_OUT}:{S_OUT+3}], s{S_T0+Q} offen {o.outflag}"

    extra = {}

    def put(i, l):
        extra.setdefault(i, []).extend(l)
    for Q in range(3):
        b = 14 * (Q + 1)
        w = red_write(Q)
        put(b + 1, w[0:2])
        put(b + 2, w[2:4])
        put(b + 5, ["s_waitcnt lgkmcnt(0)", "s_barrier"] + red_read(Q))
        s = red_sum(Q)
        put(b + 8, ["s_waitcnt lgkmcnt(0)"] + s[0:4])
        put(b + 9, s[4:8])
        put(b + 10, s[8:12])
        put(b + 11, s[12:14])
    for Q in range(4):
        put(4 + Q, [f"s_add_u32 s{S_T0+Q}, s{S_QROT}, {Q}", f"s_and_b32 s{S_T0+Q}, s{S_T0+Q}, 3",
                    f"s_lshl_b32 s{S_T0+Q}, s{S_T0+Q}, 14"])
    for i in range(56):
        issued = min(56, i + D)
        wait = f"s_waitcnt vmcnt({issued - i - 1})"
        if i == 3:
            wait += " lgkmcnt(0)"
        e(wait)
        m = p2_mfma(i)
        x = extra.get(i, [])
        gaps = [[hload(i + D)] if i + D < 56 else [], x[0:2], x[2:4], x[4:]]
        grp(g, m, gaps)
        g.stamp(f"h{i}")
    g.stamp("loopend")
    w = red_write(3)[::-1]
    e("s_nop 4")
    g.es(w)
    e("s_waitcnt lgkmcnt(0)")
    e("s_barrier")
    g.es(red_read(3))
    for Q in range(3):
        e(out_store(Q))
    e("s_waitcnt lgkmcnt(0)")
    g.es(red_sum(3))
    e(out_store(3))
    if o.stamps:
        e("s_waitcnt vmcnt(0)")
        g.stamp("final")
        e("s_waitcnt lgkmcnt(0)")
        if o.probe:
            pa, pb, pwg = [int(x) for x in o.probe.split(",")]
            if pwg >= 0:
                e(f"s_cmp_lg_u32 s2, {pwg}")
                e("s_cbranch_scc1 L_end")
            if pwg == -2:
                e(f"s_cmp_ge_u32 s{S_I}, 28")
                e("s_cbranch_scc1 L_end")
            e(f"s_sub_u32 s{S_T0}, s{S_ST+2*pb}, s{S_NON if pa == 9 else S_ST+2*pa}")
            e(f"s_min_u32 s{S_T0}, s{S_T0}, 5000")
            e(f"s_mul_i32 s{S_T0}, s{S_T0}, 10")
            e(f"s_add_u32 s{S_T0}, s{S_T0}, s{S_ST+16}")
            g.lab("L_probe")
            e(f"s_memrealtime s[4:5]")
            e("s_waitcnt lgkmcnt(0)")
            e(f"s_sub_u32 s{S_T1}, s4, s{S_T0}")
            e(f"s_cmp_lt_i32 s{S_T1}, 0")
            e("s_cbranch_scc1 L_probe")
            e("s_endpgm")
        for n in range(9):
            e(f"v_mov_b32 v{96+n}, s{S_ST+2*n}")
        e(f"s_lshl_b32 s{S_T0}, s2, 8")
        e(f"s_lshl_b32 s{S_T1}, s{S_WAVE}, 6")
        e(f"s_add_u32 s{S_T0}, s{S_T0}, s{S_T1}")
        e(f"s_add_u32 s{S_T0}, s{S_T0}, {hex(STAMP_OFF)}")
        e("v_mov_b32 v108, 0")
        e("s_mov_b64 exec, 1")
        for n in range(3):
            e(f"buffer_store_dwordx4 v[{96+4*n}:{99+4*n}], v108, s[{S_WS}:{S_WS+3}], s{S_T0} offen offset:{16*n} sc1")
    g.lab("L_end")
    e("s_endpgm")

    g.lab("L_idle")
    e(f"v_lshlrev_b32 v{T+2}, 4, v{L}")
    e(f"s_mul_i32 s4, s{S_Q}, {448*1024}")
    if o.touch:
        nrow = (448 - 64 * o.npf) // 32
        e(f"s_mul_i32 s5, s{S_XCD}, {4*nrow}")
        e(f"s_mul_i32 s6, s{S_WAVE}, {nrow}")
        e(f"s_add_u32 s5, s5, s6")
        e(f"s_add_u32 s5, s5, {64*o.npf}")
        e(f"s_lshl_b32 s5, s5, 10")
        e(f"s_add_u32 s5, s5, s4")
        for k in range(nrow):
            if k and k % 4 == 0:
                e(f"s_add_u32 s5, s5, 4096")
            e(f"buffer_load_dwordx4 v[{V_ACC+4*k}:{V_ACC+4*k+3}], v{T+2}, s[{S_W2}:{S_W2+3}], s5 offen offset:{1024*(k%4)}")
    if o.idlesleep:
        e("s_waitcnt vmcnt(0)")
        for _ in range(o.idlesleep):
            e("s_sleep 8")
    if o.npf:
        e(f"s_lshl_b32 s5, s{S_WAVE}, 14")
        e(f"s_add_u32 s4, s4, s5")
        e(f"s_mov_b32 s7, 0")
        g.lab("L_pf")
        e(f"s_add_u32 s5, s7, s{S_XCD}")
        e(f"s_and_b32 s5, s5, 7")
        e(f"s_lshl_b32 s5, s5, 11")
        e(f"s_lshr_b32 s6, s7, 3")
        e(f"s_lshl_b32 s6, s6, 16")
        e(f"s_add_u32 s5, s5, s6")
        e(f"s_add_u32 s5, s5, s4")
        e(f"buffer_load_dwordx4 v[{V_ACC+56}:{V_ACC+59}], v{T+2}, s[{S_W2}:{S_W2+3}], s5 offen")
        e(f"buffer_load_dwordx4 v[{V_ACC+60}:{V_ACC+63}], v{T+2}, s[{S_W2}:{S_W2+3}], s5 offen offset:1024")
        e(f"s_waitcnt vmcnt(40)")
        e(f"s_add_u32 s7, s7, 1")
        e(f"s_cmp_lt_u32 s7, {8*o.npf}")
        e("s_cbranch_scc1 L_pf")
    seq = [0, 5, 6, 1, 2, 3, 4]
    e(nonce_load())
    g.es(flat(dma_w(seq[0], 0)))
    g.es(flat(dma_w(seq[1], 1)))
    for k in range(7):
        if k + 2 < 7:
            g.es(flat(dma_w(seq[k + 2], k + 2)))
        e(f"s_waitcnt vmcnt({8*min(2, 6-k)}) lgkmcnt(4)")
        emit_tr(g, seq[k], k)
    g.stamp("wl6")
    emit_nonce_check(g, "i")
    emit_poll(g, "I")
    g.stamp("ready")
    for i in range(D):
        e(hload(i))
    e("s_branch L_p2")

    if o.ins2:
        g.lab("L_path2")
        producer("V", C[:o.ins2] + [('w', 0)] + C[o.ins2:] + W)
        e("s_branch L_p2")
    g.lab("L_code_end")

    body = "\n".join(g.L)
    txt = HEADER + f""".amdgcn_target "amdgcn-amd-amdhsa--gfx950"
.text
.globl {KNAME}
.p2align 8
.type {KNAME},@function
{body}
.section .rodata,"a"
.p2align 6
.amdhsa_kernel {KNAME}
  .amdhsa_next_free_vgpr 512
  .amdhsa_next_free_sgpr 102
  .amdhsa_accum_offset 256
  .amdhsa_group_segment_fixed_size 0
  .amdhsa_kernarg_size 48
  .amdhsa_user_sgpr_count 2
  .amdhsa_user_sgpr_kernarg_segment_ptr 1
  .amdhsa_system_sgpr_workgroup_id_x 1
.end_amdhsa_kernel
"""
    return txt


def parse(argv):
    p = argparse.ArgumentParser()
    p.add_argument("-o", default=None)
    p.add_argument("--co", default=None)
    p.add_argument("--stamps", default="")
    p.add_argument("--rt", type=int, default=0)
    p.add_argument("--depth", type=int, default=12)
    p.add_argument("--nbuf", type=int, default=16)
    p.add_argument("--ins", type=int, default=4)
    p.add_argument("--ins2", type=int, default=6)
    p.add_argument("--rotsh", type=int, default=2)
    p.add_argument("--qmask", type=int, default=1)
    p.add_argument("--outflag", default="sc1")
    p.add_argument("--probe", default="")
    p.add_argument("--cpf", type=int, default=1)
    p.add_argument("--touch", type=int, default=1)
    p.add_argument("--npf", type=int, default=0)
    p.add_argument("--pat", type=int, default=1)
    p.add_argument("--idlesleep", type=int, default=0)
    return p.parse_args(argv)


if __name__ == "__main__":
    o = parse(sys.argv[1:])
    txt = gen(o)
    if o.o:
        open(o.o, "w").write(txt)
    if o.co:
        open(o.co + ".s", "w").write(txt + META)
        r = subprocess.run(["clang", "-x", "assembler", "-target", "amdgcn-amd-amdhsa",
                            "-mcpu=gfx950", o.co + ".s", "-o", o.co + ".co"], capture_output=True, text=True)
        if r.returncode:
            print(r.stderr[:4000])
            sys.exit(1)
```

```python
import sys, subprocess, argparse
from gen import HEADER, KNAME, META

FLAGS_OFF = 0x800000
STAMP_OFF = 0x8000000
RHO = 57344

S_X, S_W1, S_W2, S_OUT, S_DBG, S_WS = 16, 20, 24, 28, 32, 36
S_WAVE = 40
S_XCD = 41
S_I = 42
S_T0, S_T1, S_T2, S_T3 = 43, 44, 45, 46
S_M0A = 47
S_U = 48
S_M0W2 = 55
S_UW = 56
S_SPIN = 63
S_KX = 64
S_KW = 72
S_POLL = 64
S_NON = 80
S_PA = 82
S_ST = 84
S_Q = 3
S_FA = 8
S_QROT = 11

V_LANE = 1
V_OX = 2
V_OW1 = 6
V_OW2 = 10
V_H = 14
V_ZERO = 18
V_NON = 20
V_HST = 22
V_OUT = 23
V_RW = 24
V_RR = 26
V_ACC = 32
V_FR = 96
V_EP = 160
V_AX = 192
V_AW1 = 198
V_AW2 = 210
V_RES = 222
V_RD = 232
V_T = 232
V_HR = 96
NONCE_POS = 2
MF = "v_mfma_f32_16x16x32_bf16"


class G:
    def __init__(self, o):
        self.o = o
        self.L = []

    def e(self, s):
        self.L.append("    " + s)

    def es(self, l):
        for x in l:
            self.e(x)

    def lab(self, s):
        self.L.append(s + ":")

    def c(self, s):
        self.L.append("    ; " + s)

    def stamp(self, name):
        if not self.o.stamps:
            return
        names = self.o.stamps.split(",")
        if name == "final":
            idx = 8
        elif name in names[:8]:
            idx = names.index(name)
        else:
            return
        r = S_ST + 2 * idx
        self.e(f"s_memrealtime s[{r}:{r+1}]" if self.o.rt else f"s_memtime s[{r}:{r+1}]")


def srd(g, d, lo, nbytes):
    g.e(f"s_mov_b32 s{d}, s{lo}")
    g.e(f"s_mov_b32 s{d+1}, s{lo+1}")
    g.e(f"s_mov_b32 s{d+2}, {hex(nbytes)}")
    g.e(f"s_mov_b32 s{d+3}, 0x20000")


def slot_base(pos):
    return (pos % 5) * 32768


def zone(pos):
    s = pos % 5
    return s // 2, (s % 2) * 32768


def dma_c(t, pos):
    sb = slot_base(pos)
    out = []
    for vo, sr, so, add in ((V_OW1, S_W1, S_KW + t, 0), (V_OX, S_X, S_KX + t, 16384)):
        for j in range(4):
            ins = f"buffer_load_dwordx4 v{vo+j}, s[{sr}:{sr+3}], s{so} offen offset:{1024*j} lds"
            if j == 0:
                out.append([f"s_add_u32 m0, s{S_M0A}, {sb+add}", "s_nop 0", ins])
            else:
                out.append([ins])
    return out


def dma_w(b, pos):
    sb = slot_base(pos)
    out = []
    for half in range(2):
        for j in range(4):
            so = f"s{S_UW+b}" if half == 0 else f"s{S_T3}"
            ins = f"buffer_load_dwordx4 v{V_OW2+j}, s[{S_W2}:{S_W2+3}], {so} offen offset:{1024*j} lds"
            if j == 0:
                pre = [f"s_add_u32 m0, s{S_M0W2}, {sb + 4096*half}"]
                pre.append(f"s_add_u32 s{S_T3}, s{S_UW+b}, 32768" if half == 1 else "s_nop 0")
                out.append(pre + [ins])
            else:
                out.append([ins])
    return out


def flat(groups):
    return [x for gr in groups for x in gr]


def frA(s, phi):
    return V_FR + 32 * s + 4 * phi


def frB(s, rho):
    return V_FR + 32 * s + 16 + 4 * rho


def rdA(pos, s, phi):
    z, add = zone(pos)
    return [f"ds_read_b64_tr_b16 v[{frA(s,phi)+2*e}:{frA(s,phi)+2*e+1}], v{V_AW1+4*z+phi} offset:{add + (32*s+4*e)*256}"
            for e in range(2)]


def rdB(pos, s, rho):
    z, add = zone(pos)
    return [f"ds_read_b128 v[{frB(s,rho)}:{frB(s,rho)+3}], v{V_AX+2*z+s} offset:{add + 16384 + rho*2048}"]


def p1_reads(pos, sub):
    s, h = divmod(sub, 2)
    if h == 0:
        return rdA(pos, s, 0) + rdB(pos, s, 0) + rdB(pos, s, 1) + rdB(pos, s, 2) + rdB(pos, s, 3) + rdA(pos, s, 1)
    return rdA(pos, s, 2) + rdA(pos, s, 3)


def acc1(phi, rho):
    return V_ACC + (phi * 4 + rho) * 4


def p1_mfma(sub, first):
    s, h = divmod(sub, 2)
    r = []
    for k, phi in enumerate((2 * h, 2 * h + 1)):
        for rho in (range(4) if k == 0 else range(3, -1, -1)):
            a = acc1(phi, rho)
            A, B = frA(s, phi), frB(s, rho)
            c = "0" if first else f"v[{a}:{a+3}]"
            r.append(f"{MF} v[{a}:{a+3}], v[{A}:{A+3}], v[{B}:{B+3}], {c}")
    return r


def w2_tr(b, pos):
    z, add = zone(pos)
    r = []
    for kp in range(2):
        for nu in range(4):
            for e in range(2):
                d = ((b * 2 + kp) * 4 + nu) * 4 + 2 * e
                r.append(f"ds_read_b64_tr_b16 a[{d}:{d+1}], v{V_AW2+4*z+nu} offset:{add + (32*kp+16*e)*128}")
    return r


def emit_tr(g, b, pos):
    for i, x in enumerate(w2_tr(b, pos)):
        if i == 8:
            g.e("s_waitcnt lgkmcnt(4)")
        g.e(x)


def grp(g, mf, gaps):
    gaps = list(gaps) + [[]] * (len(mf) - len(gaps))
    for m, gp in zip(mf, gaps):
        if m:
            g.e(m)
        g.es(gp)


def poll_load():
    return f"s_load_dwordx16 s[{S_POLL}:{S_POLL+15}], s[{S_PA}:{S_PA+1}], 0 glc"


def emit_poll(g, tag, issued=False):
    e = g.e
    e(f"s_mov_b32 s{S_SPIN}, 0x40000")
    if issued:
        e(f"s_branch L_check_{tag}")
    g.lab(f"L_poll_{tag}")
    e(poll_load())
    e(f"s_sub_u32 s{S_SPIN}, s{S_SPIN}, 1")
    e(f"s_cbranch_scc1 L_ready_{tag}")
    g.lab(f"L_check_{tag}")
    e("s_waitcnt lgkmcnt(0)")
    for k in range(7):
        e(f"s_cmp_lg_u64 s[{S_POLL+2*k}:{S_POLL+2*k+1}], s[{S_NON}:{S_NON+1}]")
        e(f"s_cbranch_scc1 L_poll_{tag}")
    g.lab(f"L_ready_{tag}")


def nonce_load():
    return f"buffer_load_dwordx2 v[{V_NON}:{V_NON+1}], v{V_ZERO}, s[{S_DBG}:{S_DBG+3}], 0 offen sc1"


def emit_nonce_check(g, tag):
    e = g.e
    e(f"v_readfirstlane_b32 s{S_NON+1}, v{V_NON+1}")
    e(f"s_mov_b32 s{S_SPIN}, 0x40000")
    g.lab(f"L_non_{tag}")
    e(f"s_cmp_lg_u32 s{S_NON+1}, 0")
    e(f"s_cbranch_scc1 L_nonok_{tag}")
    e(nonce_load())
    e("s_waitcnt vmcnt(0)")
    e(f"v_readfirstlane_b32 s{S_NON+1}, v{V_NON+1}")
    e(f"s_sub_u32 s{S_SPIN}, s{S_SPIN}, 1")
    e(f"s_cbranch_scc0 L_non_{tag}")
    g.lab(f"L_nonok_{tag}")
    e(f"v_readfirstlane_b32 s{S_NON}, v{V_NON}")


def epi(h, rho):
    d = V_EP + 4 * (4 * h + rho)
    r = []
    for k in range(2):
        a = acc1(2 * h + k, rho)
        r.append(f"v_cvt_pk_bf16_f32 v{d+2*k}, v{a}, v{a+1}")
        r.append(f"v_cvt_pk_bf16_f32 v{d+2*k+1}, v{a+2}, v{a+3}")
    for jj in range(4):
        r.append(f"v_pk_max_i16 v{d+jj}, v{d+jj}, 0")
    so = "0" if rho == 0 else f"s{S_T0+rho-1}"
    r.append(f"buffer_store_dwordx4 v[{d}:{d+3}], v{V_HST}, s[{S_WS}:{S_WS+3}], {so} offen offset:{1024*h} sc1")
    return r


def emit_p1(g, tag, stream):
    e = g.e
    last = stream.index(('c', 7))
    pending = False
    for p in range(last + 1):
        kind, idx = stream[p]
        g.c(f"---- {tag} pos {p}: {kind}{idx}")
        e(f"s_waitcnt vmcnt({9 if p == NONCE_POS + 1 else 8}) lgkmcnt(0)")
        e("s_barrier")
        g.stamp(f"bar{kind}{idx}")
        nk, ni = stream[p + 2]
        f = dma_c(ni, p + 2) if nk == 'c' else dma_w(ni, p + 2)
        if p == last and g.o.npre < 2:
            f = [["s_nop 0"]] + [[]] * 3 + [["s_nop 0"]] + [[]] * 3
        m3 = p1_mfma(3, False) if pending else [None] * 8
        pat = g.o.pat
        if kind == 'c' and pat == 0:
            R = [p1_reads(p, k) for k in range(4)]
            grp(g, m3, [R[0][0:2], R[0][2:4], R[0][4:6], R[0][6:8], R[1][0:2], R[1][2:4], [], f[0]])
            e("s_waitcnt lgkmcnt(4)")
            grp(g, p1_mfma(0, idx == 0), [R[2][0:2], R[2][2:4], R[2][4:6], R[2][6:8], f[1], [], f[2], []])
            e("s_waitcnt lgkmcnt(8)")
            if idx < 7:
                grp(g, p1_mfma(1, idx == 0), [R[3][0:2], R[3][2:4], f[3], [], f[4], [], [], f[5]])
                e("s_waitcnt lgkmcnt(4)")
                grp(g, p1_mfma(2, False), [[], [], f[6], [], [], [], f[7], []])
            else:
                grp(g, p1_mfma(1, False), [R[3][0:2], R[3][2:4], f[3], f[4], f[5], f[6], f[7], []])
            pending = True
        elif kind == 'c' and pat in (1, 3, 4):
            R = [[[x] for x in p1_reads(p, k)] for k in range(4)]
            a0, a4 = [], []
            if g.o.m0early:
                f = [list(x) for x in f]
                a0 = [x for x in f[0][:-1] if x != "s_nop 0"]
                a4 = [x for x in f[4][:-1] if x != "s_nop 0"]
                f[0], f[4] = f[0][-1:], f[4][-1:]
            if pat == 4:
                grp(g, m3, [R[0][0] + R[0][1], R[0][2] + R[0][3], R[0][4], R[0][5], R[0][6], R[0][7], a0,
                            f[0] if pending else ["s_nop 0"] + f[0]])
                e("s_waitcnt lgkmcnt(2)")
                m0 = p1_mfma(0, idx == 0)
                grp(g, m0[0:4], [R[1][0], R[1][1], R[1][2], R[1][3]])
                e("s_waitcnt lgkmcnt(4)")
                grp(g, m0[4:8], [R[2][0] + f[1], R[2][1], R[2][2], R[2][3] + f[2]])
            elif pat == 1:
                grp(g, m3, [R[0][0] + R[0][1], R[0][2] + R[0][3], R[0][4], R[0][5], R[0][6], R[0][7], a0,
                            f[0] if pending else ["s_nop 0"] + f[0]])
                e("s_waitcnt lgkmcnt(0)")
                grp(g, p1_mfma(0, idx == 0), [R[1][0], R[1][1], R[1][2], R[1][3], R[2][0] + f[1], R[2][1], R[2][2], R[2][3] + f[2]])
            else:
                grp(g, m3, [R[0][0] + R[0][1], R[0][2], R[0][3], R[0][4], R[0][5], R[0][6], R[0][7], f[0]])
                e("s_waitcnt lgkmcnt(2)")
                m0 = p1_mfma(0, idx == 0)
                grp(g, m0[0:4], [R[1][0], R[1][1], R[1][2], R[1][3]])
                e("s_waitcnt lgkmcnt(4)")
                grp(g, m0[4:8], [R[2][0] + f[1], R[2][1], R[2][2], R[2][3] + f[2]])
            e("s_waitcnt lgkmcnt(4)")
            if idx < 7:
                grp(g, p1_mfma(1, idx == 0), [R[2][4], R[2][5], R[2][6] + f[3], R[2][7], R[3][0] + a4, R[3][1] + f[4], R[3][2], R[3][3]])
                e("s_waitcnt lgkmcnt(4)")
                grp(g, p1_mfma(2, False), [f[5], [], [], f[6], [], [], f[7], []])
            else:
                grp(g, p1_mfma(1, False), [R[2][4] + f[3] + a4, R[2][5] + f[4], R[2][6] + f[5], R[2][7] + f[6], R[3][0] + f[7], R[3][1], R[3][2], R[3][3]])
            pending = True
        elif kind == 'c' and pat == 2:
            R = [[[x] for x in p1_reads(p, k)] for k in range(4)]
            m2 = p1_mfma(2, False) if pending else [None] * 8
            grp(g, m2, R[0][0:7] + [R[0][7] + f[0]])
            grp(g, m3, R[1][0:4] + [f[1], [], f[2], []])
            e("s_waitcnt lgkmcnt(4)" if pending else "s_waitcnt lgkmcnt(4)")
            grp(g, p1_mfma(0, idx == 0), [R[2][0], R[2][1], R[2][2] + f[3], R[2][3], R[2][4], R[2][5], R[2][6] + f[4], R[2][7]])
            e("s_waitcnt lgkmcnt(8)")
            grp(g, p1_mfma(1, idx == 0), R[3][0:4] + [f[5], f[6], [], f[7]])
            pending = True
        else:
            T = w2_tr(idx, p)
            if pat == 2 and pending:
                g.es(p1_mfma(2, False))
            grp(g, m3, [T[0:2], T[2:4], T[4:6], T[6:8], T[8:10], T[10:12]])
            e("s_waitcnt lgkmcnt(4)")
            g.es(T[12:16])
            g.es(flat(f))
            pending = False
        if p == NONCE_POS:
            e(nonce_load())
    g.c(f"---- {tag} P1 tail")
    e("s_waitcnt lgkmcnt(4)")
    m2, m3 = p1_mfma(2, False), p1_mfma(3, False)
    g.es(m2[0:4])
    emit_nonce_check(g, tag)
    for k in range(3):
        e(f"s_mov_b32 s{S_T0+k}, {RHO*(k+1)}")
    g.es(m2[4:8])
    e("s_waitcnt lgkmcnt(0)")
    g.stamp("bar8")
    E0 = epi(0, 3) + epi(0, 2) + epi(0, 1) + epi(0, 0)
    g.es(m3[0:2])
    e("s_nop 2")
    grp(g, m3[2:8], [E0[0:3], E0[3:6], E0[6:9], E0[9:12], E0[12:15], E0[15:18]])
    g.es(E0[18:])
    g.es(epi(1, 3) + epi(1, 2) + epi(1, 1) + epi(1, 0))
    g.stamp("Hst")


def emit_flag(g):
    g.e(f"s_atomic_swap_x2 s[{S_NON}:{S_NON+1}], s[{S_FA}:{S_FA+1}], 0")
    g.stamp("flag")


def gen(o):
    g = G(o)
    e = g.e
    D = o.depth
    NB = o.nbuf
    L = V_LANE
    T = V_T
    g.lab(KNAME)
    g.stamp("entry")
    e("s_load_dwordx8 s[4:11], s[0:1], 0")
    e("s_load_dwordx4 s[12:15], s[0:1], 32")
    e(f"s_memrealtime s[{S_PA}:{S_PA+1}]")
    e("s_cmp_ge_u32 s2, 256")
    e("s_cbranch_scc1 L_end")
    e(f"v_lshrrev_b32 v{T}, 6, v0")
    e(f"v_and_b32 v{L}, 63, v0")
    e(f"s_and_b32 s{S_XCD}, s2, 7")
    e(f"v_readfirstlane_b32 s{S_WAVE}, v{T}")
    e(f"s_lshr_b32 s{S_I}, s2, 3")
    if o.cpf:
        e(f"s_cmp_lt_u32 s{S_I}, 31")
        e("s_cbranch_scc1 L_nocpf")
        e("s_getpc_b64 s[20:21]")
        g.lab("L_pc")
        e(f"v_lshlrev_b32 v{V_ACC}, 7, v0")
        e(f"v_mov_b32 v{V_ACC+3}, s21")
        e(f"v_add_co_u32 v{V_ACC+2}, vcc, s20, v{V_ACC}")
        e("s_nop 1")
        e(f"v_addc_co_u32 v{V_ACC+3}, vcc, 0, v{V_ACC+3}, vcc")
        e(f"v_cmp_gt_u32 vcc, L_code_end-L_pc, v{V_ACC}")
        e("s_and_saveexec_b64 s[22:23], vcc")
        e("s_cbranch_execz L_cpf_done")
        e(f"global_load_dword v{V_ACC+1}, v[{V_ACC+2}:{V_ACC+3}], off")
        g.lab("L_cpf_done")
        e("s_mov_b64 exec, s[22:23]")
        g.lab("L_nocpf")
    e(f"s_and_b32 s{S_Q}, s{S_I}, 3")
    e(f"s_lshr_b32 s{S_T1}, s{S_I}, 2")
    e(f"s_add_u32 s{S_T2}, s{S_Q}, s{S_T1}")
    e(f"s_lshl_b32 s{S_T2}, s{S_T2}, {o.rotsh}")
    e(f"s_and_b32 s{S_T3}, s{S_XCD}, 6")
    e(f"s_lshl_b32 s{S_T3}, s{S_T3}, 1")
    e(f"s_add_u32 s{S_U}, s{S_Q}, s{S_T3}")
    e(f"s_and_b32 s{S_T3}, s{S_XCD}, 1")
    e(f"s_mul_i32 s{S_T3}, s{S_T3}, 7")
    e(f"s_add_u32 s{S_SPIN}, s{S_T1}, s{S_T3}")
    e(f"s_lshl_b32 s{S_T0}, s{S_U}, 17")
    e(f"s_lshl_b32 s{S_T1}, s{S_SPIN}, 8")

    def kofs(t):
        e(f"s_add_u32 s{S_T3}, s{S_T2}, {t}")
        e(f"s_and_b32 s{S_T3}, s{S_T3}, 7")
        e(f"s_mul_i32 s{S_KW+t}, s{S_T3}, {64*3584}")
        e(f"s_lshl_b32 s{S_T3}, s{S_T3}, 7")
        e(f"s_add_u32 s{S_KX+t}, s{S_T3}, s{S_T0}")
        e(f"s_add_u32 s{S_KW+t}, s{S_KW+t}, s{S_T1}")
    kofs(0)
    kofs(1)
    e(f"s_lshl_b32 s{S_M0A}, s{S_WAVE}, 12")
    e(f"s_lshl_b32 s{S_M0W2}, s{S_WAVE}, 13")
    e(f"v_lshrrev_b32 v{T}, 4, v{L}")
    e(f"v_and_b32 v{T+1}, 15, v{L}")
    e(f"v_lshlrev_b32 v{T+2}, 1, v{T}")
    e(f"v_xor_b32 v{T+1}, v{T+1}, v{T+2}")
    e(f"v_lshlrev_b32 v{T+1}, 4, v{T+1}")
    e(f"s_lshl_b32 s{S_T3}, s{S_WAVE}, 4")
    e(f"v_add_u32 v{T+2}, s{S_T3}, v{T}")
    e(f"v_mul_u32_u24 v{T+2}, 3584, v{T+2}")
    e(f"v_add_u32 v{V_OW1}, v{T+1}, v{T+2}")
    e(f"v_xor_b32 v{T+1}, 128, v{T+1}")
    e(f"v_add_u32 v{T+1}, v{T+1}, v{T+2}")
    e(f"v_add_u32 v{V_OW1+1}, 13312, v{V_OW1}")
    e(f"v_add_u32 v{V_OW1+2}, {13312*2}, v{T+1}")
    e(f"v_add_u32 v{V_OW1+3}, {13312*3}, v{T+1}")
    e(f"v_and_b32 v{T+1}, 7, v{L}")
    e(f"v_xor_b32 v{T+2}, v{T+1}, v{T}")
    e(f"v_lshlrev_b32 v{T+2}, 4, v{T+2}")
    e(f"v_lshrrev_b32 v{T+3}, 3, v{L}")
    e(f"s_lshl_b32 s{S_T3}, s{S_WAVE}, 15")
    e(f"v_lshl_add_u32 v{T+4}, v{T+3}, 10, s{S_T3}")
    e(f"v_add_u32 v{V_OX}, v{T+4}, v{T+2}")
    e(f"v_xor_b32 v{T+2}, 64, v{T+2}")
    e(f"v_add_u32 v{T+2}, v{T+4}, v{T+2}")
    e(f"v_add_u32 v{V_OX+1}, 7168, v{T+2}")
    e(f"v_add_u32 v{V_OX+2}, {7168*2}, v{V_OX}")
    e(f"v_add_u32 v{V_OX+3}, {7168*3}, v{T+2}")
    e("s_waitcnt lgkmcnt(0)")
    g.stamp("karg")
    srd(g, S_W1, 6, 512 * 1792 * 2)
    srd(g, S_X, 4, 2048 * 512 * 2)
    e(f"s_cmp_ge_u32 s{S_I}, 28")
    e("s_cbranch_scc1 L_early_idle")
    g.es(flat(dma_c(0, 0)))
    g.es(flat(dma_c(1, 1)[:3]))
    g.stamp("dma0")
    g.lab("L_setup2")
    srd(g, S_DBG, 12, 256)
    e(f"v_mov_b32 v{V_ZERO}, 0")
    e(f"s_or_b32 s{S_T3}, s2, s{S_WAVE}")
    e(f"s_cmp_lg_u32 s{S_T3}, 0")
    e("s_cbranch_scc1 L_nonce_done")
    e(f"s_or_b32 s{S_PA+1}, s{S_PA+1}, 0x80000000")
    e(f"s_atomic_swap_x2 s[{S_PA}:{S_PA+1}], s[12:13], 0")
    e("s_waitcnt lgkmcnt(0)")
    g.lab("L_nonce_done")
    for t in range(2, 8):
        kofs(t)
    srd(g, S_W2, 8, 512 * 1792 * 2)
    srd(g, S_OUT, 10, 2048 * 512 * 2)
    srd(g, S_WS, 14, 0x10000000)
    e(f"s_lshr_b32 s{S_T0}, s{S_WAVE}, 1")
    e(f"s_and_b32 s{S_T1}, s{S_WAVE}, 1")
    e(f"s_lshl_b32 s{S_T2}, s{S_U}, 1")
    e(f"s_add_u32 s{S_T2}, s{S_T2}, s{S_T0}")
    e(f"s_lshl_b32 s{S_T3}, s{S_SPIN}, 1")
    e(f"s_add_u32 s{S_T3}, s{S_T3}, s{S_T1}")
    e(f"s_mul_i32 s4, s{S_T3}, 37")
    e(f"s_lshr_b32 s4, s4, 8")
    e(f"s_mul_i32 s5, s4, 7")
    e(f"s_sub_u32 s5, s{S_T3}, s5")
    e(f"s_lshl_b32 s6, s{S_T2}, 2")
    e(f"s_add_u32 s4, s4, s6")
    e(f"s_lshl_b32 s4, s4, 7")
    e(f"s_lshl_b32 s5, s5, 3")
    e(f"s_add_u32 s4, s4, s5")
    e(f"s_add_u32 s4, s4, {hex(FLAGS_OFF)}")
    e(f"s_add_u32 s{S_FA}, s14, s4")
    e(f"s_addc_u32 s{S_FA+1}, s15, 0")
    e(f"s_mul_i32 s{S_T2}, s{S_T2}, {4*RHO}")
    e(f"s_lshl_b32 s{S_T3}, s{S_T3}, 11")
    e(f"s_add_u32 s{S_T2}, s{S_T2}, s{S_T3}")
    e(f"v_lshl_add_u32 v{V_HST}, v{L}, 4, s{S_T2}")
    e(f"v_and_b32 v{T+2}, 15, v{L}")
    e(f"v_lshrrev_b32 v{T+5}, 1, v{T+2}")
    e(f"v_xor_b32 v{T+5}, v{T+5}, v{T}")
    e(f"v_lshlrev_b32 v{T+5}, 4, v{T+5}")
    e(f"v_lshl_add_u32 v{T+5}, v{T+2}, 7, v{T+5}")
    e(f"s_lshl_b32 s{S_T2}, s{S_T0}, 13")
    e(f"v_add_u32 v{V_AX}, s{S_T2}, v{T+5}")
    e(f"v_xor_b32 v{V_AX+1}, 64, v{V_AX}")
    for z in (1, 2):
        for s in range(2):
            e(f"v_add_u32 v{V_AX+2*z+s}, {65536*z}, v{V_AX+s}")
    e(f"v_xor_b32 v{T+5}, v{T+1}, v{T}")
    e(f"v_lshlrev_b32 v{T+5}, 4, v{T+5}")
    e(f"v_lshl_add_u32 v{T+5}, v{T+2}, 8, v{T+5}")
    e(f"v_add_u32 v{V_RW}, s{S_M0W2}, v{T+5}")
    e(f"v_xor_b32 v{V_RW+1}, 64, v{V_RW}")
    e(f"s_lshl_b32 s{S_T2}, s{S_WAVE}, 2")
    e(f"v_add_u32 v{T+5}, s{S_T2}, v{T}")
    e(f"v_and_b32 v{T+6}, 7, v{T+5}")
    e(f"v_xor_b32 v{T+6}, v{T+6}, v{T+2}")
    e(f"v_lshlrev_b32 v{T+6}, 4, v{T+6}")
    e(f"v_lshl_add_u32 v{V_RR}, v{T+5}, 8, v{T+6}")
    e(f"v_lshlrev_b32 v{T+6}, 3, v{T+2}")
    e(f"v_lshl_add_u32 v{V_OUT}, v{T+5}, 10, v{T+6}")
    e(f"v_bfe_u32 v{T+2}, v{L}, 2, 2")
    e(f"v_and_b32 v{T+4}, 3, v{L}")
    e(f"v_lshlrev_b32 v{T+4}, 3, v{T+4}")
    e(f"v_and_b32 v{T+5}, 1, v{T}")
    e(f"v_lshl_add_u32 v{T+5}, v{T+5}, 2, v{T+2}")
    e(f"s_lshl_b32 s{S_T2}, s{S_T1}, 2")
    e(f"v_xor_b32 v{T+5}, s{S_T2}, v{T+5}")
    e(f"v_lshl_add_u32 v{T+5}, v{T+5}, 5, v{T+4}")
    e(f"v_lshl_add_u32 v{T+6}, v{T}, 3, v{T+2}")
    e(f"v_lshl_add_u32 v{V_AW1}, v{T+6}, 8, v{T+5}")
    for p in range(1, 4):
        e(f"v_xor_b32 v{V_AW1+p}, {32*p}, v{V_AW1}")
    for z in (1, 2):
        for p in range(4):
            e(f"v_add_u32 v{V_AW1+4*z+p}, {65536*z}, v{V_AW1+p}")
    e(f"v_lshl_add_u32 v{T+6}, v{T}, 2, v{T+2}")
    e(f"v_bfe_u32 v{T+5}, v{T+6}, 1, 2")
    e(f"v_lshl_add_u32 v{T+5}, v{T+5}, 5, v{T+4}")
    e(f"v_lshl_add_u32 v{T+5}, v{T+6}, 7, v{T+5}")
    e(f"v_add_u32 v{V_AW2}, s{S_M0W2}, v{T+5}")
    for p in range(1, 4):
        e(f"v_xor_b32 v{V_AW2+p}, {32*p}, v{V_AW2}")
    for z in (1, 2):
        for p in range(4):
            e(f"v_add_u32 v{V_AW2+4*z+p}, {65536*z}, v{V_AW2+p}")
    e(f"s_lshl_b32 s5, s{S_XCD}, 2")
    if o.el:
        e(f"s_and_b32 s4, s{S_Q}, 1")
        e(f"s_xor_b32 s4, s4, 1")
        e(f"s_lshl_b32 s4, s4, 1")
        e(f"s_add_u32 s5, s5, s4")
        e(f"s_lshr_b32 s4, s{S_Q}, 1")
        e(f"s_add_u32 s{S_T0}, s4, s5")
    else:
        e(f"s_add_u32 s{S_T0}, s{S_Q}, s5")
    e(f"s_lshr_b32 s4, s{S_I}, 2")
    e(f"s_cmp_ge_u32 s4, 3")
    e(f"s_addc_u32 s{S_T1}, s4, 0")
    e(f"s_cmp_eq_u32 s4, 7")
    e(f"s_cselect_b32 s{S_T1}, 3, s{S_T1}")
    e(f"s_lshr_b32 s4, s{S_T1}, 1")
    e(f"s_add_u32 s4, s4, s{S_Q}")
    e(f"s_and_b32 s{S_T2}, s4, 3")
    e(f"s_and_b32 s{S_QROT}, s{S_T1}, {o.qmask}")
    e(f"s_mul_i32 s{S_T3}, s{S_WAVE}, 7")
    for b in range(7):
        if o.el and b < 4:
            e(f"s_add_u32 s5, s{S_T2}, {b}")
            e(f"s_and_b32 s5, s5, 3")
            e(f"s_add_u32 s5, s5, s{S_T3}")
            e(f"s_add_u32 s5, s5, 2")
        elif o.el and b == 4:
            e(f"s_add_u32 s5, s{S_T3}, 6")
        elif b < 5:
            e(f"s_add_u32 s5, s{S_T2}, {b}")
            e(f"s_cmp_ge_u32 s5, 5")
            e(f"s_cselect_b32 s6, -3, 2")
            e(f"s_add_u32 s5, s5, s6")
            e(f"s_add_u32 s5, s5, s{S_T3}")
        else:
            e(f"s_add_u32 s5, s{S_T3}, {b-5}")
        e(f"s_lshl_b32 s{S_UW+b}, s5, 16")
        e(f"s_lshl_b32 s{S_U+b}, s5, 11")
    e(f"v_lshlrev_b32 v{T+2}, 1, v{T}")
    e(f"v_xor_b32 v{T+2}, v{T+1}, v{T+2}")
    e(f"v_lshlrev_b32 v{T+2}, 4, v{T+2}")
    e(f"v_lshl_add_u32 v{T+2}, v{T+3}, 10, v{T+2}")
    e(f"s_lshl_b32 s{S_T2}, s{S_T1}, 7")
    e(f"v_add_u32 v{V_OW2}, s{S_T2}, v{T+2}")
    for j in range(1, 4):
        e(f"v_add_u32 v{V_OW2+j}, {7168*j}, v{V_OW2}")
    e(f"s_lshl_b32 s{S_T3}, s{S_T0}, 16")
    e(f"s_add_u32 s{S_T2}, s{S_T2}, s{S_T3}")
    e(f"v_add_u32 v{V_OUT}, s{S_T2}, v{V_OUT}")
    e(f"s_lshl_b32 s{S_T2}, s{S_T0}, 2")
    for Q in range(4):
        e(f"s_add_u32 s4, s{S_QROT}, {Q}")
        e(f"s_and_b32 s4, s4, 3")
        e(f"s_add_u32 s4, s4, s{S_T2}")
        e(f"s_mul_i32 s4, s4, {RHO}")
        e(f"v_lshl_add_u32 v{V_H+Q}, v{L}, 4, s4")
    e(f"s_add_u32 s{S_T2}, s{S_T2}, s{S_WAVE}")
    e(f"s_lshl_b32 s{S_T2}, s{S_T2}, 7")
    e(f"s_add_u32 s{S_T2}, s{S_T2}, {hex(FLAGS_OFF)}")
    e(f"s_add_u32 s{S_PA}, s14, s{S_T2}")
    e(f"s_addc_u32 s{S_PA+1}, s15, 0")
    e(f"s_load_dword s10, s[{S_PA}:{S_PA+1}], 0 glc")
    e(f"s_cmp_ge_u32 s{S_I}, 28")
    e("s_cbranch_scc1 L_idle")
    g.stamp("setup")
    rest = dma_c(1, 1)[3:]
    rest[0] = [f"s_add_u32 m0, s{S_M0A}, {slot_base(1)}", "s_nop 0"] + rest[0]
    g.es(flat(rest))

    def hload(i):
        Q, p = divmod(i, 14)
        b, kp = divmod(p, 2)
        d = V_HR + 4 * (i % NB)
        return f"buffer_load_dwordx4 v[{d}:{d+3}], v{V_H+Q}, s[{S_WS}:{S_WS+3}], s{S_U+b} offen offset:{kp*1024} sc1"

    def hinit():
        for i in range(D):
            e(hload(i))
            if o.stage and (i + 1) % o.stage == 0 and i + 1 < D:
                e("s_barrier")

    def p2_mfma(i):
        Q, p = divmod(i, 14)
        h = V_HR + 4 * (i % NB)
        r = []
        for nu in (range(4) if i % 2 == 0 else range(3, -1, -1)):
            a = V_ACC + (Q * 4 + nu) * 4
            w = (p * 4 + nu) * 4
            c = "0" if p == 0 else f"v[{a}:{a+3}]"
            r.append(f"{MF} v[{a}:{a+3}], a[{w}:{w+3}], v[{h}:{h+3}], {c}")
        return r

    def producer(tag, stream):
        emit_p1(g, tag, stream)
        e("s_barrier")
        last = stream.index(('c', 7))
        it = [(stream[p][1], p) for p in range(last + 1, 15)]
        n = len(it)
        np_ = o.npre
        g.es(flat(dma_w(*it[np_])))
        for k in range(np_):
            e(f"s_waitcnt vmcnt({8*(np_-1-k)+16}) lgkmcnt(4)")
            emit_tr(g, *it[k])
        e("s_waitcnt vmcnt(8) lgkmcnt(0)")
        emit_flag(g)
        g.es(flat(dma_w(*it[np_ + 1])))
        k = np_
        while k + 2 < n:
            dm = dma_w(*it[k + 2])
            if o.apoll >= 0 and k + 3 == n:
                dm = dm[:o.apoll] + [[poll_load()]] + dm[o.apoll:]
            g.es(flat(dm))
            if n - k == o.pollk:
                break
            e("s_waitcnt vmcnt(16) lgkmcnt(4)")
            emit_tr(g, *it[k])
            k += 1
        g.stamp("poll1")
        emit_poll(g, tag, o.apoll >= 0)
        g.stamp("ready")
        if o.rbar:
            e("s_barrier")
        hinit()
        while k < n:
            e(f"s_waitcnt vmcnt({D+8*(n-1-k)}) lgkmcnt(4)")
            if k == n - 1:
                g.stamp("wl6")
            emit_tr(g, *it[k])
            k += 1

    C = [('c', t) for t in range(8)]
    W = [('w', b) for b in (5, 6, 1, 2, 3, 4)]
    if o.ins2:
        e(f"s_bitcmp1_b32 s{S_I}, 0")
        e("s_cbranch_scc1 L_path2")
    if o.el:
        producer("U", C + [('w', b) for b in (5, 6, 0, 1, 3, 2, 4)])
    else:
        producer("U", C[:o.ins] + [('w', 0)] + C[o.ins:] + W)
    g.lab("L_p2")

    def img(Q):
        return 32768 * (Q >> 1) + 4096 * (Q & 1)

    def red_write(Q):
        return [f"ds_write_b128 v{V_RW+(nu&1)}, v[{V_ACC+(Q*4+nu)*4}:{V_ACC+(Q*4+nu)*4+3}] offset:{img(Q) + 128*(nu>>1)}"
                for nu in range(4)]

    def red_read(Q):
        return [f"ds_read_b128 v[{V_RD+4*w}:{V_RD+4*w+3}], v{V_RR} offset:{img(Q) + 8192*w}" for w in range(4)]

    def red_sum(Q):
        r = []
        for j in range(4):
            r.append(f"v_add_f32 v{V_RD+j}, v{V_RD+j}, v{V_RD+4+j}")
        for j in range(4):
            r.append(f"v_add_f32 v{V_RD+8+j}, v{V_RD+8+j}, v{V_RD+12+j}")
        for j in range(4):
            r.append(f"v_add_f32 v{V_RD+j}, v{V_RD+j}, v{V_RD+8+j}")
        for j in range(2):
            r.append(f"v_cvt_pk_bf16_f32 v{V_RES+2*Q+j}, v{V_RD+2*j}, v{V_RD+2*j+1}")
        return r

    def out_store(Q):
        return f"buffer_store_dwordx2 v[{V_RES+2*Q}:{V_RES+2*Q+1}], v{V_OUT}, s[{S_OUT}:{S_OUT+3}], s{S_T0+Q} offen {o.outflag}"

    extra = {}

    def put(i, l):
        extra.setdefault(i, []).extend(l)
    for Q in range(3):
        b = 14 * (Q + 1)
        w = red_write(Q)
        put(b + 1, w[0:2])
        put(b + 2, w[2:4])
        if o.redmode == 0:
            put(b + 4, ["s_waitcnt lgkmcnt(0)", "s_barrier"])
            put(b + 5, red_read(Q))
            s = red_sum(Q)
            put(b + 7, ["s_waitcnt lgkmcnt(0)"] + s[0:3])
            put(b + 8, s[3:7])
            put(b + 9, s[7:11])
            put(b + 10, s[11:14])
            if o.earlyst:
                assert 56 - D <= 53
                put(max(56 - D, b + 11), [out_store(Q)])
    if o.redmode == 1:
        put(45, ["s_waitcnt lgkmcnt(0)", "s_barrier"] + red_read(0))
        for Q in range(3):
            b = 47 + 3 * Q
            s = red_sum(Q)
            put(b, ["s_waitcnt lgkmcnt(0)"] + s[0:6])
            put(b + 1, s[6:12])
            put(b + 2 if Q == 2 else b + 1, s[12:14] + (red_read(Q + 1) if Q < 2 else []))
            if o.earlyst:
                put(b + 2, [out_store(Q)])
    for Q in range(4):
        put(4 + Q, [f"s_add_u32 s{S_T0+Q}, s{S_QROT}, {Q}", f"s_and_b32 s{S_T0+Q}, s{S_T0+Q}, 3",
                    f"s_lshl_b32 s{S_T0+Q}, s{S_T0+Q}, 14"])
    for i in range(56):
        issued = min(56, i + D)
        nst = sum(1 for k in range(i) for x in extra.get(k, []) if x.startswith("buffer_store"))
        wait = f"s_waitcnt vmcnt({issued - i - 1 + nst})"
        if i == (1 if o.el else 3):
            wait += " lgkmcnt(0)"
        e(wait)
        m = p2_mfma(i)
        x = extra.get(i, [])
        if i + D < 56:
            n3 = (len(x) + 2) // 3
            gaps = [[hload(i + D)], x[0:n3], x[n3:2*n3], x[2*n3:]]
        else:
            n4 = (len(x) + 3) // 4
            gaps = [x[0:n4], x[n4:2*n4], x[2*n4:3*n4], x[3*n4:]]
        grp(g, m, gaps)
        g.stamp(f"h{i}")
    g.stamp("loopend")
    w = red_write(3)[::-1]
    e("s_nop 4")
    g.es(w)
    e("s_waitcnt lgkmcnt(0)")
    e("s_barrier")
    g.es(red_read(3))
    if not o.earlyst:
        for Q in range(3):
            e(out_store(Q))
    if o.fasttail:
        R = V_RD
        e("s_waitcnt lgkmcnt(2)")
        e(f"v_pk_add_f32 v[{R}:{R+1}], v[{R}:{R+1}], v[{R+4}:{R+5}]")
        e(f"v_pk_add_f32 v[{R+2}:{R+3}], v[{R+2}:{R+3}], v[{R+6}:{R+7}]")
        e("s_waitcnt lgkmcnt(0)")
        e(f"v_pk_add_f32 v[{R+8}:{R+9}], v[{R+8}:{R+9}], v[{R+12}:{R+13}]")
        e(f"v_pk_add_f32 v[{R+10}:{R+11}], v[{R+10}:{R+11}], v[{R+14}:{R+15}]")
        e(f"v_pk_add_f32 v[{R}:{R+1}], v[{R}:{R+1}], v[{R+8}:{R+9}]")
        e(f"v_pk_add_f32 v[{R+2}:{R+3}], v[{R+2}:{R+3}], v[{R+10}:{R+11}]")
        g.es(red_sum(3)[12:14])
    else:
        e("s_waitcnt lgkmcnt(0)")
        g.es(red_sum(3))
    e(out_store(3))
    if o.stamps:
        e("s_waitcnt vmcnt(0)")
        g.stamp("final")
        e("s_waitcnt lgkmcnt(0)")
        if o.probe:
            pa, pb, pwg = [int(x) for x in o.probe.split(",")]
            if pwg >= 0:
                e(f"s_cmp_lg_u32 s2, {pwg}")
                e("s_cbranch_scc1 L_end")
            if pwg == -2:
                e(f"s_cmp_ge_u32 s{S_I}, 28")
                e("s_cbranch_scc1 L_end")
            e(f"s_sub_u32 s{S_T0}, s{S_ST+2*pb}, s{S_NON if pa == 9 else S_ST+2*pa}")
            e(f"s_min_u32 s{S_T0}, s{S_T0}, 5000")
            e(f"s_mul_i32 s{S_T0}, s{S_T0}, 10")
            e(f"s_add_u32 s{S_T0}, s{S_T0}, s{S_ST+16}")
            g.lab("L_probe")
            e(f"s_memrealtime s[4:5]")
            e("s_waitcnt lgkmcnt(0)")
            e(f"s_sub_u32 s{S_T1}, s4, s{S_T0}")
            e(f"s_cmp_lt_i32 s{S_T1}, 0")
            e("s_cbranch_scc1 L_probe")
            e("s_endpgm")
        for n in range(9):
            e(f"v_mov_b32 v{96+n}, s{S_ST+2*n}")
        e(f"s_lshl_b32 s{S_T0}, s2, 8")
        e(f"s_lshl_b32 s{S_T1}, s{S_WAVE}, 6")
        e(f"s_add_u32 s{S_T0}, s{S_T0}, s{S_T1}")
        e(f"s_add_u32 s{S_T0}, s{S_T0}, {hex(STAMP_OFF)}")
        e("v_mov_b32 v108, 0")
        e("s_mov_b64 exec, 1")
        for n in range(3):
            e(f"buffer_store_dwordx4 v[{96+4*n}:{99+4*n}], v108, s[{S_WS}:{S_WS+3}], s{S_T0} offen offset:{16*n} sc1")
    g.lab("L_end")
    e("s_endpgm")

    g.lab("L_early_idle")
    def _pt():
        if o.ptouch:
            e(f"v_lshrrev_b32 v{V_ACC+4}, 2, v{L}")
            e(f"v_and_b32 v{V_ACC+5}, 1, v{L}")
            e(f"v_bfe_u32 v{V_ACC+6}, v{L}, 1, 1")
            e(f"v_lshl_add_u32 v{V_ACC+5}, v{V_ACC+6}, 2, v{V_ACC+5}")
            e(f"v_lshlrev_b32 v{V_ACC+5}, 7, v{V_ACC+5}")
            e(f"v_lshl_add_u32 v{V_ACC+4}, v{V_ACC+4}, 10, v{V_ACC+5}")
            e(f"s_and_b32 s{S_U+1}, s{S_XCD}, 6")
            e(f"s_lshl_b32 s{S_U+1}, s{S_U+1}, 1")
            e(f"s_add_u32 s{S_U+1}, s{S_U+1}, s{S_Q}")
            e(f"s_lshl_b32 s{S_U+1}, s{S_U+1}, 1")
            e(f"s_and_b32 s{S_U+2}, s{S_XCD}, 1")
            e(f"s_add_u32 s{S_U+1}, s{S_U+1}, s{S_U+2}")
            e(f"s_lshl_b32 s{S_U+1}, s{S_U+1}, 2")
            e(f"s_add_u32 s{S_U+1}, s{S_U+1}, s{S_WAVE}")
            e(f"s_lshl_b32 s{S_U+1}, s{S_U+1}, 14")
            e(f"v_mul_u32_u24 v{V_ACC+5}, 4682, v{L}")
            e(f"v_lshrrev_b32 v{V_ACC+5}, 16, v{V_ACC+5}")
            e(f"v_mul_u32_u24 v{V_ACC+6}, 14, v{V_ACC+5}")
            e(f"v_sub_u32 v{V_ACC+6}, v{L}, v{V_ACC+6}")
            e(f"v_lshlrev_b32 v{V_ACC+6}, 7, v{V_ACC+6}")
            e(f"v_and_b32 v{V_ACC+7}, 1, v{V_ACC+5}")
            e(f"v_lshrrev_b32 v{V_ACC+5}, 1, v{V_ACC+5}")
            e(f"v_lshl_add_u32 v{V_ACC+5}, v{V_ACC+5}, 8, v{V_ACC+7}")
            e(f"v_mul_u32_u24 v{V_ACC+5}, 3584, v{V_ACC+5}")
            e(f"v_add_u32 v{V_ACC+5}, v{V_ACC+5}, v{V_ACC+6}")
            e(f"s_mul_i32 s{S_U+2}, s{S_U+2}, 1792")
            e(f"s_lshr_b32 s{S_U+3}, s{S_XCD}, 1")
            e(f"s_lshl_b32 s{S_U+3}, s{S_U+3}, 2")
            e(f"s_add_u32 s{S_U+3}, s{S_U+3}, s{S_Q}")
            e(f"s_lshl_b32 s{S_U+3}, s{S_U+3}, 2")
            e(f"s_add_u32 s{S_U+3}, s{S_U+3}, s{S_WAVE}")
            e(f"s_lshl_b32 s{S_U+3}, s{S_U+3}, 1")
            e(f"s_add_u32 s{S_U+3}, s{S_U+3}, 128")
            e(f"s_mul_i32 s{S_U+3}, s{S_U+3}, 3584")
            e(f"s_add_u32 s{S_U+2}, s{S_U+2}, s{S_U+3}")
            e(f"s_mov_b64 exec, 0x00ffffffffffffff" if False else f"s_mov_b32 exec_hi, 0xffffff")
            e(f"buffer_load_dword v{V_ACC+60}, v{V_ACC+5}, s[{S_W1}:{S_W1+3}], s{S_U+2} offen")
            e(f"s_mov_b32 exec_hi, -1")
            e(f"buffer_load_dword v{V_ACC+61}, v{V_ACC+4}, s[{S_X}:{S_X+3}], s{S_U+1} offen offset:256")
    def _wt():
        if o.touch:
            srd(g, S_W2, 8, 512 * 1792 * 2)
            e(f"v_lshlrev_b32 v{V_ACC+8}, 7, v{L}")
            e(f"s_lshl_b32 s{S_U+1}, s{S_Q}, 3")
            e(f"s_add_u32 s{S_U+1}, s{S_U+1}, s{S_XCD}")
            e(f"s_lshl_b32 s{S_U+1}, s{S_U+1}, 2")
            e(f"s_add_u32 s{S_U+1}, s{S_U+1}, s{S_WAVE}")
            e(f"s_mul_i32 s{S_U+1}, s{S_U+1}, {14*1024}")
            e(f"s_add_u32 s{S_U+2}, s{S_U+1}, 8192")
            e(f"buffer_load_dword v{V_ACC+62}, v{V_ACC+8}, s[{S_W2}:{S_W2+3}], s{S_U+1} offen")
            e(f"s_mov_b32 exec_hi, 0xffff")
            e(f"buffer_load_dword v{V_ACC+63}, v{V_ACC+8}, s[{S_W2}:{S_W2+3}], s{S_U+2} offen")
            e(f"s_mov_b32 exec_hi, -1")
    if o.wfirst:
        _wt()
        _pt()
    else:
        _pt()
        _wt()
    e("s_branch L_setup2")

    g.lab("L_idle")
    seq = [0, 5, 6, 1, 2, 3, 4]
    e(nonce_load())
    g.es(flat(dma_w(seq[0], 0)))
    g.es(flat(dma_w(seq[1], 1)))
    for k in range(7):
        if k + 2 < 7:
            g.es(flat(dma_w(seq[k + 2], k + 2)))
        e(f"s_waitcnt vmcnt({8*min(2, 6-k)}) lgkmcnt(4)")
        emit_tr(g, seq[k], k)
    g.stamp("wl6")
    emit_nonce_check(g, "i")
    emit_poll(g, "I")
    g.stamp("ready")
    if o.rbar:
        e("s_barrier")
    hinit()
    e("s_branch L_p2")

    if o.ins2:
        g.lab("L_path2")
        if o.el:
            producer("V", C[:o.ins] + [('w', 0)] + C[o.ins:o.ins2] + [('w', 2)] + C[o.ins2:] + [('w', b) for b in (5, 6, 1, 3, 4)])
        else:
            producer("V", C[:o.ins2] + [('w', 0)] + C[o.ins2:] + W)
        e("s_branch L_p2")
    g.lab("L_code_end")

    body = "\n".join(g.L)
    txt = HEADER + f""".amdgcn_target "amdgcn-amd-amdhsa--gfx950"
.text
.globl {KNAME}
.p2align 8
.type {KNAME},@function
{body}
.section .rodata,"a"
.p2align 6
.amdhsa_kernel {KNAME}
  .amdhsa_next_free_vgpr 512
  .amdhsa_next_free_sgpr 102
  .amdhsa_accum_offset 256
  .amdhsa_group_segment_fixed_size 0
  .amdhsa_kernarg_size 48
  .amdhsa_user_sgpr_count 2
  .amdhsa_user_sgpr_kernarg_segment_ptr 1
  .amdhsa_system_sgpr_workgroup_id_x 1
.end_amdhsa_kernel
"""
    return txt


def parse(argv):
    p = argparse.ArgumentParser()
    p.add_argument("-o", default=None)
    p.add_argument("--co", default=None)
    p.add_argument("--stamps", default="")
    p.add_argument("--rt", type=int, default=0)
    p.add_argument("--depth", type=int, default=12)
    p.add_argument("--nbuf", type=int, default=16)
    p.add_argument("--ins", type=int, default=4)
    p.add_argument("--ins2", type=int, default=6)
    p.add_argument("--rotsh", type=int, default=2)
    p.add_argument("--qmask", type=int, default=1)
    p.add_argument("--outflag", default="sc1")
    p.add_argument("--probe", default="")
    p.add_argument("--cpf", type=int, default=1)
    p.add_argument("--touch", type=int, default=1)
    p.add_argument("--npf", type=int, default=0)
    p.add_argument("--pat", type=int, default=4)
    p.add_argument("--redmode", type=int, default=0)
    p.add_argument("--presleep", type=int, default=0)
    p.add_argument("--wfirst", type=int, default=0)
    p.add_argument("--npre", type=int, default=2)
    p.add_argument("--pollk", type=int, default=3)
    p.add_argument("--apoll", type=int, default=4)
    p.add_argument("--el", type=int, default=0)
    p.add_argument("--rbar", type=int, default=0)
    p.add_argument("--stage", type=int, default=4)
    p.add_argument("--earlyst", type=int, default=1)
    p.add_argument("--fasttail", type=int, default=1)
    p.add_argument("--m0early", type=int, default=1)
    p.add_argument("--ptouch", type=int, default=1)
    p.add_argument("--idlesleep", type=int, default=0)
    return p.parse_args(argv)


if __name__ == "__main__":
    o = parse(sys.argv[1:])
    txt = gen(o)
    if o.o:
        open(o.o, "w").write(txt)
    if o.co:
        open(o.co + ".s", "w").write(txt + META)
        r = subprocess.run(["clang", "-x", "assembler", "-target", "amdgcn-amd-amdhsa",
                            "-mcpu=gfx950", o.co + ".s", "-o", o.co + ".co"], capture_output=True, text=True)
        if r.returncode:
            print(r.stderr[:4000])
            sys.exit(1)
```

```python
import sys, subprocess, argparse
from gen import HEADER, KNAME, META

FLAGS_OFF = 0x800000
STAMP_OFF = 0x8000000
RHO = 57344

S_X, S_W1, S_W2, S_OUT, S_DBG, S_WS = 16, 20, 24, 28, 32, 36
S_WAVE = 40
S_XCD = 41
S_I = 42
S_T0, S_T1, S_T2, S_T3 = 43, 44, 45, 46
S_M0A = 47
S_U = 48
S_M0W2 = 55
S_UW = 56
S_SPIN = 63
S_KX = 64
S_KW = 72
S_POLL = 64
S_NON = 80
S_PA = 82
S_ST = 84
S_Q = 3
S_FA = 8
S_QROT = 11

V_LANE = 1
V_OX = 2
V_OW1 = 6
V_OW2 = 10
V_H = 14
V_ZERO = 18
V_NON = 20
V_HST = 22
V_OUT = 23
V_RW = 24
V_RR = 26
V_ACC = 32
V_FR = 96
V_EP = 160
V_AX = 192
V_AW1 = 198
V_AW2 = 210
V_RES = 222
V_RD = 232
V_T = 232
V_HR = 96
NONCE_POS = 2
WX = 0
MF = "v_mfma_f32_16x16x32_bf16"


class G:
    def __init__(self, o):
        self.o = o
        self.L = []

    def e(self, s):
        self.L.append("    " + s)

    def es(self, l):
        for x in l:
            self.e(x)

    def lab(self, s):
        self.L.append(s + ":")

    def c(self, s):
        self.L.append("    ; " + s)

    def stamp(self, name):
        if not self.o.stamps:
            return
        names = self.o.stamps.split(",")
        if name == "final":
            idx = 8
        elif name in names[:8]:
            idx = names.index(name)
        else:
            return
        r = S_ST + 2 * idx
        self.e(f"s_memrealtime s[{r}:{r+1}]" if self.o.rt else f"s_memtime s[{r}:{r+1}]")


def srd(g, d, lo, nbytes):
    g.e(f"s_mov_b32 s{d}, s{lo}")
    g.e(f"s_mov_b32 s{d+1}, s{lo+1}")
    g.e(f"s_mov_b32 s{d+2}, {hex(nbytes)}")
    g.e(f"s_mov_b32 s{d+3}, 0x20000")


def slot_base(pos):
    return (pos % 5) * 32768


def zone(pos):
    s = pos % 5
    return s // 2, (s % 2) * 32768


def dma_c(t, pos):
    sb = slot_base(pos)
    out = []
    if WX:
        for k in range(8):
            j, isx = divmod(k, 2)
            vo, sr, so = (V_OX, S_X, S_KX + t) if isx else (V_OW1, S_W1, S_KW + t)
            ins = f"buffer_load_dwordx4 v{vo+j}, s[{sr}:{sr+3}], s{so} offen offset:{1024*(k%4)} lds"
            if k % 4 == 0:
                out.append([f"s_add_u32 m0, s{S_M0W2}, {sb + 4096*(k//4)}", "s_nop 0", ins])
            else:
                out.append([ins])
        return out
    for vo, sr, so, add in ((V_OW1, S_W1, S_KW + t, 0), (V_OX, S_X, S_KX + t, 16384)):
        for j in range(4):
            ins = f"buffer_load_dwordx4 v{vo+j}, s[{sr}:{sr+3}], s{so} offen offset:{1024*j} lds"
            if j == 0:
                out.append([f"s_add_u32 m0, s{S_M0A}, {sb+add}", "s_nop 0", ins])
            else:
                out.append([ins])
    return out


def dma_w(b, pos):
    sb = slot_base(pos)
    out = []
    for half in range(2):
        for j in range(4):
            so = f"s{S_UW+b}" if half == 0 else f"s{S_T3}"
            ins = f"buffer_load_dwordx4 v{V_OW2+j}, s[{S_W2}:{S_W2+3}], {so} offen offset:{1024*j} lds"
            if j == 0:
                pre = [f"s_add_u32 m0, s{S_M0W2}, {sb + 4096*half}"]
                pre.append(f"s_add_u32 s{S_T3}, s{S_UW+b}, 32768" if half == 1 else "s_nop 0")
                out.append(pre + [ins])
            else:
                out.append([ins])
    return out


def flat(groups):
    return [x for gr in groups for x in gr]


def frA(s, phi):
    return V_FR + 32 * s + 4 * phi


def frB(s, rho):
    return V_FR + 32 * s + 16 + 4 * rho


def rdA(pos, s, phi):
    z, add = zone(pos)
    return [f"ds_read_b64_tr_b16 v[{frA(s,phi)+2*e}:{frA(s,phi)+2*e+1}], v{V_AW1+4*z+phi} offset:{add + ((16384*s + 2048*e) if WX else (32*s+4*e)*256)}"
            for e in range(2)]


def rdB(pos, s, rho):
    z, add = zone(pos)
    return [f"ds_read_b128 v[{frB(s,rho)}:{frB(s,rho)+3}], v{V_AX+2*z+s} offset:{add + (rho*4096 if WX else 16384 + rho*2048)}"]


def p1_reads(pos, sub):
    s, h = divmod(sub, 2)
    if h == 0:
        return rdA(pos, s, 0) + rdB(pos, s, 0) + rdB(pos, s, 1) + rdB(pos, s, 2) + rdB(pos, s, 3) + rdA(pos, s, 1)
    return rdA(pos, s, 2) + rdA(pos, s, 3)


def acc1(phi, rho):
    return V_ACC + (phi * 4 + rho) * 4


def p1_mfma(sub, first):
    s, h = divmod(sub, 2)
    r = []
    for k, phi in enumerate((2 * h, 2 * h + 1)):
        for rho in (range(4) if k == 0 else range(3, -1, -1)):
            a = acc1(phi, rho)
            A, B = frA(s, phi), frB(s, rho)
            c = "0" if first else f"v[{a}:{a+3}]"
            r.append(f"{MF} v[{a}:{a+3}], v[{A}:{A+3}], v[{B}:{B+3}], {c}")
    return r


def w2_tr(b, pos):
    z, add = zone(pos)
    r = []
    for kp in range(2):
        for nu in range(4):
            for e in range(2):
                d = ((b * 2 + kp) * 4 + nu) * 4 + 2 * e
                r.append(f"ds_read_b64_tr_b16 a[{d}:{d+1}], v{V_AW2+4*z+nu} offset:{add + (32*kp+16*e)*128}")
    return r


def emit_tr(g, b, pos):
    for i, x in enumerate(w2_tr(b, pos)):
        if i == 8:
            g.e("s_waitcnt lgkmcnt(4)")
        g.e(x)


def grp(g, mf, gaps):
    gaps = list(gaps) + [[]] * (len(mf) - len(gaps))
    for m, gp in zip(mf, gaps):
        if m:
            g.e(m)
        g.es(gp)


def poll_load():
    return f"s_load_dwordx16 s[{S_POLL}:{S_POLL+15}], s[{S_PA}:{S_PA+1}], 0 glc"


def emit_poll(g, tag, issued=False):
    e = g.e
    e(f"s_mov_b32 s{S_SPIN}, 0x40000")
    if issued:
        e(f"s_branch L_check_{tag}")
    g.lab(f"L_poll_{tag}")
    e(poll_load())
    e(f"s_sub_u32 s{S_SPIN}, s{S_SPIN}, 1")
    e(f"s_cbranch_scc1 L_ready_{tag}")
    g.lab(f"L_check_{tag}")
    e("s_waitcnt lgkmcnt(0)")
    for k in range(7):
        e(f"s_cmp_lg_u64 s[{S_POLL+2*k}:{S_POLL+2*k+1}], s[{S_NON}:{S_NON+1}]")
        e(f"s_cbranch_scc1 L_poll_{tag}")
    g.lab(f"L_ready_{tag}")


def nonce_load():
    return f"buffer_load_dwordx2 v[{V_NON}:{V_NON+1}], v{V_ZERO}, s[{S_DBG}:{S_DBG+3}], 0 offen sc1"


def emit_nonce_check(g, tag):
    e = g.e
    e(f"v_readfirstlane_b32 s{S_NON+1}, v{V_NON+1}")
    e(f"s_mov_b32 s{S_SPIN}, 0x40000")
    g.lab(f"L_non_{tag}")
    e(f"s_cmp_lg_u32 s{S_NON+1}, 0")
    e(f"s_cbranch_scc1 L_nonok_{tag}")
    e(nonce_load())
    e("s_waitcnt vmcnt(0)")
    e(f"v_readfirstlane_b32 s{S_NON+1}, v{V_NON+1}")
    e(f"s_sub_u32 s{S_SPIN}, s{S_SPIN}, 1")
    e(f"s_cbranch_scc0 L_non_{tag}")
    g.lab(f"L_nonok_{tag}")
    e(f"v_readfirstlane_b32 s{S_NON}, v{V_NON}")


def epi(h, rho):
    d = V_EP + 4 * (4 * h + rho)
    r = []
    for k in range(2):
        a = acc1(2 * h + k, rho)
        r.append(f"v_cvt_pk_bf16_f32 v{d+2*k}, v{a}, v{a+1}")
        r.append(f"v_cvt_pk_bf16_f32 v{d+2*k+1}, v{a+2}, v{a+3}")
    for jj in range(4):
        r.append(f"v_pk_max_i16 v{d+jj}, v{d+jj}, 0")
    so = "0" if rho == 0 else f"s{S_T0+rho-1}"
    r.append(f"buffer_store_dwordx4 v[{d}:{d+3}], v{V_HST}, s[{S_WS}:{S_WS+3}], {so} offen offset:{1024*h} sc1")
    return r


def emit_p1(g, tag, stream):
    e = g.e
    last = stream.index(('c', 7))
    pending = False
    for p in range(last + 1):
        kind, idx = stream[p]
        g.c(f"---- {tag} pos {p}: {kind}{idx}")
        e(f"s_waitcnt vmcnt({9 if p == NONCE_POS + 1 else 8}) lgkmcnt(0)")
        e("s_barrier")
        g.stamp(f"bar{kind}{idx}")
        nk, ni = stream[p + 2]
        f = dma_c(ni, p + 2) if nk == 'c' else dma_w(ni, p + 2)
        if p == last and g.o.npre < 2:
            f = [["s_nop 0"]] + [[]] * 3 + [["s_nop 0"]] + [[]] * 3
        m3 = p1_mfma(3, False) if pending else [None] * 8
        pat = g.o.pat
        if kind == 'c' and pat == 0:
            R = [p1_reads(p, k) for k in range(4)]
            grp(g, m3, [R[0][0:2], R[0][2:4], R[0][4:6], R[0][6:8], R[1][0:2], R[1][2:4], [], f[0]])
            e("s_waitcnt lgkmcnt(4)")
            grp(g, p1_mfma(0, idx == 0), [R[2][0:2], R[2][2:4], R[2][4:6], R[2][6:8], f[1], [], f[2], []])
            e("s_waitcnt lgkmcnt(8)")
            if idx < 7:
                grp(g, p1_mfma(1, idx == 0), [R[3][0:2], R[3][2:4], f[3], [], f[4], [], [], f[5]])
                e("s_waitcnt lgkmcnt(4)")
                grp(g, p1_mfma(2, False), [[], [], f[6], [], [], [], f[7], []])
            else:
                grp(g, p1_mfma(1, False), [R[3][0:2], R[3][2:4], f[3], f[4], f[5], f[6], f[7], []])
            pending = True
        elif kind == 'c' and pat in (1, 3, 4):
            R = [[[x] for x in p1_reads(p, k)] for k in range(4)]
            a0, a4 = [], []
            if g.o.m0early:
                f = [list(x) for x in f]
                a0 = [x for x in f[0][:-1] if x != "s_nop 0"]
                a4 = [x for x in f[4][:-1] if x != "s_nop 0"]
                f[0], f[4] = f[0][-1:], f[4][-1:]
            if pat == 4:
                grp(g, m3, [R[0][0] + R[0][1], R[0][2] + R[0][3], R[0][4], R[0][5], R[0][6], R[0][7], a0,
                            f[0] if pending else ["s_nop 0"] + f[0]])
                e("s_waitcnt lgkmcnt(2)")
                m0 = p1_mfma(0, idx == 0)
                grp(g, m0[0:4], [R[1][0], R[1][1], R[1][2], R[1][3]])
                e("s_waitcnt lgkmcnt(4)")
                grp(g, m0[4:8], [R[2][0] + f[1], R[2][1], R[2][2], R[2][3] + f[2]])
            elif pat == 1:
                grp(g, m3, [R[0][0] + R[0][1], R[0][2] + R[0][3], R[0][4], R[0][5], R[0][6], R[0][7], a0,
                            f[0] if pending else ["s_nop 0"] + f[0]])
                e("s_waitcnt lgkmcnt(0)")
                grp(g, p1_mfma(0, idx == 0), [R[1][0], R[1][1], R[1][2], R[1][3], R[2][0] + f[1], R[2][1], R[2][2], R[2][3] + f[2]])
            else:
                grp(g, m3, [R[0][0] + R[0][1], R[0][2], R[0][3], R[0][4], R[0][5], R[0][6], R[0][7], f[0]])
                e("s_waitcnt lgkmcnt(2)")
                m0 = p1_mfma(0, idx == 0)
                grp(g, m0[0:4], [R[1][0], R[1][1], R[1][2], R[1][3]])
                e("s_waitcnt lgkmcnt(4)")
                grp(g, m0[4:8], [R[2][0] + f[1], R[2][1], R[2][2], R[2][3] + f[2]])
            e("s_waitcnt lgkmcnt(4)")
            if idx < 7:
                grp(g, p1_mfma(1, idx == 0), [R[2][4], R[2][5], R[2][6] + f[3], R[2][7], R[3][0] + a4, R[3][1] + f[4], R[3][2], R[3][3]])
                e("s_waitcnt lgkmcnt(4)")
                grp(g, p1_mfma(2, False), [f[5], [], [], f[6], [], [], f[7], []])
            else:
                grp(g, p1_mfma(1, False), [R[2][4] + f[3] + a4, R[2][5] + f[4], R[2][6] + f[5], R[2][7] + f[6], R[3][0] + f[7], R[3][1], R[3][2], R[3][3]])
            pending = True
        elif kind == 'c' and pat >= 5:
            R = [[[x] for x in p1_reads(p, k)] for k in range(4)]
            f = [list(x) for x in f]
            a0 = [x for x in f[0][:-1] if x != "s_nop 0"]
            a4 = [x for x in f[4][:-1] if x != "s_nop 0"]
            f[0], f[4] = f[0][-1:], f[4][-1:]
            rd = R[0] + R[1] + R[2] + R[3]
            NG = 32 if idx < 7 else 24
            tabs = {
                5: ([0, 0, 1, 1, 2, 3, 4, 5, 7, 8, 9, 10, 12, 13, 14, 15, 16, 17, 18, 19, 21, 22, 23, 24], [6, 11, 14, 17, 20, 23, 26, 29]),
                6: ([0, 0, 1, 1, 2, 2, 3, 4, 5, 6, 8, 9, 10, 11, 12, 13, 14, 15, 16, 17, 18, 19, 20, 21], [7, 10, 13, 16, 22, 24, 26, 28]),
                7: ([0, 0, 1, 1, 2, 3, 4, 5, 8, 9, 10, 11, 12, 13, 14, 15, 16, 17, 18, 19, 20, 21, 22, 23], [24, 25, 26, 27, 29, 30, 31, 31]),
                8: ([0, 0, 1, 1, 2, 3, 4, 5, 8, 9, 10, 11, 12, 13, 14, 15, 16, 17, 18, 19, 20, 21, 22, 23], [3, 7, 11, 15, 19, 23, 27, 31]),
            }
            rg, dg = tabs[pat]
            if idx == 7:
                rg = [min(x, 23) for x in rg]
                dg = [6, 9, 12, 15, 17, 19, 21, 23]
            gaps = [[] for _ in range(32)]
            for k in range(24):
                gaps[rg[k]] += rd[k]
            for k in range(8):
                gaps[dg[k]] += f[k]
            gaps[dg[0] - 1] += a0
            gaps[dg[4] - 1] += a4
            if not pending:
                gaps[dg[0]] = ["s_nop 0"] + gaps[dg[0]]
            mf = m3 + p1_mfma(0, idx == 0) + p1_mfma(1, idx == 0) + (p1_mfma(2, False) if idx < 7 else [])
            need = {8: 6, 12: 8, 16: 10, 20: 12, 24: 18, 28: 20}
            for n in range(NG):
                if n in need:
                    issued = sum(1 for k in range(24) if rg[k] < n)
                    assert issued >= need[n], (pat, n)
                    e(f"s_waitcnt lgkmcnt({issued - need[n]})")
                if mf[n]:
                    e(mf[n])
                g.es(gaps[n])
            pending = True
        elif kind == 'c' and pat == 2:
            R = [[[x] for x in p1_reads(p, k)] for k in range(4)]
            m2 = p1_mfma(2, False) if pending else [None] * 8
            grp(g, m2, R[0][0:7] + [R[0][7] + f[0]])
            grp(g, m3, R[1][0:4] + [f[1], [], f[2], []])
            e("s_waitcnt lgkmcnt(4)" if pending else "s_waitcnt lgkmcnt(4)")
            grp(g, p1_mfma(0, idx == 0), [R[2][0], R[2][1], R[2][2] + f[3], R[2][3], R[2][4], R[2][5], R[2][6] + f[4], R[2][7]])
            e("s_waitcnt lgkmcnt(8)")
            grp(g, p1_mfma(1, idx == 0), R[3][0:4] + [f[5], f[6], [], f[7]])
            pending = True
        else:
            T = w2_tr(idx, p)
            if pat == 2 and pending:
                g.es(p1_mfma(2, False))
            grp(g, m3, [T[0:2], T[2:4], T[4:6], T[6:8], T[8:10], T[10:12]])
            e("s_waitcnt lgkmcnt(4)")
            g.es(T[12:16])
            g.es(flat(f))
            pending = False
        if p == NONCE_POS:
            e(nonce_load())
    g.c(f"---- {tag} P1 tail")
    e("s_waitcnt lgkmcnt(4)")
    m2, m3 = p1_mfma(2, False), p1_mfma(3, False)
    g.es(m2[0:4])
    emit_nonce_check(g, tag)
    for k in range(3):
        e(f"s_mov_b32 s{S_T0+k}, {RHO*(k+1)}")
    g.es(m2[4:8])
    e("s_waitcnt lgkmcnt(0)")
    g.stamp("bar8")
    E0 = epi(0, 3) + epi(0, 2) + epi(0, 1) + epi(0, 0)
    g.es(m3[0:2])
    e("s_nop 2")
    grp(g, m3[2:8], [E0[0:3], E0[3:6], E0[6:9], E0[9:12], E0[12:15], E0[15:18]])
    g.es(E0[18:])
    g.es(epi(1, 3) + epi(1, 2) + epi(1, 1) + epi(1, 0))
    g.stamp("Hst")


def emit_flag(g):
    g.e(f"s_atomic_swap_x2 s[{S_NON}:{S_NON+1}], s[{S_FA}:{S_FA+1}], 0")
    g.stamp("flag")


def gen(o):
    global WX
    WX = o.wx
    g = G(o)
    e = g.e
    D = o.depth
    NB = o.nbuf
    L = V_LANE
    T = V_T
    g.lab(KNAME)
    g.stamp("entry")
    e("s_load_dwordx8 s[4:11], s[0:1], 0")
    e("s_load_dwordx4 s[12:15], s[0:1], 32")
    e(f"s_memrealtime s[{S_PA}:{S_PA+1}]")
    e("s_cmp_ge_u32 s2, 256")
    e("s_cbranch_scc1 L_end")
    e(f"v_lshrrev_b32 v{T}, 6, v0")
    e(f"v_and_b32 v{L}, 63, v0")
    e(f"s_and_b32 s{S_XCD}, s2, 7")
    e(f"v_readfirstlane_b32 s{S_WAVE}, v{T}")
    e(f"s_lshr_b32 s{S_I}, s2, 3")
    if o.cpf:
        e(f"s_cmp_lt_u32 s{S_I}, 31")
        e("s_cbranch_scc1 L_nocpf")
        e("s_getpc_b64 s[20:21]")
        g.lab("L_pc")
        e(f"v_lshlrev_b32 v{V_ACC}, 7, v0")
        e(f"v_mov_b32 v{V_ACC+3}, s21")
        e(f"v_add_co_u32 v{V_ACC+2}, vcc, s20, v{V_ACC}")
        e("s_nop 1")
        e(f"v_addc_co_u32 v{V_ACC+3}, vcc, 0, v{V_ACC+3}, vcc")
        e(f"v_cmp_gt_u32 vcc, L_code_end-L_pc, v{V_ACC}")
        e("s_and_saveexec_b64 s[22:23], vcc")
        e("s_cbranch_execz L_cpf_done")
        e(f"global_load_dword v{V_ACC+1}, v[{V_ACC+2}:{V_ACC+3}], off")
        g.lab("L_cpf_done")
        e("s_mov_b64 exec, s[22:23]")
        g.lab("L_nocpf")
    e(f"s_and_b32 s{S_Q}, s{S_I}, 3")
    e(f"s_lshr_b32 s{S_T1}, s{S_I}, 2")
    e(f"s_add_u32 s{S_T2}, s{S_Q}, s{S_T1}")
    e(f"s_lshl_b32 s{S_T2}, s{S_T2}, {o.rotsh}")
    e(f"s_and_b32 s{S_T3}, s{S_XCD}, 6")
    e(f"s_lshl_b32 s{S_T3}, s{S_T3}, 1")
    e(f"s_add_u32 s{S_U}, s{S_Q}, s{S_T3}")
    e(f"s_and_b32 s{S_T3}, s{S_XCD}, 1")
    e(f"s_mul_i32 s{S_T3}, s{S_T3}, 7")
    e(f"s_add_u32 s{S_SPIN}, s{S_T1}, s{S_T3}")
    e(f"s_lshl_b32 s{S_T0}, s{S_U}, 17")
    e(f"s_lshl_b32 s{S_T1}, s{S_SPIN}, 8")

    def kofs(t):
        e(f"s_add_u32 s{S_T3}, s{S_T2}, {t}")
        e(f"s_and_b32 s{S_T3}, s{S_T3}, 7")
        e(f"s_mul_i32 s{S_KW+t}, s{S_T3}, {64*3584}")
        e(f"s_lshl_b32 s{S_T3}, s{S_T3}, 7")
        e(f"s_add_u32 s{S_KX+t}, s{S_T3}, s{S_T0}")
        e(f"s_add_u32 s{S_KW+t}, s{S_KW+t}, s{S_T1}")
    kofs(0)
    kofs(1)
    e(f"s_lshl_b32 s{S_M0A}, s{S_WAVE}, 12")
    e(f"s_lshl_b32 s{S_M0W2}, s{S_WAVE}, 13")
    e(f"v_lshrrev_b32 v{T}, 4, v{L}")
    e(f"v_and_b32 v{T+1}, 15, v{L}")
    e(f"v_lshlrev_b32 v{T+2}, 1, v{T}")
    e(f"v_xor_b32 v{T+1}, v{T+1}, v{T+2}")
    e(f"v_lshlrev_b32 v{T+1}, 4, v{T+1}")
    e(f"s_lshl_b32 s{S_T3}, s{S_WAVE}, 4")
    e(f"v_add_u32 v{T+2}, s{S_T3}, v{T}")
    e(f"v_mul_u32_u24 v{T+2}, 3584, v{T+2}")
    e(f"v_add_u32 v{V_OW1}, v{T+1}, v{T+2}")
    e(f"v_xor_b32 v{T+1}, 128, v{T+1}")
    e(f"v_add_u32 v{T+1}, v{T+1}, v{T+2}")
    wi = (lambda j: 14336 * j - 2048 * (j & 1)) if WX else (lambda j: 13312 * j)
    e(f"v_add_u32 v{V_OW1+1}, {wi(1)}, v{V_OW1}")
    e(f"v_add_u32 v{V_OW1+2}, {wi(2)}, v{T+1}")
    e(f"v_add_u32 v{V_OW1+3}, {wi(3)}, v{T+1}")
    e(f"v_and_b32 v{T+1}, 7, v{L}")
    e(f"v_xor_b32 v{T+2}, v{T+1}, v{T}")
    e(f"v_lshlrev_b32 v{T+2}, 4, v{T+2}")
    e(f"v_lshrrev_b32 v{T+3}, 3, v{L}")
    e(f"s_lshl_b32 s{S_T3}, s{S_WAVE}, 15")
    e(f"v_lshl_add_u32 v{T+4}, v{T+3}, 10, s{S_T3}")
    e(f"v_add_u32 v{V_OX}, v{T+4}, v{T+2}")
    e(f"v_xor_b32 v{T+2}, 64, v{T+2}")
    e(f"v_add_u32 v{T+2}, v{T+4}, v{T+2}")
    xi = (lambda j: 8192 * j - 2048 * (j & 1)) if WX else (lambda j: 7168 * j)
    e(f"v_add_u32 v{V_OX+1}, {xi(1)}, v{T+2}")
    e(f"v_add_u32 v{V_OX+2}, {xi(2)}, v{V_OX}")
    e(f"v_add_u32 v{V_OX+3}, {xi(3)}, v{T+2}")
    e("s_waitcnt lgkmcnt(0)")
    g.stamp("karg")
    srd(g, S_W1, 6, 512 * 1792 * 2)
    if WX:
        e(f"s_sub_u32 s{S_X}, s4, 1024")
        e(f"s_subb_u32 s{S_X+1}, s5, 0")
        e(f"s_mov_b32 s{S_X+2}, {hex(2048 * 512 * 2 + 1024)}")
        e(f"s_mov_b32 s{S_X+3}, 0x20000")
    else:
        srd(g, S_X, 4, 2048 * 512 * 2)
    e(f"s_cmp_ge_u32 s{S_I}, 28")
    e("s_cbranch_scc1 L_early_idle")
    g.es(flat(dma_c(0, 0)))
    g.es(flat(dma_c(1, 1)[:3]))
    g.stamp("dma0")
    g.lab("L_setup2")
    srd(g, S_DBG, 12, 256)
    e(f"v_mov_b32 v{V_ZERO}, 0")
    e(f"s_or_b32 s{S_T3}, s2, s{S_WAVE}")
    e(f"s_cmp_lg_u32 s{S_T3}, 0")
    e("s_cbranch_scc1 L_nonce_done")
    e(f"s_or_b32 s{S_PA+1}, s{S_PA+1}, 0x80000000")
    e(f"s_atomic_swap_x2 s[{S_PA}:{S_PA+1}], s[12:13], 0")
    e("s_waitcnt lgkmcnt(0)")
    g.lab("L_nonce_done")
    for t in range(2, 8):
        kofs(t)
    srd(g, S_W2, 8, 512 * 1792 * 2)
    srd(g, S_OUT, 10, 2048 * 512 * 2)
    srd(g, S_WS, 14, 0x10000000)
    e(f"s_lshr_b32 s{S_T0}, s{S_WAVE}, 1")
    e(f"s_and_b32 s{S_T1}, s{S_WAVE}, 1")
    e(f"s_lshl_b32 s{S_T2}, s{S_U}, 1")
    e(f"s_add_u32 s{S_T2}, s{S_T2}, s{S_T0}")
    e(f"s_lshl_b32 s{S_T3}, s{S_SPIN}, 1")
    e(f"s_add_u32 s{S_T3}, s{S_T3}, s{S_T1}")
    e(f"s_mul_i32 s4, s{S_T3}, 37")
    e(f"s_lshr_b32 s4, s4, 8")
    e(f"s_mul_i32 s5, s4, 7")
    e(f"s_sub_u32 s5, s{S_T3}, s5")
    e(f"s_lshl_b32 s6, s{S_T2}, 2")
    e(f"s_add_u32 s4, s4, s6")
    e(f"s_lshl_b32 s4, s4, 7")
    e(f"s_lshl_b32 s5, s5, 3")
    e(f"s_add_u32 s4, s4, s5")
    e(f"s_add_u32 s4, s4, {hex(FLAGS_OFF)}")
    e(f"s_add_u32 s{S_FA}, s14, s4")
    e(f"s_addc_u32 s{S_FA+1}, s15, 0")
    e(f"s_mul_i32 s{S_T2}, s{S_T2}, {4*RHO}")
    e(f"s_lshl_b32 s{S_T3}, s{S_T3}, 11")
    e(f"s_add_u32 s{S_T2}, s{S_T2}, s{S_T3}")
    e(f"v_lshl_add_u32 v{V_HST}, v{L}, 4, s{S_T2}")
    e(f"v_and_b32 v{T+2}, 15, v{L}")
    e(f"v_lshrrev_b32 v{T+5}, 1, v{T+2}")
    e(f"v_xor_b32 v{T+5}, v{T+5}, v{T}")
    e(f"v_lshlrev_b32 v{T+5}, 4, v{T+5}")
    if WX:
        e(f"v_lshl_add_u32 v{T+5}, v{T+1}, 7, v{T+5}")
        e(f"v_lshrrev_b32 v{T+6}, 3, v{T+2}")
        e(f"v_lshl_add_u32 v{T+5}, v{T+6}, 11, v{T+5}")
        e(f"s_lshl_b32 s{S_T2}, s{S_T0}, 14")
        e(f"s_add_u32 s{S_T2}, s{S_T2}, 1024")
    else:
        e(f"v_lshl_add_u32 v{T+5}, v{T+2}, 7, v{T+5}")
        e(f"s_lshl_b32 s{S_T2}, s{S_T0}, 13")
    e(f"v_add_u32 v{V_AX}, s{S_T2}, v{T+5}")
    e(f"v_xor_b32 v{V_AX+1}, 64, v{V_AX}")
    for z in (1, 2):
        for s in range(2):
            e(f"v_add_u32 v{V_AX+2*z+s}, {65536*z}, v{V_AX+s}")
    e(f"v_xor_b32 v{T+5}, v{T+1}, v{T}")
    e(f"v_lshlrev_b32 v{T+5}, 4, v{T+5}")
    e(f"v_lshl_add_u32 v{T+5}, v{T+2}, 8, v{T+5}")
    e(f"v_add_u32 v{V_RW}, s{S_M0W2}, v{T+5}")
    e(f"v_xor_b32 v{V_RW+1}, 64, v{V_RW}")
    e(f"s_lshl_b32 s{S_T2}, s{S_WAVE}, 2")
    e(f"v_add_u32 v{T+5}, s{S_T2}, v{T}")
    e(f"v_and_b32 v{T+6}, 7, v{T+5}")
    e(f"v_xor_b32 v{T+6}, v{T+6}, v{T+2}")
    e(f"v_lshlrev_b32 v{T+6}, 4, v{T+6}")
    e(f"v_lshl_add_u32 v{V_RR}, v{T+5}, 8, v{T+6}")
    e(f"v_lshlrev_b32 v{T+6}, 3, v{T+2}")
    e(f"v_lshl_add_u32 v{V_OUT}, v{T+5}, 10, v{T+6}")
    e(f"v_bfe_u32 v{T+2}, v{L}, 2, 2")
    e(f"v_and_b32 v{T+4}, 3, v{L}")
    e(f"v_lshlrev_b32 v{T+4}, 3, v{T+4}")
    e(f"v_and_b32 v{T+5}, 1, v{T}")
    e(f"v_lshl_add_u32 v{T+5}, v{T+5}, 2, v{T+2}")
    e(f"s_lshl_b32 s{S_T2}, s{S_T1}, 2")
    e(f"v_xor_b32 v{T+5}, s{S_T2}, v{T+5}")
    e(f"v_lshl_add_u32 v{T+5}, v{T+5}, 5, v{T+4}")
    e(f"v_lshl_add_u32 v{T+6}, v{T}, {4 if WX else 3}, v{T+2}")
    e(f"v_lshl_add_u32 v{V_AW1}, v{T+6}, 8, v{T+5}")
    for p in range(1, 4):
        e(f"v_xor_b32 v{V_AW1+p}, {32*p}, v{V_AW1}")
    for z in (1, 2):
        for p in range(4):
            e(f"v_add_u32 v{V_AW1+4*z+p}, {65536*z}, v{V_AW1+p}")
    e(f"v_lshl_add_u32 v{T+6}, v{T}, 2, v{T+2}")
    e(f"v_bfe_u32 v{T+5}, v{T+6}, 1, 2")
    e(f"v_lshl_add_u32 v{T+5}, v{T+5}, 5, v{T+4}")
    e(f"v_lshl_add_u32 v{T+5}, v{T+6}, 7, v{T+5}")
    e(f"v_add_u32 v{V_AW2}, s{S_M0W2}, v{T+5}")
    for p in range(1, 4):
        e(f"v_xor_b32 v{V_AW2+p}, {32*p}, v{V_AW2}")
    for z in (1, 2):
        for p in range(4):
            e(f"v_add_u32 v{V_AW2+4*z+p}, {65536*z}, v{V_AW2+p}")
    e(f"s_lshl_b32 s5, s{S_XCD}, 2")
    if o.el:
        e(f"s_and_b32 s4, s{S_Q}, 1")
        e(f"s_xor_b32 s4, s4, 1")
        e(f"s_lshl_b32 s4, s4, 1")
        e(f"s_add_u32 s5, s5, s4")
        e(f"s_lshr_b32 s4, s{S_Q}, 1")
        e(f"s_add_u32 s{S_T0}, s4, s5")
    else:
        e(f"s_add_u32 s{S_T0}, s{S_Q}, s5")
    e(f"s_lshr_b32 s4, s{S_I}, 2")
    e(f"s_cmp_ge_u32 s4, 3")
    e(f"s_addc_u32 s{S_T1}, s4, 0")
    e(f"s_cmp_eq_u32 s4, 7")
    e(f"s_cselect_b32 s{S_T1}, 3, s{S_T1}")
    e(f"s_lshr_b32 s4, s{S_T1}, 1")
    e(f"s_add_u32 s4, s4, s{S_Q}")
    e(f"s_and_b32 s{S_T2}, s4, 3")
    e(f"s_and_b32 s{S_QROT}, s{S_T1}, {o.qmask}")
    e(f"s_mul_i32 s{S_T3}, s{S_WAVE}, 7")
    for b in range(7):
        if (o.el or o.i6) and b < 4:
            e(f"s_add_u32 s5, s{S_T2}, {b}")
            e(f"s_and_b32 s5, s5, 3")
            e(f"s_add_u32 s5, s5, s{S_T3}")
            e(f"s_add_u32 s5, s5, 2")
        elif (o.el or o.i6) and b == 4:
            e(f"s_add_u32 s5, s{S_T3}, 6")
        elif b < 5:
            e(f"s_add_u32 s5, s{S_T2}, {b}")
            e(f"s_cmp_ge_u32 s5, 5")
            e(f"s_cselect_b32 s6, -3, 2")
            e(f"s_add_u32 s5, s5, s6")
            e(f"s_add_u32 s5, s5, s{S_T3}")
        else:
            e(f"s_add_u32 s5, s{S_T3}, {b-5}")
        e(f"s_lshl_b32 s{S_UW+b}, s5, 16")
        e(f"s_lshl_b32 s{S_U+b}, s5, 11")
    e(f"v_lshlrev_b32 v{T+2}, 1, v{T}")
    e(f"v_xor_b32 v{T+2}, v{T+1}, v{T+2}")
    e(f"v_lshlrev_b32 v{T+2}, 4, v{T+2}")
    e(f"v_lshl_add_u32 v{T+2}, v{T+3}, 10, v{T+2}")
    e(f"s_lshl_b32 s{S_T2}, s{S_T1}, 7")
    e(f"v_add_u32 v{V_OW2}, s{S_T2}, v{T+2}")
    for j in range(1, 4):
        e(f"v_add_u32 v{V_OW2+j}, {7168*j}, v{V_OW2}")
    e(f"s_lshl_b32 s{S_T3}, s{S_T0}, 16")
    e(f"s_add_u32 s{S_T2}, s{S_T2}, s{S_T3}")
    e(f"v_add_u32 v{V_OUT}, s{S_T2}, v{V_OUT}")
    e(f"s_lshl_b32 s{S_T2}, s{S_T0}, 2")
    for Q in range(4):
        e(f"s_add_u32 s4, s{S_QROT}, {Q}")
        e(f"s_and_b32 s4, s4, 3")
        e(f"s_add_u32 s4, s4, s{S_T2}")
        e(f"s_mul_i32 s4, s4, {RHO}")
        e(f"v_lshl_add_u32 v{V_H+Q}, v{L}, 4, s4")
    e(f"s_add_u32 s{S_T2}, s{S_T2}, s{S_WAVE}")
    e(f"s_lshl_b32 s{S_T2}, s{S_T2}, 7")
    e(f"s_add_u32 s{S_T2}, s{S_T2}, {hex(FLAGS_OFF)}")
    e(f"s_add_u32 s{S_PA}, s14, s{S_T2}")
    e(f"s_addc_u32 s{S_PA+1}, s15, 0")
    e(f"s_load_dword s10, s[{S_PA}:{S_PA+1}], 0 glc")
    e(f"s_cmp_ge_u32 s{S_I}, 28")
    e("s_cbranch_scc1 L_idle")
    if o.tlb:
        e("s_mov_b64 exec, 1")
        if o.tlb & 1:
            e(f"buffer_load_dword v{V_EP}, v{V_HST}, s[{S_WS}:{S_WS+3}], 0 offen sc1")
        if o.tlb & 2:
            e(f"buffer_load_dword v{V_EP+1}, v{V_OUT}, s[{S_OUT}:{S_OUT+3}], 0 offen sc1")
        e("s_mov_b64 exec, -1")
    g.stamp("setup")
    rest = dma_c(1, 1)[3:]
    rest[0] = [f"s_add_u32 m0, s{S_M0W2 if WX else S_M0A}, {slot_base(1)}", "s_nop 0"] + rest[0]
    g.es(flat(rest))

    def hload(i):
        Q, p = divmod(i, 14)
        b, kp = divmod(p, 2)
        d = V_HR + 4 * (i % NB)
        return f"buffer_load_dwordx4 v[{d}:{d+3}], v{V_H+Q}, s[{S_WS}:{S_WS+3}], s{S_U+b} offen offset:{kp*1024} sc1"

    def hinit():
        for i in range(D):
            e(hload(i))
            if o.stage and (i + 1) % o.stage == 0 and i + 1 < D:
                e("s_barrier")

    def p2_mfma(i):
        Q, p = divmod(i, 14)
        h = V_HR + 4 * (i % NB)
        r = []
        for nu in (range(4) if i % 2 == 0 else range(3, -1, -1)):
            a = V_ACC + (Q * 4 + nu) * 4
            w = (p * 4 + nu) * 4
            c = "0" if p == 0 else f"v[{a}:{a+3}]"
            r.append(f"{MF} v[{a}:{a+3}], a[{w}:{w+3}], v[{h}:{h+3}], {c}")
        return r

    def producer(tag, stream):
        emit_p1(g, tag, stream)
        e("s_barrier")
        last = stream.index(('c', 7))
        it = [(stream[p][1], p) for p in range(last + 1, 15)]
        n = len(it)
        np_ = o.npre
        g.es(flat(dma_w(*it[np_])))
        for k in range(np_):
            e(f"s_waitcnt vmcnt({8*(np_-1-k)+16}) lgkmcnt(4)")
            emit_tr(g, *it[k])
        e("s_waitcnt vmcnt(8) lgkmcnt(0)")
        emit_flag(g)
        g.es(flat(dma_w(*it[np_ + 1])))
        k = np_
        while k + 2 < n:
            dm = dma_w(*it[k + 2])
            if o.apoll >= 0 and k + 3 == n:
                dm = dm[:o.apoll] + [[poll_load()]] + dm[o.apoll:]
            g.es(flat(dm))
            if n - k == o.pollk:
                break
            e("s_waitcnt vmcnt(16) lgkmcnt(4)")
            emit_tr(g, *it[k])
            k += 1
        g.stamp("poll1")
        emit_poll(g, tag, o.apoll >= 0)
        g.stamp("ready")
        if o.rbar:
            e("s_barrier")
        hinit()
        while k < n:
            e(f"s_waitcnt vmcnt({D+8*(n-1-k)}) lgkmcnt(4)")
            if k == n - 1:
                g.stamp("wl6")
            emit_tr(g, *it[k])
            k += 1

    C = [('c', t) for t in range(8)]
    W = [('w', b) for b in {0: (5, 6, 1, 2, 3, 4), 1: (5, 6, 4, 1, 2, 3), 2: (5, 6, 1, 2, 3, 4), 3: (4, 5, 6, 1, 2, 3)}[o.i6]]
    if o.ins2:
        e(f"s_bitcmp1_b32 s{S_I}, 0")
        e("s_cbranch_scc1 L_path2")
    if o.el:
        producer("U", C + [('w', b) for b in (5, 6, 0, 1, 3, 2, 4)])
    else:
        producer("U", C[:o.ins] + [('w', 0)] + C[o.ins:] + W)
    g.lab("L_p2")

    def img(Q):
        return 32768 * (Q >> 1) + 4096 * (Q & 1)

    def red_write(Q):
        return [f"ds_write_b128 v{V_RW+(nu&1)}, v[{V_ACC+(Q*4+nu)*4}:{V_ACC+(Q*4+nu)*4+3}] offset:{img(Q) + 128*(nu>>1)}"
                for nu in range(4)]

    def red_read(Q):
        return [f"ds_read_b128 v[{V_RD+4*w}:{V_RD+4*w+3}], v{V_RR} offset:{img(Q) + 8192*w}" for w in range(4)]

    def red_sum(Q):
        r = []
        for j in range(4):
            r.append(f"v_add_f32 v{V_RD+j}, v{V_RD+j}, v{V_RD+4+j}")
        for j in range(4):
            r.append(f"v_add_f32 v{V_RD+8+j}, v{V_RD+8+j}, v{V_RD+12+j}")
        for j in range(4):
            r.append(f"v_add_f32 v{V_RD+j}, v{V_RD+j}, v{V_RD+8+j}")
        for j in range(2):
            r.append(f"v_cvt_pk_bf16_f32 v{V_RES+2*Q+j}, v{V_RD+2*j}, v{V_RD+2*j+1}")
        return r

    def out_store(Q):
        return f"buffer_store_dwordx2 v[{V_RES+2*Q}:{V_RES+2*Q+1}], v{V_OUT}, s[{S_OUT}:{S_OUT+3}], s{S_T0+Q} offen {o.outflag}"

    extra = {}

    def put(i, l):
        extra.setdefault(i, []).extend(l)
    for Q in range(3):
        b = 14 * (Q + 1)
        w = red_write(Q)
        put(b + 1, w[0:2])
        put(b + 2, w[2:4])
        if o.redmode == 0:
            put(b + 4, ["s_waitcnt lgkmcnt(0)", "s_barrier"])
            put(b + 5, red_read(Q))
            s = red_sum(Q)
            put(b + 7, ["s_waitcnt lgkmcnt(0)"] + s[0:3])
            put(b + 8, s[3:7])
            put(b + 9, s[7:11])
            put(b + 10, s[11:14])
            if o.earlyst:
                assert 56 - D <= 53
                put(max(56 - D, b + 11), [out_store(Q)])
    if o.redmode == 1:
        put(45, ["s_waitcnt lgkmcnt(0)", "s_barrier"] + red_read(0))
        for Q in range(3):
            b = 47 + 3 * Q
            s = red_sum(Q)
            put(b, ["s_waitcnt lgkmcnt(0)"] + s[0:6])
            put(b + 1, s[6:12])
            put(b + 2 if Q == 2 else b + 1, s[12:14] + (red_read(Q + 1) if Q < 2 else []))
            if o.earlyst:
                put(b + 2, [out_store(Q)])
    for Q in range(4):
        put(4 + Q, [f"s_add_u32 s{S_T0+Q}, s{S_QROT}, {Q}", f"s_and_b32 s{S_T0+Q}, s{S_T0+Q}, 3",
                    f"s_lshl_b32 s{S_T0+Q}, s{S_T0+Q}, 14"])
    for i in range(56):
        issued = min(56, i + D)
        nst = sum(1 for k in range(i) for x in extra.get(k, []) if x.startswith("buffer_store"))
        wait = f"s_waitcnt vmcnt({issued - i - 1 + nst})"
        if i == (1 if (o.el or o.i6) else 3):
            wait += " lgkmcnt(0)"
        e(wait)
        m = p2_mfma(i)
        x = extra.get(i, [])
        if i + D < 56:
            n3 = (len(x) + 2) // 3
            gaps = [[hload(i + D)], x[0:n3], x[n3:2*n3], x[2*n3:]]
        else:
            n4 = (len(x) + 3) // 4
            gaps = [x[0:n4], x[n4:2*n4], x[2*n4:3*n4], x[3*n4:]]
        grp(g, m, gaps)
        g.stamp(f"h{i}")
    g.stamp("loopend")
    w = red_write(3)[::-1]
    e("s_nop 4")
    g.es(w)
    e("s_waitcnt lgkmcnt(0)")
    e("s_barrier")
    g.es(red_read(3))
    if not o.earlyst:
        for Q in range(3):
            e(out_store(Q))
    if o.fasttail:
        R = V_RD
        e("s_waitcnt lgkmcnt(2)")
        e(f"v_pk_add_f32 v[{R}:{R+1}], v[{R}:{R+1}], v[{R+4}:{R+5}]")
        e(f"v_pk_add_f32 v[{R+2}:{R+3}], v[{R+2}:{R+3}], v[{R+6}:{R+7}]")
        e("s_waitcnt lgkmcnt(0)")
        e(f"v_pk_add_f32 v[{R+8}:{R+9}], v[{R+8}:{R+9}], v[{R+12}:{R+13}]")
        e(f"v_pk_add_f32 v[{R+10}:{R+11}], v[{R+10}:{R+11}], v[{R+14}:{R+15}]")
        e(f"v_pk_add_f32 v[{R}:{R+1}], v[{R}:{R+1}], v[{R+8}:{R+9}]")
        e(f"v_pk_add_f32 v[{R+2}:{R+3}], v[{R+2}:{R+3}], v[{R+10}:{R+11}]")
        g.es(red_sum(3)[12:14])
    else:
        e("s_waitcnt lgkmcnt(0)")
        g.es(red_sum(3))
    e(out_store(3))
    if o.stamps:
        e("s_waitcnt vmcnt(0)")
        g.stamp("final")
        e("s_waitcnt lgkmcnt(0)")
        if o.probe:
            pa, pb, pwg = [int(x) for x in o.probe.split(",")]
            if pwg >= 0:
                e(f"s_cmp_lg_u32 s2, {pwg}")
                e("s_cbranch_scc1 L_end")
            if pwg == -2:
                e(f"s_cmp_ge_u32 s{S_I}, 28")
                e("s_cbranch_scc1 L_end")
            e(f"s_sub_u32 s{S_T0}, s{S_ST+2*pb}, s{S_NON if pa == 9 else S_ST+2*pa}")
            e(f"s_min_u32 s{S_T0}, s{S_T0}, 5000")
            e(f"s_mul_i32 s{S_T0}, s{S_T0}, 10")
            e(f"s_add_u32 s{S_T0}, s{S_T0}, s{S_ST+16}")
            g.lab("L_probe")
            e(f"s_memrealtime s[4:5]")
            e("s_waitcnt lgkmcnt(0)")
            e(f"s_sub_u32 s{S_T1}, s4, s{S_T0}")
            e(f"s_cmp_lt_i32 s{S_T1}, 0")
            e("s_cbranch_scc1 L_probe")
            e("s_endpgm")
        for n in range(9):
            e(f"v_mov_b32 v{96+n}, s{S_ST+2*n}")
        e(f"s_lshl_b32 s{S_T0}, s2, 8")
        e(f"s_lshl_b32 s{S_T1}, s{S_WAVE}, 6")
        e(f"s_add_u32 s{S_T0}, s{S_T0}, s{S_T1}")
        e(f"s_add_u32 s{S_T0}, s{S_T0}, {hex(STAMP_OFF)}")
        e("v_mov_b32 v108, 0")
        e("s_mov_b64 exec, 1")
        for n in range(3):
            e(f"buffer_store_dwordx4 v[{96+4*n}:{99+4*n}], v108, s[{S_WS}:{S_WS+3}], s{S_T0} offen offset:{16*n} sc1")
    g.lab("L_end")
    e("s_endpgm")

    g.lab("L_early_idle")
    def _pt():
        if o.ptouch:
            e(f"v_lshrrev_b32 v{V_ACC+4}, 2, v{L}")
            e(f"v_and_b32 v{V_ACC+5}, 1, v{L}")
            e(f"v_bfe_u32 v{V_ACC+6}, v{L}, 1, 1")
            e(f"v_lshl_add_u32 v{V_ACC+5}, v{V_ACC+6}, 2, v{V_ACC+5}")
            e(f"v_lshlrev_b32 v{V_ACC+5}, 7, v{V_ACC+5}")
            e(f"v_lshl_add_u32 v{V_ACC+4}, v{V_ACC+4}, 10, v{V_ACC+5}")
            e(f"s_and_b32 s{S_U+1}, s{S_XCD}, 6")
            e(f"s_lshl_b32 s{S_U+1}, s{S_U+1}, 1")
            e(f"s_add_u32 s{S_U+1}, s{S_U+1}, s{S_Q}")
            e(f"s_lshl_b32 s{S_U+1}, s{S_U+1}, 1")
            e(f"s_and_b32 s{S_U+2}, s{S_XCD}, 1")
            e(f"s_add_u32 s{S_U+1}, s{S_U+1}, s{S_U+2}")
            e(f"s_lshl_b32 s{S_U+1}, s{S_U+1}, 2")
            e(f"s_add_u32 s{S_U+1}, s{S_U+1}, s{S_WAVE}")
            e(f"s_lshl_b32 s{S_U+1}, s{S_U+1}, 14")
            e(f"v_mul_u32_u24 v{V_ACC+5}, 4682, v{L}")
            e(f"v_lshrrev_b32 v{V_ACC+5}, 16, v{V_ACC+5}")
            e(f"v_mul_u32_u24 v{V_ACC+6}, 14, v{V_ACC+5}")
            e(f"v_sub_u32 v{V_ACC+6}, v{L}, v{V_ACC+6}")
            e(f"v_lshlrev_b32 v{V_ACC+6}, 7, v{V_ACC+6}")
            e(f"v_and_b32 v{V_ACC+7}, 1, v{V_ACC+5}")
            e(f"v_lshrrev_b32 v{V_ACC+5}, 1, v{V_ACC+5}")
            e(f"v_lshl_add_u32 v{V_ACC+5}, v{V_ACC+5}, 8, v{V_ACC+7}")
            e(f"v_mul_u32_u24 v{V_ACC+5}, 3584, v{V_ACC+5}")
            e(f"v_add_u32 v{V_ACC+5}, v{V_ACC+5}, v{V_ACC+6}")
            e(f"s_mul_i32 s{S_U+2}, s{S_U+2}, 1792")
            e(f"s_lshr_b32 s{S_U+3}, s{S_XCD}, 1")
            e(f"s_lshl_b32 s{S_U+3}, s{S_U+3}, 2")
            e(f"s_add_u32 s{S_U+3}, s{S_U+3}, s{S_Q}")
            e(f"s_lshl_b32 s{S_U+3}, s{S_U+3}, 2")
            e(f"s_add_u32 s{S_U+3}, s{S_U+3}, s{S_WAVE}")
            e(f"s_lshl_b32 s{S_U+3}, s{S_U+3}, 1")
            e(f"s_add_u32 s{S_U+3}, s{S_U+3}, 128")
            e(f"s_mul_i32 s{S_U+3}, s{S_U+3}, 3584")
            e(f"s_add_u32 s{S_U+2}, s{S_U+2}, s{S_U+3}")
            e(f"s_mov_b64 exec, 0x00ffffffffffffff" if False else f"s_mov_b32 exec_hi, 0xffffff")
            e(f"buffer_load_dword v{V_ACC+60}, v{V_ACC+5}, s[{S_W1}:{S_W1+3}], s{S_U+2} offen")
            e(f"s_mov_b32 exec_hi, -1")
            e(f"buffer_load_dword v{V_ACC+61}, v{V_ACC+4}, s[{S_X}:{S_X+3}], s{S_U+1} offen offset:{256 + (1024 if WX else 0)}")
    def _wt():
        if o.touch:
            srd(g, S_W2, 8, 512 * 1792 * 2)
            e(f"v_lshlrev_b32 v{V_ACC+8}, 7, v{L}")
            e(f"s_lshl_b32 s{S_U+1}, s{S_Q}, 3")
            e(f"s_add_u32 s{S_U+1}, s{S_U+1}, s{S_XCD}")
            e(f"s_lshl_b32 s{S_U+1}, s{S_U+1}, 2")
            e(f"s_add_u32 s{S_U+1}, s{S_U+1}, s{S_WAVE}")
            e(f"s_mul_i32 s{S_U+1}, s{S_U+1}, {14*1024}")
            e(f"s_add_u32 s{S_U+2}, s{S_U+1}, 8192")
            e(f"buffer_load_dword v{V_ACC+62}, v{V_ACC+8}, s[{S_W2}:{S_W2+3}], s{S_U+1} offen")
            e(f"s_mov_b32 exec_hi, 0xffff")
            e(f"buffer_load_dword v{V_ACC+63}, v{V_ACC+8}, s[{S_W2}:{S_W2+3}], s{S_U+2} offen")
            e(f"s_mov_b32 exec_hi, -1")
    if o.wfirst:
        _wt()
        _pt()
    else:
        _pt()
        _wt()
    e("s_branch L_setup2")

    g.lab("L_idle")
    seq = [0, 5, 6, 1, 2, 3, 4]
    e(nonce_load())
    g.es(flat(dma_w(seq[0], 0)))
    g.es(flat(dma_w(seq[1], 1)))
    for k in range(7):
        if k + 2 < 7:
            g.es(flat(dma_w(seq[k + 2], k + 2)))
        e(f"s_waitcnt vmcnt({8*min(2, 6-k)}) lgkmcnt(4)")
        emit_tr(g, seq[k], k)
    g.stamp("wl6")
    emit_nonce_check(g, "i")
    emit_poll(g, "I")
    g.stamp("ready")
    if o.rbar:
        e("s_barrier")
    hinit()
    e("s_branch L_p2")

    if o.ins2:
        g.lab("L_path2")
        if o.el:
            producer("V", C[:o.ins] + [('w', 0)] + C[o.ins:o.ins2] + [('w', 2)] + C[o.ins2:] + [('w', b) for b in (5, 6, 1, 3, 4)])
        else:
            producer("V", C[:o.ins2] + [('w', 0)] + C[o.ins2:] + W)
        e("s_branch L_p2")
    g.lab("L_code_end")

    body = "\n".join(g.L)
    txt = HEADER + f""".amdgcn_target "amdgcn-amd-amdhsa--gfx950"
.text
.globl {KNAME}
.p2align 8
.type {KNAME},@function
{body}
.section .rodata,"a"
.p2align 6
.amdhsa_kernel {KNAME}
  .amdhsa_next_free_vgpr 512
  .amdhsa_next_free_sgpr 102
  .amdhsa_accum_offset 256
  .amdhsa_group_segment_fixed_size 0
  .amdhsa_kernarg_size 48
  .amdhsa_user_sgpr_count 2
  .amdhsa_user_sgpr_kernarg_segment_ptr 1
  .amdhsa_system_sgpr_workgroup_id_x 1
.end_amdhsa_kernel
"""
    return txt


def parse(argv):
    p = argparse.ArgumentParser()
    p.add_argument("-o", default=None)
    p.add_argument("--co", default=None)
    p.add_argument("--stamps", default="")
    p.add_argument("--rt", type=int, default=0)
    p.add_argument("--depth", type=int, default=10)
    p.add_argument("--nbuf", type=int, default=16)
    p.add_argument("--ins", type=int, default=4)
    p.add_argument("--ins2", type=int, default=6)
    p.add_argument("--rotsh", type=int, default=2)
    p.add_argument("--qmask", type=int, default=1)
    p.add_argument("--outflag", default="sc1")
    p.add_argument("--probe", default="")
    p.add_argument("--cpf", type=int, default=1)
    p.add_argument("--touch", type=int, default=1)
    p.add_argument("--npf", type=int, default=0)
    p.add_argument("--pat", type=int, default=6)
    p.add_argument("--redmode", type=int, default=0)
    p.add_argument("--presleep", type=int, default=0)
    p.add_argument("--wfirst", type=int, default=0)
    p.add_argument("--npre", type=int, default=2)
    p.add_argument("--pollk", type=int, default=3)
    p.add_argument("--apoll", type=int, default=4)
    p.add_argument("--el", type=int, default=0)
    p.add_argument("--rbar", type=int, default=0)
    p.add_argument("--tlb", type=int, default=0)
    p.add_argument("--wx", type=int, default=0)
    p.add_argument("--i6", type=int, default=2)
    p.add_argument("--stage", type=int, default=5)
    p.add_argument("--earlyst", type=int, default=1)
    p.add_argument("--fasttail", type=int, default=1)
    p.add_argument("--m0early", type=int, default=1)
    p.add_argument("--ptouch", type=int, default=1)
    p.add_argument("--idlesleep", type=int, default=0)
    return p.parse_args(argv)


if __name__ == "__main__":
    o = parse(sys.argv[1:])
    txt = gen(o)
    if o.o:
        open(o.o, "w").write(txt)
    if o.co:
        open(o.co + ".s", "w").write(txt + META)
        r = subprocess.run(["clang", "-x", "assembler", "-target", "amdgcn-amd-amdhsa",
                            "-mcpu=gfx950", o.co + ".s", "-o", o.co + ".co"], capture_output=True, text=True)
        if r.returncode:
            print(r.stderr[:4000])
            sys.exit(1)
```

```python
import sys, subprocess, argparse
from gen import HEADER, KNAME, META

FLAGS_OFF = 0x800000
STAMP_OFF = 0x8000000
RHO = 57344

S_X, S_W1, S_W2, S_OUT, S_DBG, S_WS = 16, 20, 24, 28, 32, 36
S_WAVE = 40
S_XCD = 41
S_I = 42
S_T0, S_T1, S_T2, S_T3 = 43, 44, 45, 46
S_M0A = 47
S_U = 48
S_M0W2 = 55
S_UW = 56
S_SPIN = 63
S_KX = 64
S_KW = 72
S_POLL = 64
S_NON = 80
S_PA = 82
S_ST = 84
S_Q = 3
S_FA = 8
S_QROT = 11

V_LANE = 1
V_OX = 2
V_OW1 = 6
V_OW2 = 10
V_H = 14
V_ZERO = 18
V_NON = 20
V_HST = 22
V_OUT = 23
V_RW = 24
V_RR = 26
V_ACC = 32
V_FR = 96
V_EP = 160
V_AX = 192
V_AW1 = 198
V_AW2 = 210
V_RES = 222
V_RD = 232
V_T = 232
V_HR = 96
NONCE_POS = 2
WX = 0
MF = "v_mfma_f32_16x16x32_bf16"


DOC = """;
"""


class G:
    def __init__(self, o):
        self.o = o
        self.L = []

    def e(self, s):
        self.L.append("    " + s)

    def es(self, l):
        for x in l:
            self.e(x)

    def lab(self, s):
        self.L.append(s + ":")

    def c(self, s):
        self.L.append("    ; " + s)

    def stamp(self, name):
        if not self.o.stamps:
            return
        names = self.o.stamps.split(",")
        if name == "final":
            idx = 8
        elif name in names[:8]:
            idx = names.index(name)
        else:
            return
        r = S_ST + 2 * idx
        self.e(f"s_memrealtime s[{r}:{r+1}]" if self.o.rt else f"s_memtime s[{r}:{r+1}]")


def srd(g, d, lo, nbytes):
    g.e(f"s_mov_b32 s{d}, s{lo}")
    g.e(f"s_mov_b32 s{d+1}, s{lo+1}")
    g.e(f"s_mov_b32 s{d+2}, {hex(nbytes)}")
    g.e(f"s_mov_b32 s{d+3}, 0x20000")


def slot_base(pos):
    return (pos % 5) * 32768


def zone(pos):
    s = pos % 5
    return s // 2, (s % 2) * 32768


def dma_c(t, pos):
    sb = slot_base(pos)
    out = []
    if WX:
        for k in range(8):
            j, isx = divmod(k, 2)
            vo, sr, so = (V_OX, S_X, S_KX + t) if isx else (V_OW1, S_W1, S_KW + t)
            ins = f"buffer_load_dwordx4 v{vo+j}, s[{sr}:{sr+3}], s{so} offen offset:{1024*(k%4)} lds"
            if k % 4 == 0:
                out.append([f"s_add_u32 m0, s{S_M0W2}, {sb + 4096*(k//4)}", "s_nop 0", ins])
            else:
                out.append([ins])
        return out
    for vo, sr, so, add in ((V_OW1, S_W1, S_KW + t, 0), (V_OX, S_X, S_KX + t, 16384)):
        for j in range(4):
            ins = f"buffer_load_dwordx4 v{vo+j}, s[{sr}:{sr+3}], s{so} offen offset:{1024*j} lds"
            if j == 0:
                out.append([f"s_add_u32 m0, s{S_M0A}, {sb+add}", "s_nop 0", ins])
            else:
                out.append([ins])
    return out


def dma_w(b, pos):
    sb = slot_base(pos)
    out = []
    for half in range(2):
        for j in range(4):
            so = f"s{S_UW+b}" if half == 0 else f"s{S_T3}"
            ins = f"buffer_load_dwordx4 v{V_OW2+j}, s[{S_W2}:{S_W2+3}], {so} offen offset:{1024*j} lds"
            if j == 0:
                pre = [f"s_add_u32 m0, s{S_M0W2}, {sb + 4096*half}"]
                pre.append(f"s_add_u32 s{S_T3}, s{S_UW+b}, 32768" if half == 1 else "s_nop 0")
                out.append(pre + [ins])
            else:
                out.append([ins])
    return out


def flat(groups):
    return [x for gr in groups for x in gr]


def frA(s, phi):
    return V_FR + 32 * s + 4 * phi


def frB(s, rho):
    return V_FR + 32 * s + 16 + 4 * rho


def rdA(pos, s, phi):
    z, add = zone(pos)
    return [f"ds_read_b64_tr_b16 v[{frA(s,phi)+2*e}:{frA(s,phi)+2*e+1}], v{V_AW1+4*z+phi} offset:{add + ((16384*s + 2048*e) if WX else (32*s+4*e)*256)}"
            for e in range(2)]


def rdB(pos, s, rho):
    z, add = zone(pos)
    return [f"ds_read_b128 v[{frB(s,rho)}:{frB(s,rho)+3}], v{V_AX+2*z+s} offset:{add + (rho*4096 if WX else 16384 + rho*2048)}"]


def p1_reads(pos, sub):
    s, h = divmod(sub, 2)
    if h == 0:
        return rdA(pos, s, 0) + rdB(pos, s, 0) + rdB(pos, s, 1) + rdB(pos, s, 2) + rdB(pos, s, 3) + rdA(pos, s, 1)
    return rdA(pos, s, 2) + rdA(pos, s, 3)


def acc1(phi, rho):
    return V_ACC + (phi * 4 + rho) * 4


def p1_mfma(sub, first):
    s, h = divmod(sub, 2)
    r = []
    for k, phi in enumerate((2 * h, 2 * h + 1)):
        for rho in (range(4) if k == 0 else range(3, -1, -1)):
            a = acc1(phi, rho)
            A, B = frA(s, phi), frB(s, rho)
            c = "0" if first else f"v[{a}:{a+3}]"
            r.append(f"{MF} v[{a}:{a+3}], v[{A}:{A+3}], v[{B}:{B+3}], {c}")
    return r


def w2_tr(b, pos):
    z, add = zone(pos)
    r = []
    for kp in range(2):
        for nu in range(4):
            for e in range(2):
                d = ((b * 2 + kp) * 4 + nu) * 4 + 2 * e
                r.append(f"ds_read_b64_tr_b16 a[{d}:{d+1}], v{V_AW2+4*z+nu} offset:{add + (32*kp+16*e)*128}")
    return r


def emit_tr(g, b, pos):
    for i, x in enumerate(w2_tr(b, pos)):
        if i == 8:
            g.e("s_waitcnt lgkmcnt(4)")
        g.e(x)


def grp(g, mf, gaps):
    gaps = list(gaps) + [[]] * (len(mf) - len(gaps))
    for m, gp in zip(mf, gaps):
        if m:
            g.e(m)
        g.es(gp)


def poll_load():
    return f"s_load_dwordx16 s[{S_POLL}:{S_POLL+15}], s[{S_PA}:{S_PA+1}], 0 glc"


def emit_poll(g, tag, issued=False):
    e = g.e
    e(f"s_mov_b32 s{S_SPIN}, 0x40000")
    if issued:
        e(f"s_branch L_check_{tag}")
    g.lab(f"L_poll_{tag}")
    e(poll_load())
    e(f"s_sub_u32 s{S_SPIN}, s{S_SPIN}, 1")
    e(f"s_cbranch_scc1 L_ready_{tag}")
    g.lab(f"L_check_{tag}")
    e("s_waitcnt lgkmcnt(0)")
    for k in range(7):
        e(f"s_cmp_lg_u64 s[{S_POLL+2*k}:{S_POLL+2*k+1}], s[{S_NON}:{S_NON+1}]")
        e(f"s_cbranch_scc1 L_poll_{tag}")
    g.lab(f"L_ready_{tag}")


def nonce_load():
    return f"buffer_load_dwordx2 v[{V_NON}:{V_NON+1}], v{V_ZERO}, s[{S_DBG}:{S_DBG+3}], 0 offen sc1"


def emit_nonce_check(g, tag):
    e = g.e
    e(f"v_readfirstlane_b32 s{S_NON+1}, v{V_NON+1}")
    e(f"s_mov_b32 s{S_SPIN}, 0x40000")
    g.lab(f"L_non_{tag}")
    e(f"s_cmp_lg_u32 s{S_NON+1}, 0")
    e(f"s_cbranch_scc1 L_nonok_{tag}")
    e(nonce_load())
    e("s_waitcnt vmcnt(0)")
    e(f"v_readfirstlane_b32 s{S_NON+1}, v{V_NON+1}")
    e(f"s_sub_u32 s{S_SPIN}, s{S_SPIN}, 1")
    e(f"s_cbranch_scc0 L_non_{tag}")
    g.lab(f"L_nonok_{tag}")
    e(f"v_readfirstlane_b32 s{S_NON}, v{V_NON}")


def epi(h, rho):
    d = V_EP + 4 * (4 * h + rho)
    r = []
    for k in range(2):
        a = acc1(2 * h + k, rho)
        r.append(f"v_cvt_pk_bf16_f32 v{d+2*k}, v{a}, v{a+1}")
        r.append(f"v_cvt_pk_bf16_f32 v{d+2*k+1}, v{a+2}, v{a+3}")
    for jj in range(4):
        r.append(f"v_pk_max_i16 v{d+jj}, v{d+jj}, 0")
    so = "0" if rho == 0 else f"s{S_T0+rho-1}"
    r.append(f"buffer_store_dwordx4 v[{d}:{d+3}], v{V_HST}, s[{S_WS}:{S_WS+3}], {so} offen offset:{1024*h} sc1")
    return r


def emit_p1(g, tag, stream):
    e = g.e
    last = stream.index(('c', 7))
    pending = False
    for p in range(last + 1):
        kind, idx = stream[p]
        g.c(f"---- {tag} pos {p}: {kind}{idx}")
        e(f"s_waitcnt vmcnt({9 if p == NONCE_POS + 1 else 8}) lgkmcnt(0)")
        e("s_barrier")
        g.stamp(f"bar{kind}{idx}")
        nk, ni = stream[p + 2]
        f = dma_c(ni, p + 2) if nk == 'c' else dma_w(ni, p + 2)
        if p == last and g.o.npre < 2:
            f = [["s_nop 0"]] + [[]] * 3 + [["s_nop 0"]] + [[]] * 3
        m3 = p1_mfma(3, False) if pending else [None] * 8
        pat = g.o.pat
        if kind == 'c' and pat == 0:
            R = [p1_reads(p, k) for k in range(4)]
            grp(g, m3, [R[0][0:2], R[0][2:4], R[0][4:6], R[0][6:8], R[1][0:2], R[1][2:4], [], f[0]])
            e("s_waitcnt lgkmcnt(4)")
            grp(g, p1_mfma(0, idx == 0), [R[2][0:2], R[2][2:4], R[2][4:6], R[2][6:8], f[1], [], f[2], []])
            e("s_waitcnt lgkmcnt(8)")
            if idx < 7:
                grp(g, p1_mfma(1, idx == 0), [R[3][0:2], R[3][2:4], f[3], [], f[4], [], [], f[5]])
                e("s_waitcnt lgkmcnt(4)")
                grp(g, p1_mfma(2, False), [[], [], f[6], [], [], [], f[7], []])
            else:
                grp(g, p1_mfma(1, False), [R[3][0:2], R[3][2:4], f[3], f[4], f[5], f[6], f[7], []])
            pending = True
        elif kind == 'c' and pat in (1, 3, 4):
            R = [[[x] for x in p1_reads(p, k)] for k in range(4)]
            a0, a4 = [], []
            if g.o.m0early:
                f = [list(x) for x in f]
                a0 = [x for x in f[0][:-1] if x != "s_nop 0"]
                a4 = [x for x in f[4][:-1] if x != "s_nop 0"]
                f[0], f[4] = f[0][-1:], f[4][-1:]
            if pat == 4:
                grp(g, m3, [R[0][0] + R[0][1], R[0][2] + R[0][3], R[0][4], R[0][5], R[0][6], R[0][7], a0,
                            f[0] if pending else ["s_nop 0"] + f[0]])
                e("s_waitcnt lgkmcnt(2)")
                m0 = p1_mfma(0, idx == 0)
                grp(g, m0[0:4], [R[1][0], R[1][1], R[1][2], R[1][3]])
                e("s_waitcnt lgkmcnt(4)")
                grp(g, m0[4:8], [R[2][0] + f[1], R[2][1], R[2][2], R[2][3] + f[2]])
            elif pat == 1:
                grp(g, m3, [R[0][0] + R[0][1], R[0][2] + R[0][3], R[0][4], R[0][5], R[0][6], R[0][7], a0,
                            f[0] if pending else ["s_nop 0"] + f[0]])
                e("s_waitcnt lgkmcnt(0)")
                grp(g, p1_mfma(0, idx == 0), [R[1][0], R[1][1], R[1][2], R[1][3], R[2][0] + f[1], R[2][1], R[2][2], R[2][3] + f[2]])
            else:
                grp(g, m3, [R[0][0] + R[0][1], R[0][2], R[0][3], R[0][4], R[0][5], R[0][6], R[0][7], f[0]])
                e("s_waitcnt lgkmcnt(2)")
                m0 = p1_mfma(0, idx == 0)
                grp(g, m0[0:4], [R[1][0], R[1][1], R[1][2], R[1][3]])
                e("s_waitcnt lgkmcnt(4)")
                grp(g, m0[4:8], [R[2][0] + f[1], R[2][1], R[2][2], R[2][3] + f[2]])
            e("s_waitcnt lgkmcnt(4)")
            if idx < 7:
                grp(g, p1_mfma(1, idx == 0), [R[2][4], R[2][5], R[2][6] + f[3], R[2][7], R[3][0] + a4, R[3][1] + f[4], R[3][2], R[3][3]])
                e("s_waitcnt lgkmcnt(4)")
                grp(g, p1_mfma(2, False), [f[5], [], [], f[6], [], [], f[7], []])
            else:
                grp(g, p1_mfma(1, False), [R[2][4] + f[3] + a4, R[2][5] + f[4], R[2][6] + f[5], R[2][7] + f[6], R[3][0] + f[7], R[3][1], R[3][2], R[3][3]])
            pending = True
        elif kind == 'c' and pat >= 5:
            R = [[[x] for x in p1_reads(p, k)] for k in range(4)]
            f = [list(x) for x in f]
            a0 = [x for x in f[0][:-1] if x != "s_nop 0"]
            a4 = [x for x in f[4][:-1] if x != "s_nop 0"]
            f[0], f[4] = f[0][-1:], f[4][-1:]
            rd = R[0] + R[1] + R[2] + R[3]
            NG = 32 if idx < 7 else 24
            tabs = {
                5: ([0, 0, 1, 1, 2, 3, 4, 5, 7, 8, 9, 10, 12, 13, 14, 15, 16, 17, 18, 19, 21, 22, 23, 24], [6, 11, 14, 17, 20, 23, 26, 29]),
                6: ([0, 0, 1, 1, 2, 2, 3, 4, 5, 6, 8, 9, 10, 11, 12, 13, 14, 15, 16, 17, 18, 19, 20, 21], [7, 10, 13, 16, 22, 24, 26, 28]),
                7: ([0, 0, 1, 1, 2, 3, 4, 5, 8, 9, 10, 11, 12, 13, 14, 15, 16, 17, 18, 19, 20, 21, 22, 23], [24, 25, 26, 27, 29, 30, 31, 31]),
                8: ([0, 0, 1, 1, 2, 3, 4, 5, 8, 9, 10, 11, 12, 13, 14, 15, 16, 17, 18, 19, 20, 21, 22, 23], [3, 7, 11, 15, 19, 23, 27, 31]),
            }
            rg, dg = tabs[pat]
            if idx == 7:
                rg = [min(x, 23) for x in rg]
                dg = [6, 9, 12, 15, 17, 19, 21, 23]
            gaps = [[] for _ in range(32)]
            for k in range(24):
                gaps[rg[k]] += rd[k]
            for k in range(8):
                gaps[dg[k]] += f[k]
            gaps[dg[0] - 1] += a0
            gaps[dg[4] - 1] += a4
            if not pending:
                gaps[dg[0]] = ["s_nop 0"] + gaps[dg[0]]
            mf = m3 + p1_mfma(0, idx == 0) + p1_mfma(1, idx == 0) + (p1_mfma(2, False) if idx < 7 else [])
            need = {8: 6, 12: 8, 16: 10, 20: 12, 24: 18, 28: 20}
            for n in range(NG):
                if n in need:
                    issued = sum(1 for k in range(24) if rg[k] < n)
                    assert issued >= need[n], (pat, n)
                    e(f"s_waitcnt lgkmcnt({issued - need[n]})")
                if mf[n]:
                    e(mf[n])
                g.es(gaps[n])
            pending = True
        elif kind == 'c' and pat == 2:
            R = [[[x] for x in p1_reads(p, k)] for k in range(4)]
            m2 = p1_mfma(2, False) if pending else [None] * 8
            grp(g, m2, R[0][0:7] + [R[0][7] + f[0]])
            grp(g, m3, R[1][0:4] + [f[1], [], f[2], []])
            e("s_waitcnt lgkmcnt(4)" if pending else "s_waitcnt lgkmcnt(4)")
            grp(g, p1_mfma(0, idx == 0), [R[2][0], R[2][1], R[2][2] + f[3], R[2][3], R[2][4], R[2][5], R[2][6] + f[4], R[2][7]])
            e("s_waitcnt lgkmcnt(8)")
            grp(g, p1_mfma(1, idx == 0), R[3][0:4] + [f[5], f[6], [], f[7]])
            pending = True
        else:
            T = w2_tr(idx, p)
            if pat == 2 and pending:
                g.es(p1_mfma(2, False))
            grp(g, m3, [T[0:2], T[2:4], T[4:6], T[6:8], T[8:10], T[10:12]])
            e("s_waitcnt lgkmcnt(4)")
            g.es(T[12:16])
            g.es(flat(f))
            pending = False
        if p == NONCE_POS:
            e(nonce_load())
    g.c(f"---- {tag} P1 tail")
    e("s_waitcnt lgkmcnt(4)")
    m2, m3 = p1_mfma(2, False), p1_mfma(3, False)
    g.es(m2[0:4])
    emit_nonce_check(g, tag)
    for k in range(3):
        e(f"s_mov_b32 s{S_T0+k}, {RHO*(k+1)}")
    g.es(m2[4:8])
    e("s_waitcnt lgkmcnt(0)")
    g.stamp("bar8")
    E0 = epi(0, 3) + epi(0, 2) + epi(0, 1) + epi(0, 0)
    g.es(m3[0:2])
    e("s_nop 2")
    grp(g, m3[2:8], [E0[0:3], E0[3:6], E0[6:9], E0[9:12], E0[12:15], E0[15:18]])
    g.es(E0[18:])
    g.es(epi(1, 3) + epi(1, 2) + epi(1, 1) + epi(1, 0))
    g.stamp("Hst")


def emit_flag(g):
    g.e(f"s_atomic_swap_x2 s[{S_NON}:{S_NON+1}], s[{S_FA}:{S_FA+1}], 0")
    g.stamp("flag")


def gen(o):
    global WX
    WX = o.wx
    g = G(o)
    e = g.e
    D = o.depth
    NB = o.nbuf
    L = V_LANE
    T = V_T
    g.lab(KNAME)
    g.stamp("entry")
    e("s_load_dwordx8 s[4:11], s[0:1], 0")
    e("s_load_dwordx4 s[12:15], s[0:1], 32")
    e(f"s_memrealtime s[{S_PA}:{S_PA+1}]")
    e("s_cmp_ge_u32 s2, 256")
    e("s_cbranch_scc1 L_end")
    e(f"v_lshrrev_b32 v{T}, 6, v0")
    e(f"v_and_b32 v{L}, 63, v0")
    e(f"s_and_b32 s{S_XCD}, s2, 7")
    e(f"v_readfirstlane_b32 s{S_WAVE}, v{T}")
    e(f"s_lshr_b32 s{S_I}, s2, 3")
    if o.cpf:
        e(f"s_cmp_lt_u32 s{S_I}, 31")
        e("s_cbranch_scc1 L_nocpf")
        e("s_getpc_b64 s[20:21]")
        g.lab("L_pc")
        e(f"v_lshlrev_b32 v{V_ACC}, 7, v0")
        e(f"v_mov_b32 v{V_ACC+3}, s21")
        e(f"v_add_co_u32 v{V_ACC+2}, vcc, s20, v{V_ACC}")
        e("s_nop 1")
        e(f"v_addc_co_u32 v{V_ACC+3}, vcc, 0, v{V_ACC+3}, vcc")
        e(f"v_cmp_gt_u32 vcc, L_code_end-L_pc, v{V_ACC}")
        e("s_and_saveexec_b64 s[22:23], vcc")
        e("s_cbranch_execz L_cpf_done")
        e(f"global_load_dword v{V_ACC+1}, v[{V_ACC+2}:{V_ACC+3}], off")
        g.lab("L_cpf_done")
        e("s_mov_b64 exec, s[22:23]")
        g.lab("L_nocpf")
    e(f"s_and_b32 s{S_Q}, s{S_I}, 3")
    e(f"s_lshr_b32 s{S_T1}, s{S_I}, 2")
    e(f"s_add_u32 s{S_T2}, s{S_Q}, s{S_T1}")
    e(f"s_lshl_b32 s{S_T2}, s{S_T2}, {o.rotsh}")
    e(f"s_and_b32 s{S_T3}, s{S_XCD}, 6")
    e(f"s_lshl_b32 s{S_T3}, s{S_T3}, 1")
    e(f"s_add_u32 s{S_U}, s{S_Q}, s{S_T3}")
    e(f"s_and_b32 s{S_T3}, s{S_XCD}, 1")
    e(f"s_mul_i32 s{S_T3}, s{S_T3}, 7")
    e(f"s_add_u32 s{S_SPIN}, s{S_T1}, s{S_T3}")
    e(f"s_lshl_b32 s{S_T0}, s{S_U}, 17")
    e(f"s_lshl_b32 s{S_T1}, s{S_SPIN}, 8")

    def kofs(t):
        e(f"s_add_u32 s{S_T3}, s{S_T2}, {t}")
        e(f"s_and_b32 s{S_T3}, s{S_T3}, 7")
        e(f"s_mul_i32 s{S_KW+t}, s{S_T3}, {64*3584}")
        e(f"s_lshl_b32 s{S_T3}, s{S_T3}, 7")
        e(f"s_add_u32 s{S_KX+t}, s{S_T3}, s{S_T0}")
        e(f"s_add_u32 s{S_KW+t}, s{S_KW+t}, s{S_T1}")
    kofs(0)
    kofs(1)
    e(f"s_lshl_b32 s{S_M0A}, s{S_WAVE}, 12")
    e(f"s_lshl_b32 s{S_M0W2}, s{S_WAVE}, 13")
    e(f"v_lshrrev_b32 v{T}, 4, v{L}")
    e(f"v_and_b32 v{T+1}, 15, v{L}")
    e(f"v_lshlrev_b32 v{T+2}, 1, v{T}")
    e(f"v_xor_b32 v{T+1}, v{T+1}, v{T+2}")
    e(f"v_lshlrev_b32 v{T+1}, 4, v{T+1}")
    e(f"s_lshl_b32 s{S_T3}, s{S_WAVE}, 4")
    e(f"v_add_u32 v{T+2}, s{S_T3}, v{T}")
    e(f"v_mul_u32_u24 v{T+2}, 3584, v{T+2}")
    e(f"v_add_u32 v{V_OW1}, v{T+1}, v{T+2}")
    e(f"v_xor_b32 v{T+1}, 128, v{T+1}")
    e(f"v_add_u32 v{T+1}, v{T+1}, v{T+2}")
    wi = (lambda j: 14336 * j - 2048 * (j & 1)) if WX else (lambda j: 13312 * j)
    e(f"v_add_u32 v{V_OW1+1}, {wi(1)}, v{V_OW1}")
    e(f"v_add_u32 v{V_OW1+2}, {wi(2)}, v{T+1}")
    e(f"v_add_u32 v{V_OW1+3}, {wi(3)}, v{T+1}")
    e(f"v_and_b32 v{T+1}, 7, v{L}")
    e(f"v_xor_b32 v{T+2}, v{T+1}, v{T}")
    e(f"v_lshlrev_b32 v{T+2}, 4, v{T+2}")
    e(f"v_lshrrev_b32 v{T+3}, 3, v{L}")
    e(f"s_lshl_b32 s{S_T3}, s{S_WAVE}, 15")
    e(f"v_lshl_add_u32 v{T+4}, v{T+3}, 10, s{S_T3}")
    e(f"v_add_u32 v{V_OX}, v{T+4}, v{T+2}")
    e(f"v_xor_b32 v{T+2}, 64, v{T+2}")
    e(f"v_add_u32 v{T+2}, v{T+4}, v{T+2}")
    xi = (lambda j: 8192 * j - 2048 * (j & 1)) if WX else (lambda j: 7168 * j)
    e(f"v_add_u32 v{V_OX+1}, {xi(1)}, v{T+2}")
    e(f"v_add_u32 v{V_OX+2}, {xi(2)}, v{V_OX}")
    e(f"v_add_u32 v{V_OX+3}, {xi(3)}, v{T+2}")
    e("s_waitcnt lgkmcnt(0)")
    g.stamp("karg")
    srd(g, S_W1, 6, 512 * 1792 * 2)
    if WX:
        e(f"s_sub_u32 s{S_X}, s4, 1024")
        e(f"s_subb_u32 s{S_X+1}, s5, 0")
        e(f"s_mov_b32 s{S_X+2}, {hex(2048 * 512 * 2 + 1024)}")
        e(f"s_mov_b32 s{S_X+3}, 0x20000")
    else:
        srd(g, S_X, 4, 2048 * 512 * 2)
    e(f"s_cmp_ge_u32 s{S_I}, 28")
    e("s_cbranch_scc1 L_early_idle")
    g.es(flat(dma_c(0, 0)))
    if o.early1 < 0:
        e("s_barrier")
    g.es(flat(dma_c(1, 1)[:abs(o.early1)]))
    g.stamp("dma0")
    g.lab("L_setup2")
    srd(g, S_DBG, 12, 256)
    e(f"v_mov_b32 v{V_ZERO}, 0")
    e(f"s_or_b32 s{S_T3}, s2, s{S_WAVE}")
    e(f"s_cmp_lg_u32 s{S_T3}, 0")
    e("s_cbranch_scc1 L_nonce_done")
    e(f"s_or_b32 s{S_PA+1}, s{S_PA+1}, 0x80000000")
    e(f"s_atomic_swap_x2 s[{S_PA}:{S_PA+1}], s[12:13], 0")
    e("s_waitcnt lgkmcnt(0)")
    g.lab("L_nonce_done")
    for t in range(2, 8):
        kofs(t)
    srd(g, S_W2, 8, 512 * 1792 * 2)
    srd(g, S_OUT, 10, 2048 * 512 * 2)
    srd(g, S_WS, 14, 0x10000000)
    e(f"s_lshr_b32 s{S_T0}, s{S_WAVE}, 1")
    e(f"s_and_b32 s{S_T1}, s{S_WAVE}, 1")
    e(f"s_lshl_b32 s{S_T2}, s{S_U}, 1")
    e(f"s_add_u32 s{S_T2}, s{S_T2}, s{S_T0}")
    e(f"s_lshl_b32 s{S_T3}, s{S_SPIN}, 1")
    e(f"s_add_u32 s{S_T3}, s{S_T3}, s{S_T1}")
    e(f"s_mul_i32 s4, s{S_T3}, 37")
    e(f"s_lshr_b32 s4, s4, 8")
    e(f"s_mul_i32 s5, s4, 7")
    e(f"s_sub_u32 s5, s{S_T3}, s5")
    e(f"s_lshl_b32 s6, s{S_T2}, 2")
    e(f"s_add_u32 s4, s4, s6")
    e(f"s_lshl_b32 s4, s4, 7")
    e(f"s_lshl_b32 s5, s5, 3")
    e(f"s_add_u32 s4, s4, s5")
    e(f"s_add_u32 s4, s4, {hex(FLAGS_OFF)}")
    e(f"s_add_u32 s{S_FA}, s14, s4")
    e(f"s_addc_u32 s{S_FA+1}, s15, 0")
    e(f"s_mul_i32 s{S_T2}, s{S_T2}, {4*RHO}")
    e(f"s_lshl_b32 s{S_T3}, s{S_T3}, 11")
    e(f"s_add_u32 s{S_T2}, s{S_T2}, s{S_T3}")
    e(f"v_lshl_add_u32 v{V_HST}, v{L}, 4, s{S_T2}")
    e(f"v_and_b32 v{T+2}, 15, v{L}")
    e(f"v_lshrrev_b32 v{T+5}, 1, v{T+2}")
    e(f"v_xor_b32 v{T+5}, v{T+5}, v{T}")
    e(f"v_lshlrev_b32 v{T+5}, 4, v{T+5}")
    if WX:
        e(f"v_lshl_add_u32 v{T+5}, v{T+1}, 7, v{T+5}")
        e(f"v_lshrrev_b32 v{T+6}, 3, v{T+2}")
        e(f"v_lshl_add_u32 v{T+5}, v{T+6}, 11, v{T+5}")
        e(f"s_lshl_b32 s{S_T2}, s{S_T0}, 14")
        e(f"s_add_u32 s{S_T2}, s{S_T2}, 1024")
    else:
        e(f"v_lshl_add_u32 v{T+5}, v{T+2}, 7, v{T+5}")
        e(f"s_lshl_b32 s{S_T2}, s{S_T0}, 13")
    e(f"v_add_u32 v{V_AX}, s{S_T2}, v{T+5}")
    e(f"v_xor_b32 v{V_AX+1}, 64, v{V_AX}")
    for z in (1, 2):
        for s in range(2):
            e(f"v_add_u32 v{V_AX+2*z+s}, {65536*z}, v{V_AX+s}")
    e(f"v_xor_b32 v{T+5}, v{T+1}, v{T}")
    e(f"v_lshlrev_b32 v{T+5}, 4, v{T+5}")
    e(f"v_lshl_add_u32 v{T+5}, v{T+2}, 8, v{T+5}")
    e(f"v_add_u32 v{V_RW}, s{S_M0W2}, v{T+5}")
    e(f"v_xor_b32 v{V_RW+1}, 64, v{V_RW}")
    e(f"s_lshl_b32 s{S_T2}, s{S_WAVE}, 2")
    e(f"v_add_u32 v{T+5}, s{S_T2}, v{T}")
    e(f"v_and_b32 v{T+6}, 7, v{T+5}")
    e(f"v_xor_b32 v{T+6}, v{T+6}, v{T+2}")
    e(f"v_lshlrev_b32 v{T+6}, 4, v{T+6}")
    e(f"v_lshl_add_u32 v{V_RR}, v{T+5}, 8, v{T+6}")
    e(f"v_lshlrev_b32 v{T+6}, 3, v{T+2}")
    e(f"v_lshl_add_u32 v{V_OUT}, v{T+5}, 10, v{T+6}")
    e(f"v_bfe_u32 v{T+2}, v{L}, 2, 2")
    e(f"v_and_b32 v{T+4}, 3, v{L}")
    e(f"v_lshlrev_b32 v{T+4}, 3, v{T+4}")
    e(f"v_and_b32 v{T+5}, 1, v{T}")
    e(f"v_lshl_add_u32 v{T+5}, v{T+5}, 2, v{T+2}")
    e(f"s_lshl_b32 s{S_T2}, s{S_T1}, 2")
    e(f"v_xor_b32 v{T+5}, s{S_T2}, v{T+5}")
    e(f"v_lshl_add_u32 v{T+5}, v{T+5}, 5, v{T+4}")
    e(f"v_lshl_add_u32 v{T+6}, v{T}, {4 if WX else 3}, v{T+2}")
    e(f"v_lshl_add_u32 v{V_AW1}, v{T+6}, 8, v{T+5}")
    for p in range(1, 4):
        e(f"v_xor_b32 v{V_AW1+p}, {32*p}, v{V_AW1}")
    for z in (1, 2):
        for p in range(4):
            e(f"v_add_u32 v{V_AW1+4*z+p}, {65536*z}, v{V_AW1+p}")
    e(f"v_lshl_add_u32 v{T+6}, v{T}, 2, v{T+2}")
    e(f"v_bfe_u32 v{T+5}, v{T+6}, 1, 2")
    e(f"v_lshl_add_u32 v{T+5}, v{T+5}, 5, v{T+4}")
    e(f"v_lshl_add_u32 v{T+5}, v{T+6}, 7, v{T+5}")
    e(f"v_add_u32 v{V_AW2}, s{S_M0W2}, v{T+5}")
    for p in range(1, 4):
        e(f"v_xor_b32 v{V_AW2+p}, {32*p}, v{V_AW2}")
    for z in (1, 2):
        for p in range(4):
            e(f"v_add_u32 v{V_AW2+4*z+p}, {65536*z}, v{V_AW2+p}")
    e(f"s_lshl_b32 s5, s{S_XCD}, 2")
    if o.el:
        e(f"s_and_b32 s4, s{S_Q}, 1")
        e(f"s_xor_b32 s4, s4, 1")
        e(f"s_lshl_b32 s4, s4, 1")
        e(f"s_add_u32 s5, s5, s4")
        e(f"s_lshr_b32 s4, s{S_Q}, 1")
        e(f"s_add_u32 s{S_T0}, s4, s5")
    else:
        e(f"s_add_u32 s{S_T0}, s{S_Q}, s5")
    e(f"s_lshr_b32 s4, s{S_I}, 2")
    e(f"s_cmp_ge_u32 s4, 3")
    e(f"s_addc_u32 s{S_T1}, s4, 0")
    e(f"s_cmp_eq_u32 s4, 7")
    e(f"s_cselect_b32 s{S_T1}, 3, s{S_T1}")
    e(f"s_lshr_b32 s4, s{S_T1}, 1")
    if o.rq == 1:
        e(f"s_add_u32 s4, s4, s{S_Q}")
    elif o.rq == 2:
        e(f"s_and_b32 s5, s{S_Q}, 1")
        e(f"s_add_u32 s4, s4, s5")
    elif o.rq == 3:
        e(f"s_and_b32 s5, s{S_Q}, 1")
        e(f"s_lshl_b32 s5, s5, 1")
        e(f"s_add_u32 s4, s4, s5")
    e(f"s_and_b32 s{S_T2}, s4, 3")
    e(f"s_and_b32 s{S_QROT}, s{S_T1}, {o.qmask}")
    e(f"s_mul_i32 s{S_T3}, s{S_WAVE}, 7")
    for b in range(7):
        if (o.el or o.i6) and b < 4:
            e(f"s_add_u32 s5, s{S_T2}, {b}")
            e(f"s_and_b32 s5, s5, 3")
            e(f"s_add_u32 s5, s5, s{S_T3}")
            e(f"s_add_u32 s5, s5, 2")
        elif (o.el or o.i6) and b == 4:
            e(f"s_add_u32 s5, s{S_T3}, 6")
        elif b < 5:
            e(f"s_add_u32 s5, s{S_T2}, {b}")
            e(f"s_cmp_ge_u32 s5, 5")
            e(f"s_cselect_b32 s6, -3, 2")
            e(f"s_add_u32 s5, s5, s6")
            e(f"s_add_u32 s5, s5, s{S_T3}")
        else:
            e(f"s_add_u32 s5, s{S_T3}, {b-5}")
        e(f"s_lshl_b32 s{S_UW+b}, s5, 16")
        e(f"s_lshl_b32 s{S_U+b}, s5, 11")
    e(f"v_lshlrev_b32 v{T+2}, 1, v{T}")
    e(f"v_xor_b32 v{T+2}, v{T+1}, v{T+2}")
    e(f"v_lshlrev_b32 v{T+2}, 4, v{T+2}")
    e(f"v_lshl_add_u32 v{T+2}, v{T+3}, 10, v{T+2}")
    e(f"s_lshl_b32 s{S_T2}, s{S_T1}, 7")
    e(f"v_add_u32 v{V_OW2}, s{S_T2}, v{T+2}")
    for j in range(1, 4):
        e(f"v_add_u32 v{V_OW2+j}, {7168*j}, v{V_OW2}")
    e(f"s_lshl_b32 s{S_T3}, s{S_T0}, 16")
    e(f"s_add_u32 s{S_T2}, s{S_T2}, s{S_T3}")
    e(f"v_add_u32 v{V_OUT}, s{S_T2}, v{V_OUT}")
    e(f"s_lshl_b32 s{S_T2}, s{S_T0}, 2")
    for Q in range(4):
        e(f"s_add_u32 s4, s{S_QROT}, {Q}")
        e(f"s_and_b32 s4, s4, 3")
        e(f"s_add_u32 s4, s4, s{S_T2}")
        e(f"s_mul_i32 s4, s4, {RHO}")
        e(f"v_lshl_add_u32 v{V_H+Q}, v{L}, 4, s4")
    e(f"s_add_u32 s{S_T2}, s{S_T2}, s{S_WAVE}")
    e(f"s_lshl_b32 s{S_T2}, s{S_T2}, 7")
    e(f"s_add_u32 s{S_T2}, s{S_T2}, {hex(FLAGS_OFF)}")
    e(f"s_add_u32 s{S_PA}, s14, s{S_T2}")
    e(f"s_addc_u32 s{S_PA+1}, s15, 0")
    e(f"s_load_dword s10, s[{S_PA}:{S_PA+1}], 0 glc")
    e(f"s_cmp_ge_u32 s{S_I}, 28")
    e("s_cbranch_scc1 L_idle")
    if o.tlb:
        e("s_mov_b64 exec, 1")
        if o.tlb & 1:
            e(f"buffer_load_dword v{V_EP}, v{V_HST}, s[{S_WS}:{S_WS+3}], 0 offen sc1")
        if o.tlb & 2:
            e(f"buffer_load_dword v{V_EP+1}, v{V_OUT}, s[{S_OUT}:{S_OUT+3}], 0 offen sc1")
        e("s_mov_b64 exec, -1")
    g.stamp("setup")
    rest = dma_c(1, 1)[abs(o.early1):]
    if o.early1 % 4:
        rest[0] = [f"s_add_u32 m0, s{S_M0W2 if WX else S_M0A}, {slot_base(1)}", "s_nop 0"] + rest[0]
    g.es(flat(rest))

    def hload(i):
        Q, p = divmod(i, 14)
        b, kp = divmod(p, 2)
        d = V_HR + 4 * (i % NB)
        return f"buffer_load_dwordx4 v[{d}:{d+3}], v{V_H+Q}, s[{S_WS}:{S_WS+3}], s{S_U+b} offen offset:{kp*1024} sc1"

    def hinit():
        for i in range(D):
            e(hload(i))
            if o.stage and (i + 1) % o.stage == 0 and i + 1 < D:
                e("s_barrier")

    def p2_mfma(i):
        Q, p = divmod(i, 14)
        h = V_HR + 4 * (i % NB)
        r = []
        for nu in (range(4) if i % 2 == 0 else range(3, -1, -1)):
            a = V_ACC + (Q * 4 + nu) * 4
            w = (p * 4 + nu) * 4
            c = "0" if p == 0 else f"v[{a}:{a+3}]"
            r.append(f"{MF} v[{a}:{a+3}], a[{w}:{w+3}], v[{h}:{h+3}], {c}")
        return r

    def producer(tag, stream):
        emit_p1(g, tag, stream)
        e("s_barrier")
        last = stream.index(('c', 7))
        it = [(stream[p][1], p) for p in range(last + 1, 15)]
        n = len(it)
        np_ = o.npre
        g.es(flat(dma_w(*it[np_])))
        for k in range(np_):
            e(f"s_waitcnt vmcnt({8*(np_-1-k)+16}) lgkmcnt(4)")
            emit_tr(g, *it[k])
        e("s_waitcnt vmcnt(8) lgkmcnt(0)")
        emit_flag(g)
        g.es(flat(dma_w(*it[np_ + 1])))
        k = np_
        while k + 2 < n:
            dm = dma_w(*it[k + 2])
            if o.apoll >= 0 and k + 3 == n:
                dm = dm[:o.apoll] + [[poll_load()]] + dm[o.apoll:]
            g.es(flat(dm))
            if n - k == o.pollk:
                break
            e("s_waitcnt vmcnt(16) lgkmcnt(4)")
            emit_tr(g, *it[k])
            k += 1
        g.stamp("poll1")
        emit_poll(g, tag, o.apoll >= 0)
        g.stamp("ready")
        if o.rbar:
            e("s_barrier")
        hinit()
        while k < n:
            e(f"s_waitcnt vmcnt({D+8*(n-1-k)}) lgkmcnt(4)")
            if k == n - 1:
                g.stamp("wl6")
            emit_tr(g, *it[k])
            k += 1

    C = [('c', t) for t in range(8)]
    W = [('w', b) for b in {0: (5, 6, 1, 2, 3, 4), 1: (5, 6, 4, 1, 2, 3), 2: (5, 6, 1, 2, 3, 4), 3: (4, 5, 6, 1, 2, 3)}[o.i6]]
    if o.ins2:
        e(f"s_bitcmp1_b32 s{S_I}, 0")
        e("s_cbranch_scc1 L_path2")
    if o.el:
        producer("U", C + [('w', b) for b in (5, 6, 0, 1, 3, 2, 4)])
    else:
        producer("U", C[:o.ins] + [('w', 0)] + C[o.ins:] + W)
    g.lab("L_p2")

    def img(Q):
        return 32768 * (Q >> 1) + 4096 * (Q & 1)

    def red_write(Q):
        return [f"ds_write_b128 v{V_RW+(nu&1)}, v[{V_ACC+(Q*4+nu)*4}:{V_ACC+(Q*4+nu)*4+3}] offset:{img(Q) + 128*(nu>>1)}"
                for nu in range(4)]

    def red_read(Q):
        return [f"ds_read_b128 v[{V_RD+4*w}:{V_RD+4*w+3}], v{V_RR} offset:{img(Q) + 8192*w}" for w in range(4)]

    def red_sum(Q):
        r = []
        for j in range(4):
            r.append(f"v_add_f32 v{V_RD+j}, v{V_RD+j}, v{V_RD+4+j}")
        for j in range(4):
            r.append(f"v_add_f32 v{V_RD+8+j}, v{V_RD+8+j}, v{V_RD+12+j}")
        for j in range(4):
            r.append(f"v_add_f32 v{V_RD+j}, v{V_RD+j}, v{V_RD+8+j}")
        for j in range(2):
            r.append(f"v_cvt_pk_bf16_f32 v{V_RES+2*Q+j}, v{V_RD+2*j}, v{V_RD+2*j+1}")
        return r

    def out_store(Q):
        return f"buffer_store_dwordx2 v[{V_RES+2*Q}:{V_RES+2*Q+1}], v{V_OUT}, s[{S_OUT}:{S_OUT+3}], s{S_T0+Q} offen {o.outflag}"

    extra = {}

    def put(i, l):
        extra.setdefault(i, []).extend(l)
    for Q in range(3):
        b = 14 * (Q + 1)
        w = red_write(Q)
        put(b + 1, w[0:2])
        put(b + 2, w[2:4])
        if o.redmode == 0:
            put(b + 4, ["s_waitcnt lgkmcnt(0)", "s_barrier"])
            put(b + 5, red_read(Q))
            s = red_sum(Q)
            put(b + 7, ["s_waitcnt lgkmcnt(0)"] + s[0:3])
            put(b + 8, s[3:7])
            put(b + 9, s[7:11])
            put(b + 10, s[11:14])
            if o.earlyst:
                assert 56 - D <= 53
                put(max(56 - D, b + 11), [out_store(Q)])
    if o.redmode == 1:
        put(45, ["s_waitcnt lgkmcnt(0)", "s_barrier"] + red_read(0))
        for Q in range(3):
            b = 47 + 3 * Q
            s = red_sum(Q)
            put(b, ["s_waitcnt lgkmcnt(0)"] + s[0:6])
            put(b + 1, s[6:12])
            put(b + 2 if Q == 2 else b + 1, s[12:14] + (red_read(Q + 1) if Q < 2 else []))
            if o.earlyst:
                put(b + 2, [out_store(Q)])
    for Q in range(4):
        put(4 + Q, [f"s_add_u32 s{S_T0+Q}, s{S_QROT}, {Q}", f"s_and_b32 s{S_T0+Q}, s{S_T0+Q}, 3",
                    f"s_lshl_b32 s{S_T0+Q}, s{S_T0+Q}, 14"])
    for i in range(56):
        issued = min(56, i + D)
        nst = sum(1 for k in range(i) for x in extra.get(k, []) if x.startswith("buffer_store"))
        wait = f"s_waitcnt vmcnt({issued - i - 1 + nst})"
        if i == (1 if (o.el or o.i6) else 3):
            wait += " lgkmcnt(0)"
        e(wait)
        m = p2_mfma(i)
        x = extra.get(i, [])
        if i + D < 56:
            n3 = (len(x) + 2) // 3
            gaps = [[hload(i + D)], x[0:n3], x[n3:2*n3], x[2*n3:]]
        else:
            n4 = (len(x) + 3) // 4
            gaps = [x[0:n4], x[n4:2*n4], x[2*n4:3*n4], x[3*n4:]]
        grp(g, m, gaps)
        g.stamp(f"h{i}")
    g.stamp("loopend")
    w = red_write(3)[::-1]
    e("s_nop 4")
    g.es(w)
    e("s_waitcnt lgkmcnt(0)")
    e("s_barrier")
    g.es(red_read(3))
    if not o.earlyst:
        for Q in range(3):
            e(out_store(Q))
    if o.fasttail:
        R = V_RD
        e("s_waitcnt lgkmcnt(2)")
        e(f"v_pk_add_f32 v[{R}:{R+1}], v[{R}:{R+1}], v[{R+4}:{R+5}]")
        e(f"v_pk_add_f32 v[{R+2}:{R+3}], v[{R+2}:{R+3}], v[{R+6}:{R+7}]")
        e("s_waitcnt lgkmcnt(0)")
        e(f"v_pk_add_f32 v[{R+8}:{R+9}], v[{R+8}:{R+9}], v[{R+12}:{R+13}]")
        e(f"v_pk_add_f32 v[{R+10}:{R+11}], v[{R+10}:{R+11}], v[{R+14}:{R+15}]")
        e(f"v_pk_add_f32 v[{R}:{R+1}], v[{R}:{R+1}], v[{R+8}:{R+9}]")
        e(f"v_pk_add_f32 v[{R+2}:{R+3}], v[{R+2}:{R+3}], v[{R+10}:{R+11}]")
        g.es(red_sum(3)[12:14])
    else:
        e("s_waitcnt lgkmcnt(0)")
        g.es(red_sum(3))
    e(out_store(3))
    if o.stamps:
        e("s_waitcnt vmcnt(0)")
        g.stamp("final")
        e("s_waitcnt lgkmcnt(0)")
        if o.probe:
            pa, pb, pwg = [int(x) for x in o.probe.split(",")]
            if pwg >= 0:
                e(f"s_cmp_lg_u32 s2, {pwg}")
                e("s_cbranch_scc1 L_end")
            if pwg == -2:
                e(f"s_cmp_ge_u32 s{S_I}, 28")
                e("s_cbranch_scc1 L_end")
            e(f"s_sub_u32 s{S_T0}, s{S_ST+2*pb}, s{S_NON if pa == 9 else S_ST+2*pa}")
            e(f"s_min_u32 s{S_T0}, s{S_T0}, 5000")
            e(f"s_mul_i32 s{S_T0}, s{S_T0}, 10")
            e(f"s_add_u32 s{S_T0}, s{S_T0}, s{S_ST+16}")
            g.lab("L_probe")
            e(f"s_memrealtime s[4:5]")
            e("s_waitcnt lgkmcnt(0)")
            e(f"s_sub_u32 s{S_T1}, s4, s{S_T0}")
            e(f"s_cmp_lt_i32 s{S_T1}, 0")
            e("s_cbranch_scc1 L_probe")
            e("s_endpgm")
        for n in range(9):
            e(f"v_mov_b32 v{96+n}, s{S_ST+2*n}")
        e(f"s_lshl_b32 s{S_T0}, s2, 8")
        e(f"s_lshl_b32 s{S_T1}, s{S_WAVE}, 6")
        e(f"s_add_u32 s{S_T0}, s{S_T0}, s{S_T1}")
        e(f"s_add_u32 s{S_T0}, s{S_T0}, {hex(STAMP_OFF)}")
        e("v_mov_b32 v108, 0")
        e("s_mov_b64 exec, 1")
        for n in range(3):
            e(f"buffer_store_dwordx4 v[{96+4*n}:{99+4*n}], v108, s[{S_WS}:{S_WS+3}], s{S_T0} offen offset:{16*n} sc1")
    g.lab("L_end")
    e("s_endpgm")

    g.lab("L_early_idle")
    def _pt():
        if o.ptouch:
            e(f"v_lshrrev_b32 v{V_ACC+4}, 2, v{L}")
            e(f"v_and_b32 v{V_ACC+5}, 1, v{L}")
            e(f"v_bfe_u32 v{V_ACC+6}, v{L}, 1, 1")
            e(f"v_lshl_add_u32 v{V_ACC+5}, v{V_ACC+6}, 2, v{V_ACC+5}")
            e(f"v_lshlrev_b32 v{V_ACC+5}, 7, v{V_ACC+5}")
            e(f"v_lshl_add_u32 v{V_ACC+4}, v{V_ACC+4}, 10, v{V_ACC+5}")
            e(f"s_and_b32 s{S_U+1}, s{S_XCD}, 6")
            e(f"s_lshl_b32 s{S_U+1}, s{S_U+1}, 1")
            e(f"s_add_u32 s{S_U+1}, s{S_U+1}, s{S_Q}")
            e(f"s_lshl_b32 s{S_U+1}, s{S_U+1}, 1")
            e(f"s_and_b32 s{S_U+2}, s{S_XCD}, 1")
            e(f"s_add_u32 s{S_U+1}, s{S_U+1}, s{S_U+2}")
            e(f"s_lshl_b32 s{S_U+1}, s{S_U+1}, 2")
            e(f"s_add_u32 s{S_U+1}, s{S_U+1}, s{S_WAVE}")
            e(f"s_lshl_b32 s{S_U+1}, s{S_U+1}, 14")
            e(f"v_mul_u32_u24 v{V_ACC+5}, 4682, v{L}")
            e(f"v_lshrrev_b32 v{V_ACC+5}, 16, v{V_ACC+5}")
            e(f"v_mul_u32_u24 v{V_ACC+6}, 14, v{V_ACC+5}")
            e(f"v_sub_u32 v{V_ACC+6}, v{L}, v{V_ACC+6}")
            e(f"v_lshlrev_b32 v{V_ACC+6}, 7, v{V_ACC+6}")
            e(f"v_and_b32 v{V_ACC+7}, 1, v{V_ACC+5}")
            e(f"v_lshrrev_b32 v{V_ACC+5}, 1, v{V_ACC+5}")
            e(f"v_lshl_add_u32 v{V_ACC+5}, v{V_ACC+5}, 8, v{V_ACC+7}")
            e(f"v_mul_u32_u24 v{V_ACC+5}, 3584, v{V_ACC+5}")
            e(f"v_add_u32 v{V_ACC+5}, v{V_ACC+5}, v{V_ACC+6}")
            e(f"s_mul_i32 s{S_U+2}, s{S_U+2}, 1792")
            e(f"s_lshr_b32 s{S_U+3}, s{S_XCD}, 1")
            e(f"s_lshl_b32 s{S_U+3}, s{S_U+3}, 2")
            e(f"s_add_u32 s{S_U+3}, s{S_U+3}, s{S_Q}")
            e(f"s_lshl_b32 s{S_U+3}, s{S_U+3}, 2")
            e(f"s_add_u32 s{S_U+3}, s{S_U+3}, s{S_WAVE}")
            e(f"s_lshl_b32 s{S_U+3}, s{S_U+3}, 1")
            e(f"s_add_u32 s{S_U+3}, s{S_U+3}, 128")
            e(f"s_mul_i32 s{S_U+3}, s{S_U+3}, 3584")
            e(f"s_add_u32 s{S_U+2}, s{S_U+2}, s{S_U+3}")
            e(f"s_mov_b64 exec, 0x00ffffffffffffff" if False else f"s_mov_b32 exec_hi, 0xffffff")
            e(f"buffer_load_dword v{V_ACC+60}, v{V_ACC+5}, s[{S_W1}:{S_W1+3}], s{S_U+2} offen")
            e(f"s_mov_b32 exec_hi, -1")
            e(f"buffer_load_dword v{V_ACC+61}, v{V_ACC+4}, s[{S_X}:{S_X+3}], s{S_U+1} offen offset:{256 + (1024 if WX else 0)}")
    def _wt():
        if o.touch:
            srd(g, S_W2, 8, 512 * 1792 * 2)
            e(f"v_lshlrev_b32 v{V_ACC+8}, 7, v{L}")
            e(f"s_lshl_b32 s{S_U+1}, s{S_Q}, 3")
            e(f"s_add_u32 s{S_U+1}, s{S_U+1}, s{S_XCD}")
            e(f"s_lshl_b32 s{S_U+1}, s{S_U+1}, 2")
            e(f"s_add_u32 s{S_U+1}, s{S_U+1}, s{S_WAVE}")
            e(f"s_mul_i32 s{S_U+1}, s{S_U+1}, {14*1024}")
            e(f"s_add_u32 s{S_U+2}, s{S_U+1}, 8192")
            e(f"buffer_load_dword v{V_ACC+62}, v{V_ACC+8}, s[{S_W2}:{S_W2+3}], s{S_U+1} offen")
            e(f"s_mov_b32 exec_hi, 0xffff")
            e(f"buffer_load_dword v{V_ACC+63}, v{V_ACC+8}, s[{S_W2}:{S_W2+3}], s{S_U+2} offen")
            e(f"s_mov_b32 exec_hi, -1")
    if o.wfirst:
        _wt()
        _pt()
    else:
        _pt()
        _wt()
    e("s_branch L_setup2")

    g.lab("L_idle")
    seq = [0, 5, 6, 1, 2, 3, 4]
    if o.idlerot:
        e(f"s_mul_i32 s4, s{S_WAVE}, 7")
        for n, b in enumerate(seq):
            e(f"s_lshl_b32 s5, s{S_Q}, 1")
            e(f"s_add_u32 s5, s5, {n}")
            e(f"s_cmp_ge_u32 s5, 7")
            e(f"s_cselect_b32 s6, 7, 0")
            e(f"s_sub_u32 s5, s5, s6")
            e(f"s_add_u32 s5, s5, s4")
            e(f"s_lshl_b32 s{S_UW+b}, s5, 16")
            e(f"s_lshl_b32 s{S_U+b}, s5, 11")
    e(nonce_load())
    g.es(flat(dma_w(seq[0], 0)))
    g.es(flat(dma_w(seq[1], 1)))
    for k in range(7):
        if k + 2 < 7:
            g.es(flat(dma_w(seq[k + 2], k + 2)))
        e(f"s_waitcnt vmcnt({8*min(2, 6-k)}) lgkmcnt(4)")
        emit_tr(g, seq[k], k)
    g.stamp("wl6")
    emit_nonce_check(g, "i")
    emit_poll(g, "I")
    g.stamp("ready")
    if o.rbar:
        e("s_barrier")
    hinit()
    e("s_branch L_p2")

    if o.ins2:
        g.lab("L_path2")
        if o.el:
            producer("V", C[:o.ins] + [('w', 0)] + C[o.ins:o.ins2] + [('w', 2)] + C[o.ins2:] + [('w', b) for b in (5, 6, 1, 3, 4)])
        else:
            producer("V", C[:o.ins2] + [('w', 0)] + C[o.ins2:] + W)
        e("s_branch L_p2")
    g.lab("L_code_end")

    if o.align:
        out = []
        for k, l in enumerate(g.L):
            if l.strip().startswith("v_mfma") and not g.L[k - 1].strip().startswith("v_mfma"):
                if o.align == 1 or (o.align == 2 and g.L[k - 1].strip().startswith(("s_waitcnt", "s_barrier"))):
                    out.append("    .p2align 3")
            out.append(l)
        g.L = out
    if o.shift:
        k = next(i for i, l in enumerate(g.L) if "pos 0: c0" in l)
        g.L.insert(k, "    s_nop 0")
    body = "\n".join(g.L)
    txt = HEADER + DOC + f""".amdgcn_target "amdgcn-amd-amdhsa--gfx950"
.text
.globl {KNAME}
.p2align 8
.type {KNAME},@function
{body}
.section .rodata,"a"
.p2align 6
.amdhsa_kernel {KNAME}
  .amdhsa_next_free_vgpr 512
  .amdhsa_next_free_sgpr 102
  .amdhsa_accum_offset 256
  .amdhsa_group_segment_fixed_size 0
  .amdhsa_kernarg_size 48
  .amdhsa_user_sgpr_count 2
  .amdhsa_user_sgpr_kernarg_segment_ptr 1
  .amdhsa_system_sgpr_workgroup_id_x 1
.end_amdhsa_kernel
"""
    return txt


def parse(argv):
    p = argparse.ArgumentParser()
    p.add_argument("-o", default=None)
    p.add_argument("--co", default=None)
    p.add_argument("--stamps", default="")
    p.add_argument("--rt", type=int, default=0)
    p.add_argument("--depth", type=int, default=10)
    p.add_argument("--nbuf", type=int, default=16)
    p.add_argument("--ins", type=int, default=4)
    p.add_argument("--ins2", type=int, default=6)
    p.add_argument("--rotsh", type=int, default=2)
    p.add_argument("--qmask", type=int, default=1)
    p.add_argument("--outflag", default="sc1")
    p.add_argument("--probe", default="")
    p.add_argument("--cpf", type=int, default=1)
    p.add_argument("--touch", type=int, default=1)
    p.add_argument("--npf", type=int, default=0)
    p.add_argument("--pat", type=int, default=6)
    p.add_argument("--redmode", type=int, default=0)
    p.add_argument("--presleep", type=int, default=0)
    p.add_argument("--wfirst", type=int, default=0)
    p.add_argument("--npre", type=int, default=2)
    p.add_argument("--pollk", type=int, default=3)
    p.add_argument("--apoll", type=int, default=4)
    p.add_argument("--el", type=int, default=0)
    p.add_argument("--rbar", type=int, default=0)
    p.add_argument("--tlb", type=int, default=0)
    p.add_argument("--wx", type=int, default=0)
    p.add_argument("--idlerot", type=int, default=1)
    p.add_argument("--rq", type=int, default=1)
    p.add_argument("--early1", type=int, default=3)
    p.add_argument("--align", type=int, default=0)
    p.add_argument("--shift", type=int, default=0)
    p.add_argument("--i6", type=int, default=2)
    p.add_argument("--stage", type=int, default=5)
    p.add_argument("--earlyst", type=int, default=1)
    p.add_argument("--fasttail", type=int, default=1)
    p.add_argument("--m0early", type=int, default=1)
    p.add_argument("--ptouch", type=int, default=1)
    p.add_argument("--idlesleep", type=int, default=0)
    return p.parse_args(argv)


if __name__ == "__main__":
    o = parse(sys.argv[1:])
    txt = gen(o)
    if o.o:
        open(o.o, "w").write(txt)
    if o.co:
        open(o.co + ".s", "w").write(txt + META)
        r = subprocess.run(["clang", "-x", "assembler", "-target", "amdgcn-amd-amdhsa",
                            "-mcpu=gfx950", o.co + ".s", "-o", o.co + ".co"], capture_output=True, text=True)
        if r.returncode:
            print(r.stderr[:4000])
            sys.exit(1)
```

```python
import sys, subprocess, argparse
from gen import HEADER, KNAME, META

FLAGS_OFF = 0x800000
STAMP_OFF = 0x8000000
RHO = 57344

S_X, S_W1, S_W2, S_OUT, S_DBG, S_WS = 16, 20, 24, 28, 32, 36
S_WAVE = 40
S_XCD = 41
S_I = 42
S_T0, S_T1, S_T2, S_T3 = 43, 44, 45, 46
S_M0A = 47
S_U = 48
S_M0W2 = 55
S_UW = 56
S_SPIN = 63
S_KX = 64
S_KW = 72
S_POLL = 64
S_NON = 80
S_PA = 82
S_ST = 84
S_Q = 3
S_FA = 8
S_QROT = 11

V_LANE = 1
V_OX = 2
V_OW1 = 6
V_OW2 = 10
V_H = 14
V_ZERO = 18
V_NON = 20
V_HST = 22
V_OUT = 23
V_RW = 24
V_RR = 26
V_ACC = 32
V_FR = 96
V_EP = 160
V_AX = 192
V_AW1 = 198
V_AW2 = 210
V_RES = 222
V_RD = 232
V_T = 232
V_HR = 96
NONCE_POS = 2
WX = 0
MF = "v_mfma_f32_16x16x32_bf16"


DOC = """;
"""


class G:
    def __init__(self, o):
        self.o = o
        self.L = []

    def e(self, s):
        self.L.append("    " + s)

    def es(self, l):
        for x in l:
            self.e(x)

    def lab(self, s):
        self.L.append(s + ":")

    def c(self, s):
        self.L.append("    ; " + s)

    def stamp(self, name):
        if not self.o.stamps:
            return
        names = self.o.stamps.split(",")
        if name == "final":
            idx = 8
        elif name in names[:8]:
            idx = names.index(name)
        else:
            return
        r = S_ST + 2 * idx
        self.e(f"s_memrealtime s[{r}:{r+1}]" if self.o.rt else f"s_memtime s[{r}:{r+1}]")


def srd(g, d, lo, nbytes):
    g.e(f"s_mov_b32 s{d}, s{lo}")
    g.e(f"s_mov_b32 s{d+1}, s{lo+1}")
    g.e(f"s_mov_b32 s{d+2}, {hex(nbytes)}")
    g.e(f"s_mov_b32 s{d+3}, 0x20000")


def slot_base(pos):
    return (pos % 5) * 32768


def zone(pos):
    s = pos % 5
    return s // 2, (s % 2) * 32768


def dma_c(t, pos):
    sb = slot_base(pos)
    out = []
    if WX:
        for k in range(8):
            j, isx = divmod(k, 2)
            vo, sr, so = (V_OX, S_X, S_KX + t) if isx else (V_OW1, S_W1, S_KW + t)
            ins = f"buffer_load_dwordx4 v{vo+j}, s[{sr}:{sr+3}], s{so} offen offset:{1024*(k%4)} lds"
            if k % 4 == 0:
                out.append([f"s_add_u32 m0, s{S_M0W2}, {sb + 4096*(k//4)}", "s_nop 0", ins])
            else:
                out.append([ins])
        return out
    for vo, sr, so, add in ((V_OW1, S_W1, S_KW + t, 0), (V_OX, S_X, S_KX + t, 16384)):
        for j in range(4):
            ins = f"buffer_load_dwordx4 v{vo+j}, s[{sr}:{sr+3}], s{so} offen offset:{1024*j} lds"
            if j == 0:
                out.append([f"s_add_u32 m0, s{S_M0A}, {sb+add}", "s_nop 0", ins])
            else:
                out.append([ins])
    return out


def dma_w(b, pos):
    sb = slot_base(pos)
    out = []
    for half in range(2):
        for j in range(4):
            so = f"s{S_UW+b}" if half == 0 else f"s{S_T3}"
            ins = f"buffer_load_dwordx4 v{V_OW2+j}, s[{S_W2}:{S_W2+3}], {so} offen offset:{1024*j} lds"
            if j == 0:
                pre = [f"s_add_u32 m0, s{S_M0W2}, {sb + 4096*half}"]
                pre.append(f"s_add_u32 s{S_T3}, s{S_UW+b}, 32768" if half == 1 else "s_nop 0")
                out.append(pre + [ins])
            else:
                out.append([ins])
    return out


def flat(groups):
    return [x for gr in groups for x in gr]


def frA(s, phi):
    return V_FR + 32 * s + 4 * phi


def frB(s, rho):
    return V_FR + 32 * s + 16 + 4 * rho


def rdA(pos, s, phi):
    z, add = zone(pos)
    return [f"ds_read_b64_tr_b16 v[{frA(s,phi)+2*e}:{frA(s,phi)+2*e+1}], v{V_AW1+4*z+phi} offset:{add + ((16384*s + 2048*e) if WX else (32*s+4*e)*256)}"
            for e in range(2)]


def rdB(pos, s, rho):
    z, add = zone(pos)
    return [f"ds_read_b128 v[{frB(s,rho)}:{frB(s,rho)+3}], v{V_AX+2*z+s} offset:{add + (rho*4096 if WX else 16384 + rho*2048)}"]


def p1_reads(pos, sub):
    s, h = divmod(sub, 2)
    if h == 0:
        return rdA(pos, s, 0) + rdB(pos, s, 0) + rdB(pos, s, 1) + rdB(pos, s, 2) + rdB(pos, s, 3) + rdA(pos, s, 1)
    return rdA(pos, s, 2) + rdA(pos, s, 3)


def acc1(phi, rho):
    return V_ACC + (phi * 4 + rho) * 4


def p1_mfma(sub, first):
    s, h = divmod(sub, 2)
    r = []
    for k, phi in enumerate((2 * h, 2 * h + 1)):
        for rho in (range(4) if k == 0 else range(3, -1, -1)):
            a = acc1(phi, rho)
            A, B = frA(s, phi), frB(s, rho)
            c = "0" if first else f"v[{a}:{a+3}]"
            r.append(f"{MF} v[{a}:{a+3}], v[{A}:{A+3}], v[{B}:{B+3}], {c}")
    return r


def w2_tr(b, pos):
    z, add = zone(pos)
    r = []
    for kp in range(2):
        for nu in range(4):
            for e in range(2):
                d = ((b * 2 + kp) * 4 + nu) * 4 + 2 * e
                r.append(f"ds_read_b64_tr_b16 a[{d}:{d+1}], v{V_AW2+4*z+nu} offset:{add + (32*kp+16*e)*128}")
    return r


def emit_tr(g, b, pos):
    for i, x in enumerate(w2_tr(b, pos)):
        if i == 8:
            g.e("s_waitcnt lgkmcnt(4)")
        g.e(x)


def grp(g, mf, gaps):
    gaps = list(gaps) + [[]] * (len(mf) - len(gaps))
    for m, gp in zip(mf, gaps):
        if m:
            g.e(m)
        g.es(gp)


def poll_load():
    return f"s_load_dwordx16 s[{S_POLL}:{S_POLL+15}], s[{S_PA}:{S_PA+1}], 0 glc"


def emit_poll(g, tag, issued=False):
    e = g.e
    e(f"s_mov_b32 s{S_SPIN}, 0x40000")
    if issued:
        e(f"s_branch L_check_{tag}")
    g.lab(f"L_poll_{tag}")
    e(poll_load())
    e(f"s_sub_u32 s{S_SPIN}, s{S_SPIN}, 1")
    e(f"s_cbranch_scc1 L_ready_{tag}")
    g.lab(f"L_check_{tag}")
    e("s_waitcnt lgkmcnt(0)")
    for k in range(7):
        e(f"s_cmp_lg_u64 s[{S_POLL+2*k}:{S_POLL+2*k+1}], s[{S_NON}:{S_NON+1}]")
        e(f"s_cbranch_scc1 L_poll_{tag}")
    g.lab(f"L_ready_{tag}")


def nonce_load():
    return f"buffer_load_dwordx2 v[{V_NON}:{V_NON+1}], v{V_ZERO}, s[{S_DBG}:{S_DBG+3}], 0 offen sc1"


def emit_nonce_check(g, tag):
    e = g.e
    e(f"v_readfirstlane_b32 s{S_NON+1}, v{V_NON+1}")
    e(f"s_mov_b32 s{S_SPIN}, 0x40000")
    g.lab(f"L_non_{tag}")
    e(f"s_cmp_lg_u32 s{S_NON+1}, 0")
    e(f"s_cbranch_scc1 L_nonok_{tag}")
    e(nonce_load())
    e("s_waitcnt vmcnt(0)")
    e(f"v_readfirstlane_b32 s{S_NON+1}, v{V_NON+1}")
    e(f"s_sub_u32 s{S_SPIN}, s{S_SPIN}, 1")
    e(f"s_cbranch_scc0 L_non_{tag}")
    g.lab(f"L_nonok_{tag}")
    e(f"v_readfirstlane_b32 s{S_NON}, v{V_NON}")


def epi(h, rho):
    d = V_EP + 4 * (4 * h + rho)
    r = []
    for k in range(2):
        a = acc1(2 * h + k, rho)
        r.append(f"v_cvt_pk_bf16_f32 v{d+2*k}, v{a}, v{a+1}")
        r.append(f"v_cvt_pk_bf16_f32 v{d+2*k+1}, v{a+2}, v{a+3}")
    for jj in range(4):
        r.append(f"v_pk_max_i16 v{d+jj}, v{d+jj}, 0")
    so = "0" if rho == 0 else f"s{S_T0+rho-1}"
    r.append(f"buffer_store_dwordx4 v[{d}:{d+3}], v{V_HST}, s[{S_WS}:{S_WS+3}], {so} offen offset:{1024*h} sc1")
    return r


def emit_p1(g, tag, stream):
    e = g.e
    last = stream.index(('c', 7))
    pending = False
    for p in range(last + 1):
        kind, idx = stream[p]
        g.c(f"---- {tag} pos {p}: {kind}{idx}")
        e(f"s_waitcnt vmcnt({9 if p == NONCE_POS + 1 else 8}) lgkmcnt(0)")
        e("s_barrier")
        g.stamp(f"bar{kind}{idx}")
        nk, ni = stream[p + 2]
        f = dma_c(ni, p + 2) if nk == 'c' else dma_w(ni, p + 2)
        if p == last and g.o.npre < 2:
            f = [["s_nop 0"]] + [[]] * 3 + [["s_nop 0"]] + [[]] * 3
        m3 = p1_mfma(3, False) if pending else [None] * 8
        pat = g.o.pat
        if kind == 'c' and pat == 0:
            R = [p1_reads(p, k) for k in range(4)]
            grp(g, m3, [R[0][0:2], R[0][2:4], R[0][4:6], R[0][6:8], R[1][0:2], R[1][2:4], [], f[0]])
            e("s_waitcnt lgkmcnt(4)")
            grp(g, p1_mfma(0, idx == 0), [R[2][0:2], R[2][2:4], R[2][4:6], R[2][6:8], f[1], [], f[2], []])
            e("s_waitcnt lgkmcnt(8)")
            if idx < 7:
                grp(g, p1_mfma(1, idx == 0), [R[3][0:2], R[3][2:4], f[3], [], f[4], [], [], f[5]])
                e("s_waitcnt lgkmcnt(4)")
                grp(g, p1_mfma(2, False), [[], [], f[6], [], [], [], f[7], []])
            else:
                grp(g, p1_mfma(1, False), [R[3][0:2], R[3][2:4], f[3], f[4], f[5], f[6], f[7], []])
            pending = True
        elif kind == 'c' and pat in (1, 3, 4):
            R = [[[x] for x in p1_reads(p, k)] for k in range(4)]
            a0, a4 = [], []
            if g.o.m0early:
                f = [list(x) for x in f]
                a0 = [x for x in f[0][:-1] if x != "s_nop 0"]
                a4 = [x for x in f[4][:-1] if x != "s_nop 0"]
                f[0], f[4] = f[0][-1:], f[4][-1:]
            if pat == 4:
                grp(g, m3, [R[0][0] + R[0][1], R[0][2] + R[0][3], R[0][4], R[0][5], R[0][6], R[0][7], a0,
                            f[0] if pending else ["s_nop 0"] + f[0]])
                e("s_waitcnt lgkmcnt(2)")
                m0 = p1_mfma(0, idx == 0)
                grp(g, m0[0:4], [R[1][0], R[1][1], R[1][2], R[1][3]])
                e("s_waitcnt lgkmcnt(4)")
                grp(g, m0[4:8], [R[2][0] + f[1], R[2][1], R[2][2], R[2][3] + f[2]])
            elif pat == 1:
                grp(g, m3, [R[0][0] + R[0][1], R[0][2] + R[0][3], R[0][4], R[0][5], R[0][6], R[0][7], a0,
                            f[0] if pending else ["s_nop 0"] + f[0]])
                e("s_waitcnt lgkmcnt(0)")
                grp(g, p1_mfma(0, idx == 0), [R[1][0], R[1][1], R[1][2], R[1][3], R[2][0] + f[1], R[2][1], R[2][2], R[2][3] + f[2]])
            else:
                grp(g, m3, [R[0][0] + R[0][1], R[0][2], R[0][3], R[0][4], R[0][5], R[0][6], R[0][7], f[0]])
                e("s_waitcnt lgkmcnt(2)")
                m0 = p1_mfma(0, idx == 0)
                grp(g, m0[0:4], [R[1][0], R[1][1], R[1][2], R[1][3]])
                e("s_waitcnt lgkmcnt(4)")
                grp(g, m0[4:8], [R[2][0] + f[1], R[2][1], R[2][2], R[2][3] + f[2]])
            e("s_waitcnt lgkmcnt(4)")
            if idx < 7:
                grp(g, p1_mfma(1, idx == 0), [R[2][4], R[2][5], R[2][6] + f[3], R[2][7], R[3][0] + a4, R[3][1] + f[4], R[3][2], R[3][3]])
                e("s_waitcnt lgkmcnt(4)")
                grp(g, p1_mfma(2, False), [f[5], [], [], f[6], [], [], f[7], []])
            else:
                grp(g, p1_mfma(1, False), [R[2][4] + f[3] + a4, R[2][5] + f[4], R[2][6] + f[5], R[2][7] + f[6], R[3][0] + f[7], R[3][1], R[3][2], R[3][3]])
            pending = True
        elif kind == 'c' and pat >= 5:
            R = [[[x] for x in p1_reads(p, k)] for k in range(4)]
            f = [list(x) for x in f]
            a0 = [x for x in f[0][:-1] if x != "s_nop 0"]
            a4 = [x for x in f[4][:-1] if x != "s_nop 0"]
            f[0], f[4] = f[0][-1:], f[4][-1:]
            rd = R[0] + R[1] + R[2] + R[3]
            NG = 32 if idx < 7 else 24
            tabs = {
                5: ([0, 0, 1, 1, 2, 3, 4, 5, 7, 8, 9, 10, 12, 13, 14, 15, 16, 17, 18, 19, 21, 22, 23, 24], [6, 11, 14, 17, 20, 23, 26, 29]),
                6: ([0, 0, 1, 1, 2, 2, 3, 4, 5, 6, 8, 9, 10, 11, 12, 13, 14, 15, 16, 17, 18, 19, 20, 21], [7, 10, 13, 16, 22, 24, 26, 28]),
                7: ([0, 0, 1, 1, 2, 3, 4, 5, 8, 9, 10, 11, 12, 13, 14, 15, 16, 17, 18, 19, 20, 21, 22, 23], [24, 25, 26, 27, 29, 30, 31, 31]),
                8: ([0, 0, 1, 1, 2, 3, 4, 5, 8, 9, 10, 11, 12, 13, 14, 15, 16, 17, 18, 19, 20, 21, 22, 23], [3, 7, 11, 15, 19, 23, 27, 31]),
            }
            rg, dg = tabs[pat]
            if idx == 7:
                rg = [min(x, 23) for x in rg]
                dg = [6, 9, 12, 15, 17, 19, 21, 23]
            gaps = [[] for _ in range(32)]
            for k in range(24):
                gaps[rg[k]] += rd[k]
            for k in range(8):
                gaps[dg[k]] += f[k]
            gaps[dg[0] - 1] += a0
            gaps[dg[4] - 1] += a4
            if not pending:
                gaps[dg[0]] = ["s_nop 0"] + gaps[dg[0]]
            mf = m3 + p1_mfma(0, idx == 0) + p1_mfma(1, idx == 0) + (p1_mfma(2, False) if idx < 7 else [])
            need = {8: 6, 12: 8, 16: 10, 20: 12, 24: 18, 28: 20}
            for n in range(NG):
                if n in need:
                    issued = sum(1 for k in range(24) if rg[k] < n)
                    assert issued >= need[n], (pat, n)
                    e(f"s_waitcnt lgkmcnt({issued - need[n]})")
                if mf[n]:
                    e(mf[n])
                g.es(gaps[n])
            pending = True
        elif kind == 'c' and pat == 2:
            R = [[[x] for x in p1_reads(p, k)] for k in range(4)]
            m2 = p1_mfma(2, False) if pending else [None] * 8
            grp(g, m2, R[0][0:7] + [R[0][7] + f[0]])
            grp(g, m3, R[1][0:4] + [f[1], [], f[2], []])
            e("s_waitcnt lgkmcnt(4)" if pending else "s_waitcnt lgkmcnt(4)")
            grp(g, p1_mfma(0, idx == 0), [R[2][0], R[2][1], R[2][2] + f[3], R[2][3], R[2][4], R[2][5], R[2][6] + f[4], R[2][7]])
            e("s_waitcnt lgkmcnt(8)")
            grp(g, p1_mfma(1, idx == 0), R[3][0:4] + [f[5], f[6], [], f[7]])
            pending = True
        else:
            T = w2_tr(idx, p)
            if pat == 2 and pending:
                g.es(p1_mfma(2, False))
            grp(g, m3, [T[0:2], T[2:4], T[4:6], T[6:8], T[8:10], T[10:12]])
            e("s_waitcnt lgkmcnt(4)")
            g.es(T[12:16])
            g.es(flat(f))
            pending = False
        if p == NONCE_POS:
            e(nonce_load())
    g.c(f"---- {tag} P1 tail")
    e("s_waitcnt lgkmcnt(4)")
    m2, m3 = p1_mfma(2, False), p1_mfma(3, False)
    g.es(m2[0:4])
    emit_nonce_check(g, tag)
    for k in range(3):
        e(f"s_mov_b32 s{S_T0+k}, {RHO*(k+1)}")
    g.es(m2[4:8])
    e("s_waitcnt lgkmcnt(0)")
    g.stamp("bar8")
    E0 = epi(0, 3) + epi(0, 2) + epi(0, 1) + epi(0, 0)
    g.es(m3[0:2])
    e("s_nop 2")
    grp(g, m3[2:8], [E0[0:3], E0[3:6], E0[6:9], E0[9:12], E0[12:15], E0[15:18]])
    g.es(E0[18:])
    g.es(epi(1, 3) + epi(1, 2) + epi(1, 1) + epi(1, 0))
    g.stamp("Hst")


def emit_flag(g):
    g.e(f"s_atomic_swap_x2 s[{S_NON}:{S_NON+1}], s[{S_FA}:{S_FA+1}], 0")
    g.stamp("flag")


def gen(o):
    global WX
    WX = o.wx
    g = G(o)
    e = g.e
    D = o.depth
    NB = o.nbuf
    L = V_LANE
    T = V_T
    g.lab(KNAME)
    g.stamp("entry")
    e("s_load_dwordx8 s[4:11], s[0:1], 0")
    e("s_load_dwordx4 s[12:15], s[0:1], 32")
    e(f"s_memrealtime s[{S_PA}:{S_PA+1}]")
    e("s_cmp_ge_u32 s2, 256")
    e("s_cbranch_scc1 L_end")
    e(f"v_lshrrev_b32 v{T}, 6, v0")
    e(f"v_and_b32 v{L}, 63, v0")
    e(f"s_and_b32 s{S_XCD}, s2, 7")
    e(f"v_readfirstlane_b32 s{S_WAVE}, v{T}")
    e(f"s_lshr_b32 s{S_I}, s2, 3")
    if o.cpf:
        e(f"s_cmp_lt_u32 s{S_I}, 31")
        e("s_cbranch_scc1 L_nocpf")
        e("s_getpc_b64 s[20:21]")
        g.lab("L_pc")
        e(f"v_lshlrev_b32 v{V_ACC}, 7, v0")
        e(f"v_mov_b32 v{V_ACC+3}, s21")
        e(f"v_add_co_u32 v{V_ACC+2}, vcc, s20, v{V_ACC}")
        e("s_nop 1")
        e(f"v_addc_co_u32 v{V_ACC+3}, vcc, 0, v{V_ACC+3}, vcc")
        e(f"v_cmp_gt_u32 vcc, L_code_end-L_pc, v{V_ACC}")
        e("s_and_saveexec_b64 s[22:23], vcc")
        e("s_cbranch_execz L_cpf_done")
        e(f"global_load_dword v{V_ACC+1}, v[{V_ACC+2}:{V_ACC+3}], off")
        g.lab("L_cpf_done")
        e("s_mov_b64 exec, s[22:23]")
        g.lab("L_nocpf")
    e(f"s_and_b32 s{S_Q}, s{S_I}, 3")
    e(f"s_lshr_b32 s{S_T1}, s{S_I}, 2")
    e(f"s_add_u32 s{S_T2}, s{S_Q}, s{S_T1}")
    e(f"s_lshl_b32 s{S_T2}, s{S_T2}, {o.rotsh}")
    e(f"s_and_b32 s{S_T3}, s{S_XCD}, 6")
    e(f"s_lshl_b32 s{S_T3}, s{S_T3}, 1")
    e(f"s_add_u32 s{S_U}, s{S_Q}, s{S_T3}")
    e(f"s_and_b32 s{S_T3}, s{S_XCD}, 1")
    e(f"s_mul_i32 s{S_T3}, s{S_T3}, 7")
    e(f"s_add_u32 s{S_SPIN}, s{S_T1}, s{S_T3}")
    e(f"s_lshl_b32 s{S_T0}, s{S_U}, 17")
    e(f"s_lshl_b32 s{S_T1}, s{S_SPIN}, 8")

    def kofs(t):
        e(f"s_add_u32 s{S_T3}, s{S_T2}, {t}")
        e(f"s_and_b32 s{S_T3}, s{S_T3}, 7")
        e(f"s_mul_i32 s{S_KW+t}, s{S_T3}, {64*3584}")
        e(f"s_lshl_b32 s{S_T3}, s{S_T3}, 7")
        e(f"s_add_u32 s{S_KX+t}, s{S_T3}, s{S_T0}")
        e(f"s_add_u32 s{S_KW+t}, s{S_KW+t}, s{S_T1}")
    kofs(0)
    kofs(1)
    e(f"s_lshl_b32 s{S_M0A}, s{S_WAVE}, 12")
    e(f"s_lshl_b32 s{S_M0W2}, s{S_WAVE}, 13")
    e(f"v_lshrrev_b32 v{T}, 4, v{L}")
    e(f"v_and_b32 v{T+1}, 15, v{L}")
    e(f"v_lshlrev_b32 v{T+2}, 1, v{T}")
    e(f"v_xor_b32 v{T+1}, v{T+1}, v{T+2}")
    e(f"v_lshlrev_b32 v{T+1}, 4, v{T+1}")
    e(f"s_lshl_b32 s{S_T3}, s{S_WAVE}, 4")
    e(f"v_add_u32 v{T+2}, s{S_T3}, v{T}")
    e(f"v_mul_u32_u24 v{T+2}, 3584, v{T+2}")
    e(f"v_add_u32 v{V_OW1}, v{T+1}, v{T+2}")
    e(f"v_xor_b32 v{T+1}, 128, v{T+1}")
    e(f"v_add_u32 v{T+1}, v{T+1}, v{T+2}")
    wi = (lambda j: 14336 * j - 2048 * (j & 1)) if WX else (lambda j: 13312 * j)
    e(f"v_add_u32 v{V_OW1+1}, {wi(1)}, v{V_OW1}")
    e(f"v_add_u32 v{V_OW1+2}, {wi(2)}, v{T+1}")
    e(f"v_add_u32 v{V_OW1+3}, {wi(3)}, v{T+1}")
    e(f"v_and_b32 v{T+1}, 7, v{L}")
    e(f"v_xor_b32 v{T+2}, v{T+1}, v{T}")
    e(f"v_lshlrev_b32 v{T+2}, 4, v{T+2}")
    e(f"v_lshrrev_b32 v{T+3}, 3, v{L}")
    e(f"s_lshl_b32 s{S_T3}, s{S_WAVE}, 15")
    e(f"v_lshl_add_u32 v{T+4}, v{T+3}, 10, s{S_T3}")
    e(f"v_add_u32 v{V_OX}, v{T+4}, v{T+2}")
    e(f"v_xor_b32 v{T+2}, 64, v{T+2}")
    e(f"v_add_u32 v{T+2}, v{T+4}, v{T+2}")
    xi = (lambda j: 8192 * j - 2048 * (j & 1)) if WX else (lambda j: 7168 * j)
    e(f"v_add_u32 v{V_OX+1}, {xi(1)}, v{T+2}")
    e(f"v_add_u32 v{V_OX+2}, {xi(2)}, v{V_OX}")
    e(f"v_add_u32 v{V_OX+3}, {xi(3)}, v{T+2}")
    e("s_waitcnt lgkmcnt(0)")
    g.stamp("karg")
    srd(g, S_W1, 6, 512 * 1792 * 2)
    if WX:
        e(f"s_sub_u32 s{S_X}, s4, 1024")
        e(f"s_subb_u32 s{S_X+1}, s5, 0")
        e(f"s_mov_b32 s{S_X+2}, {hex(2048 * 512 * 2 + 1024)}")
        e(f"s_mov_b32 s{S_X+3}, 0x20000")
    else:
        srd(g, S_X, 4, 2048 * 512 * 2)
    e(f"s_cmp_ge_u32 s{S_I}, 28")
    e("s_cbranch_scc1 L_early_idle")
    if o.ptouch == 2:
        A = V_EP
        e(f"s_cmp_gt_u32 s{S_WAVE}, 1")
        e("s_cbranch_scc1 L_pt_done")
        e(f"s_lshr_b32 s{S_U+1}, s{S_I}, 2")
        e(f"s_and_b32 s{S_U+2}, s{S_XCD}, 1")
        e(f"v_lshrrev_b32 v{A}, 1, v{L}")
        e(f"v_and_b32 v{A+1}, 1, v{L}")
        e(f"s_cmp_eq_u32 s{S_WAVE}, 1")
        e("s_cbranch_scc1 L_pt_w1")
        e(f"v_lshlrev_b32 v{A+1}, 9, v{A+1}")
        e(f"v_lshl_add_u32 v{A}, v{A}, 10, v{A+1}")
        e(f"s_mul_i32 s{S_U+1}, s{S_U+1}, 9")
        e(f"s_lshl_b32 s{S_U+2}, s{S_U+2}, 6")
        e(f"s_add_u32 s{S_U+1}, s{S_U+1}, s{S_U+2}")
        e(f"s_lshl_b32 s{S_U+1}, s{S_U+1}, 10")
        e(f"s_add_u32 s{S_U+1}, s{S_U+1}, s{S_T0}")
        e("s_mov_b64 exec, 0xfffff")
        e(f"buffer_load_dword v{A+2}, v{A}, s[{S_X}:{S_X+3}], s{S_U+1} offen offset:256")
        e("s_branch L_pt_x")
        g.lab("L_pt_w1")
        e(f"v_lshrrev_b32 v{A+2}, 3, v{L}")
        e(f"v_and_b32 v{A}, 3, v{A}")
        e(f"v_lshl_add_u32 v{A}, v{A+2}, 8, v{A}")
        e(f"v_mul_u32_u24 v{A}, 3584, v{A}")
        e(f"v_lshl_add_u32 v{A}, v{A+1}, 7, v{A}")
        e(f"s_lshl_b32 s{S_U+1}, s{S_U}, 2")
        e(f"s_add_u32 s{S_U+1}, s{S_U+1}, 128")
        e(f"s_mul_i32 s{S_U+1}, s{S_U+1}, 3584")
        e(f"s_add_u32 s{S_U+1}, s{S_U+1}, s{S_T1}")
        e("s_mov_b64 exec, 0xffff")
        e(f"buffer_load_dword v{A+2}, v{A}, s[{S_W1}:{S_W1+3}], s{S_U+1} offen")
        g.lab("L_pt_x")
        e("s_mov_b64 exec, -1")
        g.lab("L_pt_done")
    g.es(flat(dma_c(0, 0)))
    if o.early1 < 0:
        e("s_barrier")
    g.es(flat(dma_c(1, 1)[:abs(o.early1)]))
    g.stamp("dma0")
    g.lab("L_setup2")
    srd(g, S_DBG, 12, 256)
    e(f"v_mov_b32 v{V_ZERO}, 0")
    e(f"s_or_b32 s{S_T3}, s2, s{S_WAVE}")
    e(f"s_cmp_lg_u32 s{S_T3}, 0")
    e("s_cbranch_scc1 L_nonce_done")
    e(f"s_or_b32 s{S_PA+1}, s{S_PA+1}, 0x80000000")
    e(f"s_atomic_swap_x2 s[{S_PA}:{S_PA+1}], s[12:13], 0")
    e("s_waitcnt lgkmcnt(0)")
    g.lab("L_nonce_done")
    for t in range(2, 8):
        kofs(t)
    srd(g, S_W2, 8, 512 * 1792 * 2)
    srd(g, S_OUT, 10, 2048 * 512 * 2)
    srd(g, S_WS, 14, 0x10000000)
    e(f"s_lshr_b32 s{S_T0}, s{S_WAVE}, 1")
    e(f"s_and_b32 s{S_T1}, s{S_WAVE}, 1")
    e(f"s_lshl_b32 s{S_T2}, s{S_U}, 1")
    e(f"s_add_u32 s{S_T2}, s{S_T2}, s{S_T0}")
    e(f"s_lshl_b32 s{S_T3}, s{S_SPIN}, 1")
    e(f"s_add_u32 s{S_T3}, s{S_T3}, s{S_T1}")
    e(f"s_mul_i32 s4, s{S_T3}, 37")
    e(f"s_lshr_b32 s4, s4, 8")
    e(f"s_mul_i32 s5, s4, 7")
    e(f"s_sub_u32 s5, s{S_T3}, s5")
    e(f"s_lshl_b32 s6, s{S_T2}, 2")
    e(f"s_add_u32 s4, s4, s6")
    e(f"s_lshl_b32 s4, s4, 7")
    e(f"s_lshl_b32 s5, s5, 3")
    e(f"s_add_u32 s4, s4, s5")
    e(f"s_add_u32 s4, s4, {hex(FLAGS_OFF)}")
    e(f"s_add_u32 s{S_FA}, s14, s4")
    e(f"s_addc_u32 s{S_FA+1}, s15, 0")
    e(f"s_mul_i32 s{S_T2}, s{S_T2}, {4*RHO}")
    e(f"s_lshl_b32 s{S_T3}, s{S_T3}, 11")
    e(f"s_add_u32 s{S_T2}, s{S_T2}, s{S_T3}")
    e(f"v_lshl_add_u32 v{V_HST}, v{L}, 4, s{S_T2}")
    e(f"v_and_b32 v{T+2}, 15, v{L}")
    e(f"v_lshrrev_b32 v{T+5}, 1, v{T+2}")
    e(f"v_xor_b32 v{T+5}, v{T+5}, v{T}")
    e(f"v_lshlrev_b32 v{T+5}, 4, v{T+5}")
    if WX:
        e(f"v_lshl_add_u32 v{T+5}, v{T+1}, 7, v{T+5}")
        e(f"v_lshrrev_b32 v{T+6}, 3, v{T+2}")
        e(f"v_lshl_add_u32 v{T+5}, v{T+6}, 11, v{T+5}")
        e(f"s_lshl_b32 s{S_T2}, s{S_T0}, 14")
        e(f"s_add_u32 s{S_T2}, s{S_T2}, 1024")
    else:
        e(f"v_lshl_add_u32 v{T+5}, v{T+2}, 7, v{T+5}")
        e(f"s_lshl_b32 s{S_T2}, s{S_T0}, 13")
    e(f"v_add_u32 v{V_AX}, s{S_T2}, v{T+5}")
    e(f"v_xor_b32 v{V_AX+1}, 64, v{V_AX}")
    for z in (1, 2):
        for s in range(2):
            e(f"v_add_u32 v{V_AX+2*z+s}, {65536*z}, v{V_AX+s}")
    e(f"v_xor_b32 v{T+5}, v{T+1}, v{T}")
    e(f"v_lshlrev_b32 v{T+5}, 4, v{T+5}")
    e(f"v_lshl_add_u32 v{T+5}, v{T+2}, 8, v{T+5}")
    e(f"v_add_u32 v{V_RW}, s{S_M0W2}, v{T+5}")
    e(f"v_xor_b32 v{V_RW+1}, 64, v{V_RW}")
    e(f"s_lshl_b32 s{S_T2}, s{S_WAVE}, 2")
    e(f"v_add_u32 v{T+5}, s{S_T2}, v{T}")
    e(f"v_and_b32 v{T+6}, 7, v{T+5}")
    e(f"v_xor_b32 v{T+6}, v{T+6}, v{T+2}")
    e(f"v_lshlrev_b32 v{T+6}, 4, v{T+6}")
    e(f"v_lshl_add_u32 v{V_RR}, v{T+5}, 8, v{T+6}")
    e(f"v_lshlrev_b32 v{T+6}, 3, v{T+2}")
    e(f"v_lshl_add_u32 v{V_OUT}, v{T+5}, 10, v{T+6}")
    e(f"v_bfe_u32 v{T+2}, v{L}, 2, 2")
    e(f"v_and_b32 v{T+4}, 3, v{L}")
    e(f"v_lshlrev_b32 v{T+4}, 3, v{T+4}")
    e(f"v_and_b32 v{T+5}, 1, v{T}")
    e(f"v_lshl_add_u32 v{T+5}, v{T+5}, 2, v{T+2}")
    e(f"s_lshl_b32 s{S_T2}, s{S_T1}, 2")
    e(f"v_xor_b32 v{T+5}, s{S_T2}, v{T+5}")
    e(f"v_lshl_add_u32 v{T+5}, v{T+5}, 5, v{T+4}")
    e(f"v_lshl_add_u32 v{T+6}, v{T}, {4 if WX else 3}, v{T+2}")
    e(f"v_lshl_add_u32 v{V_AW1}, v{T+6}, 8, v{T+5}")
    for p in range(1, 4):
        e(f"v_xor_b32 v{V_AW1+p}, {32*p}, v{V_AW1}")
    for z in (1, 2):
        for p in range(4):
            e(f"v_add_u32 v{V_AW1+4*z+p}, {65536*z}, v{V_AW1+p}")
    e(f"v_lshl_add_u32 v{T+6}, v{T}, 2, v{T+2}")
    e(f"v_bfe_u32 v{T+5}, v{T+6}, 1, 2")
    e(f"v_lshl_add_u32 v{T+5}, v{T+5}, 5, v{T+4}")
    e(f"v_lshl_add_u32 v{T+5}, v{T+6}, 7, v{T+5}")
    e(f"v_add_u32 v{V_AW2}, s{S_M0W2}, v{T+5}")
    for p in range(1, 4):
        e(f"v_xor_b32 v{V_AW2+p}, {32*p}, v{V_AW2}")
    for z in (1, 2):
        for p in range(4):
            e(f"v_add_u32 v{V_AW2+4*z+p}, {65536*z}, v{V_AW2+p}")
    e(f"s_lshl_b32 s5, s{S_XCD}, 2")
    if o.el:
        e(f"s_and_b32 s4, s{S_Q}, 1")
        e(f"s_xor_b32 s4, s4, 1")
        e(f"s_lshl_b32 s4, s4, 1")
        e(f"s_add_u32 s5, s5, s4")
        e(f"s_lshr_b32 s4, s{S_Q}, 1")
        e(f"s_add_u32 s{S_T0}, s4, s5")
    else:
        e(f"s_add_u32 s{S_T0}, s{S_Q}, s5")
    e(f"s_lshr_b32 s4, s{S_I}, 2")
    e(f"s_cmp_ge_u32 s4, 3")
    e(f"s_addc_u32 s{S_T1}, s4, 0")
    e(f"s_cmp_eq_u32 s4, 7")
    e(f"s_cselect_b32 s{S_T1}, 3, s{S_T1}")
    e(f"s_lshr_b32 s4, s{S_T1}, 1")
    if o.rq == 1:
        e(f"s_add_u32 s4, s4, s{S_Q}")
    elif o.rq == 2:
        e(f"s_and_b32 s5, s{S_Q}, 1")
        e(f"s_add_u32 s4, s4, s5")
    elif o.rq == 3:
        e(f"s_and_b32 s5, s{S_Q}, 1")
        e(f"s_lshl_b32 s5, s5, 1")
        e(f"s_add_u32 s4, s4, s5")
    e(f"s_and_b32 s{S_T2}, s4, 3")
    e(f"s_and_b32 s{S_QROT}, s{S_T1}, {o.qmask}")
    e(f"s_mul_i32 s{S_T3}, s{S_WAVE}, 7")
    for b in range(7):
        if (o.el or o.i6) and b < 4:
            e(f"s_add_u32 s5, s{S_T2}, {b}")
            e(f"s_and_b32 s5, s5, 3")
            e(f"s_add_u32 s5, s5, s{S_T3}")
            e(f"s_add_u32 s5, s5, 2")
        elif (o.el or o.i6) and b == 4:
            e(f"s_add_u32 s5, s{S_T3}, 6")
        elif b < 5:
            e(f"s_add_u32 s5, s{S_T2}, {b}")
            e(f"s_cmp_ge_u32 s5, 5")
            e(f"s_cselect_b32 s6, -3, 2")
            e(f"s_add_u32 s5, s5, s6")
            e(f"s_add_u32 s5, s5, s{S_T3}")
        else:
            e(f"s_add_u32 s5, s{S_T3}, {b-5}")
        e(f"s_lshl_b32 s{S_UW+b}, s5, 16")
        e(f"s_lshl_b32 s{S_U+b}, s5, 11")
    e(f"v_lshlrev_b32 v{T+2}, 1, v{T}")
    e(f"v_xor_b32 v{T+2}, v{T+1}, v{T+2}")
    e(f"v_lshlrev_b32 v{T+2}, 4, v{T+2}")
    e(f"v_lshl_add_u32 v{T+2}, v{T+3}, 10, v{T+2}")
    e(f"s_lshl_b32 s{S_T2}, s{S_T1}, 7")
    e(f"v_add_u32 v{V_OW2}, s{S_T2}, v{T+2}")
    for j in range(1, 4):
        e(f"v_add_u32 v{V_OW2+j}, {7168*j}, v{V_OW2}")
    e(f"s_lshl_b32 s{S_T3}, s{S_T0}, 16")
    e(f"s_add_u32 s{S_T2}, s{S_T2}, s{S_T3}")
    e(f"v_add_u32 v{V_OUT}, s{S_T2}, v{V_OUT}")
    e(f"s_lshl_b32 s{S_T2}, s{S_T0}, 2")
    for Q in range(4):
        e(f"s_add_u32 s4, s{S_QROT}, {Q}")
        e(f"s_and_b32 s4, s4, 3")
        e(f"s_add_u32 s4, s4, s{S_T2}")
        e(f"s_mul_i32 s4, s4, {RHO}")
        e(f"v_lshl_add_u32 v{V_H+Q}, v{L}, 4, s4")
    e(f"s_add_u32 s{S_T2}, s{S_T2}, s{S_WAVE}")
    e(f"s_lshl_b32 s{S_T2}, s{S_T2}, 7")
    e(f"s_add_u32 s{S_T2}, s{S_T2}, {hex(FLAGS_OFF)}")
    e(f"s_add_u32 s{S_PA}, s14, s{S_T2}")
    e(f"s_addc_u32 s{S_PA+1}, s15, 0")
    e(f"s_load_dword s10, s[{S_PA}:{S_PA+1}], 0 glc")
    e(f"s_cmp_ge_u32 s{S_I}, 28")
    e("s_cbranch_scc1 L_idle")
    if o.tlb:
        e("s_mov_b64 exec, 1")
        if o.tlb & 1:
            e(f"buffer_load_dword v{V_EP}, v{V_HST}, s[{S_WS}:{S_WS+3}], 0 offen sc1")
        if o.tlb & 2:
            e(f"buffer_load_dword v{V_EP+1}, v{V_OUT}, s[{S_OUT}:{S_OUT+3}], 0 offen sc1")
        e("s_mov_b64 exec, -1")
    g.stamp("setup")
    rest = dma_c(1, 1)[abs(o.early1):]
    if o.early1 % 4:
        rest[0] = [f"s_add_u32 m0, s{S_M0W2 if WX else S_M0A}, {slot_base(1)}", "s_nop 0"] + rest[0]
    g.es(flat(rest))

    def hload(i):
        Q, p = divmod(i, 14)
        b, kp = divmod(p, 2)
        d = V_HR + 4 * (i % NB)
        return f"buffer_load_dwordx4 v[{d}:{d+3}], v{V_H+Q}, s[{S_WS}:{S_WS+3}], s{S_U+b} offen offset:{kp*1024} sc1"

    def hinit():
        for i in range(D):
            e(hload(i))
            if o.stage and (i + 1) % o.stage == 0 and i + 1 < D:
                e("s_barrier")

    def p2_mfma(i):
        Q, p = divmod(i, 14)
        h = V_HR + 4 * (i % NB)
        r = []
        for nu in (range(4) if (i % 2 == 0 and not o.nosnake) else range(3, -1, -1)):
            a = V_ACC + (Q * 4 + nu) * 4
            w = (p * 4 + nu) * 4
            c = "0" if p == 0 else f"v[{a}:{a+3}]"
            r.append(f"{MF} v[{a}:{a+3}], a[{w}:{w+3}], v[{h}:{h+3}], {c}")
        return r

    def producer(tag, stream):
        emit_p1(g, tag, stream)
        e("s_barrier")
        last = stream.index(('c', 7))
        it = [(stream[p][1], p) for p in range(last + 1, 15)]
        n = len(it)
        np_ = o.npre
        g.es(flat(dma_w(*it[np_])))
        for k in range(np_):
            e(f"s_waitcnt vmcnt({8*(np_-1-k)+16}) lgkmcnt(4)")
            emit_tr(g, *it[k])
        e("s_waitcnt vmcnt(8) lgkmcnt(0)")
        emit_flag(g)
        g.es(flat(dma_w(*it[np_ + 1])))
        k = np_
        while k + 2 < n:
            dm = dma_w(*it[k + 2])
            if o.apoll >= 0 and k + 3 == n:
                dm = dm[:o.apoll] + [[poll_load()]] + dm[o.apoll:]
            g.es(flat(dm))
            if n - k == o.pollk:
                break
            e("s_waitcnt vmcnt(16) lgkmcnt(4)")
            emit_tr(g, *it[k])
            k += 1
        g.stamp("poll1")
        emit_poll(g, tag, o.apoll >= 0)
        g.stamp("ready")
        if o.rbar:
            e("s_barrier")
        hinit()
        while k < n:
            e(f"s_waitcnt vmcnt({D+8*(n-1-k)}) lgkmcnt(4)")
            if k == n - 1:
                g.stamp("wl6")
            emit_tr(g, *it[k])
            k += 1

    C = [('c', t) for t in range(8)]
    W = [('w', b) for b in {0: (5, 6, 1, 2, 3, 4), 1: (5, 6, 4, 1, 2, 3), 2: (5, 6, 1, 2, 3, 4), 3: (4, 5, 6, 1, 2, 3)}[o.i6]]
    if o.ins2:
        e(f"s_bitcmp1_b32 s{S_I}, 0")
        e("s_cbranch_scc1 L_path2")
    if o.el:
        producer("U", C + [('w', b) for b in (5, 6, 0, 1, 3, 2, 4)])
    else:
        producer("U", C[:o.ins] + [('w', 0)] + C[o.ins:] + W)
    g.lab("L_p2")

    def img(Q):
        return 32768 * (Q >> 1) + 4096 * (Q & 1)

    def red_write(Q):
        return [f"ds_write_b128 v{V_RW+(nu&1)}, v[{V_ACC+(Q*4+nu)*4}:{V_ACC+(Q*4+nu)*4+3}] offset:{img(Q) + 128*(nu>>1)}"
                for nu in range(4)]

    def red_read(Q):
        return [f"ds_read_b128 v[{V_RD+4*w}:{V_RD+4*w+3}], v{V_RR} offset:{img(Q) + 8192*w}" for w in range(4)]

    def red_sum(Q):
        r = []
        for j in range(4):
            r.append(f"v_add_f32 v{V_RD+j}, v{V_RD+j}, v{V_RD+4+j}")
        for j in range(4):
            r.append(f"v_add_f32 v{V_RD+8+j}, v{V_RD+8+j}, v{V_RD+12+j}")
        for j in range(4):
            r.append(f"v_add_f32 v{V_RD+j}, v{V_RD+j}, v{V_RD+8+j}")
        for j in range(2):
            r.append(f"v_cvt_pk_bf16_f32 v{V_RES+2*Q+j}, v{V_RD+2*j}, v{V_RD+2*j+1}")
        return r

    def out_store(Q):
        return f"buffer_store_dwordx2 v[{V_RES+2*Q}:{V_RES+2*Q+1}], v{V_OUT}, s[{S_OUT}:{S_OUT+3}], s{S_T0+Q} offen {o.outflag if Q < 3 else o.lastflag}"

    extra = {}

    def put(i, l):
        extra.setdefault(i, []).extend(l)
    for Q in range(3):
        b = 14 * (Q + 1)
        w = red_write(Q)
        put(b + 1, w[0:2])
        put(b + 2, w[2:4])
        if o.redmode == 0:
            put(b + 4, ["s_waitcnt lgkmcnt(0)", "s_barrier"])
            put(b + 5, red_read(Q))
            s = red_sum(Q)
            put(b + 7, ["s_waitcnt lgkmcnt(0)"] + s[0:3])
            put(b + 8, s[3:7])
            put(b + 9, s[7:11])
            put(b + 10, s[11:14])
            if o.earlyst:
                assert 56 - D <= 53
                put(max(56 - D, b + 11), [out_store(Q)])
    if o.redmode == 1:
        put(45, ["s_waitcnt lgkmcnt(0)", "s_barrier"] + red_read(0))
        for Q in range(3):
            b = 47 + 3 * Q
            s = red_sum(Q)
            put(b, ["s_waitcnt lgkmcnt(0)"] + s[0:6])
            put(b + 1, s[6:12])
            put(b + 2 if Q == 2 else b + 1, s[12:14] + (red_read(Q + 1) if Q < 2 else []))
            if o.earlyst:
                put(b + 2, [out_store(Q)])
    for Q in range(4):
        put(4 + Q, [f"s_add_u32 s{S_T0+Q}, s{S_QROT}, {Q}", f"s_and_b32 s{S_T0+Q}, s{S_T0+Q}, 3",
                    f"s_lshl_b32 s{S_T0+Q}, s{S_T0+Q}, 14"])
    for i in range(56):
        issued = min(56, i + D)
        nst = sum(1 for k in range(i) for x in extra.get(k, []) if x.startswith("buffer_store"))
        wait = f"s_waitcnt vmcnt({issued - i - 1 + nst})"
        if o.pairwait and 2 <= i < 56 - D - 1:
            wait = f"s_waitcnt vmcnt({issued - i - 2 + nst})" if i % 2 == 0 else None
        if i == (1 if (o.el or o.i6) else 3):
            wait += " lgkmcnt(0)"
        if wait:
            e(wait)
        m = p2_mfma(i)
        x = extra.get(i, [])
        if i + D < 56:
            n3 = (len(x) + 2) // 3
            gaps = [[hload(i + D)], x[0:n3], x[n3:2*n3], x[2*n3:]]
        else:
            n4 = (len(x) + 3) // 4
            gaps = [x[0:n4], x[n4:2*n4], x[2*n4:3*n4], x[3*n4:]]
        grp(g, m, gaps)
        g.stamp(f"h{i}")
    g.stamp("loopend")
    w = red_write(3)[::-1]
    e("s_nop 4")
    g.es(w)
    e("s_waitcnt lgkmcnt(0)")
    e("s_barrier")
    g.es(red_read(3))
    if not o.earlyst:
        for Q in range(3):
            e(out_store(Q))
    if o.fasttail:
        R = V_RD
        e("s_waitcnt lgkmcnt(2)")
        e(f"v_pk_add_f32 v[{R}:{R+1}], v[{R}:{R+1}], v[{R+4}:{R+5}]")
        e(f"v_pk_add_f32 v[{R+2}:{R+3}], v[{R+2}:{R+3}], v[{R+6}:{R+7}]")
        e("s_waitcnt lgkmcnt(0)")
        e(f"v_pk_add_f32 v[{R+8}:{R+9}], v[{R+8}:{R+9}], v[{R+12}:{R+13}]")
        e(f"v_pk_add_f32 v[{R+10}:{R+11}], v[{R+10}:{R+11}], v[{R+14}:{R+15}]")
        e(f"v_pk_add_f32 v[{R}:{R+1}], v[{R}:{R+1}], v[{R+8}:{R+9}]")
        e(f"v_pk_add_f32 v[{R+2}:{R+3}], v[{R+2}:{R+3}], v[{R+10}:{R+11}]")
        g.es(red_sum(3)[12:14])
    else:
        e("s_waitcnt lgkmcnt(0)")
        g.es(red_sum(3))
    e(out_store(3))
    if o.stamps:
        e("s_waitcnt vmcnt(0)")
        g.stamp("final")
        e("s_waitcnt lgkmcnt(0)")
        if o.probe:
            pa, pb, pwg = [int(x) for x in o.probe.split(",")]
            if pwg >= 0:
                e(f"s_cmp_lg_u32 s2, {pwg}")
                e("s_cbranch_scc1 L_end")
            if pwg == -2:
                e(f"s_cmp_ge_u32 s{S_I}, 28")
                e("s_cbranch_scc1 L_end")
            e(f"s_sub_u32 s{S_T0}, s{S_ST+2*pb}, s{S_NON if pa == 9 else S_ST+2*pa}")
            e(f"s_min_u32 s{S_T0}, s{S_T0}, 5000")
            e(f"s_mul_i32 s{S_T0}, s{S_T0}, 10")
            e(f"s_add_u32 s{S_T0}, s{S_T0}, s{S_ST+16}")
            g.lab("L_probe")
            e(f"s_memrealtime s[4:5]")
            e("s_waitcnt lgkmcnt(0)")
            e(f"s_sub_u32 s{S_T1}, s4, s{S_T0}")
            e(f"s_cmp_lt_i32 s{S_T1}, 0")
            e("s_cbranch_scc1 L_probe")
            e("s_endpgm")
        for n in range(9):
            e(f"v_mov_b32 v{96+n}, s{S_ST+2*n}")
        e(f"s_lshl_b32 s{S_T0}, s2, 8")
        e(f"s_lshl_b32 s{S_T1}, s{S_WAVE}, 6")
        e(f"s_add_u32 s{S_T0}, s{S_T0}, s{S_T1}")
        e(f"s_add_u32 s{S_T0}, s{S_T0}, {hex(STAMP_OFF)}")
        e("v_mov_b32 v108, 0")
        e("s_mov_b64 exec, 1")
        for n in range(3):
            e(f"buffer_store_dwordx4 v[{96+4*n}:{99+4*n}], v108, s[{S_WS}:{S_WS+3}], s{S_T0} offen offset:{16*n} sc1")
    g.lab("L_end")
    e("s_endpgm")

    g.lab("L_early_idle")
    def _pt():
        if o.ptouch == 1:
            e(f"v_lshrrev_b32 v{V_ACC+4}, 2, v{L}")
            e(f"v_and_b32 v{V_ACC+5}, 1, v{L}")
            e(f"v_bfe_u32 v{V_ACC+6}, v{L}, 1, 1")
            e(f"v_lshl_add_u32 v{V_ACC+5}, v{V_ACC+6}, 2, v{V_ACC+5}")
            e(f"v_lshlrev_b32 v{V_ACC+5}, 7, v{V_ACC+5}")
            e(f"v_lshl_add_u32 v{V_ACC+4}, v{V_ACC+4}, 10, v{V_ACC+5}")
            e(f"s_and_b32 s{S_U+1}, s{S_XCD}, 6")
            e(f"s_lshl_b32 s{S_U+1}, s{S_U+1}, 1")
            e(f"s_add_u32 s{S_U+1}, s{S_U+1}, s{S_Q}")
            e(f"s_lshl_b32 s{S_U+1}, s{S_U+1}, 1")
            e(f"s_and_b32 s{S_U+2}, s{S_XCD}, 1")
            e(f"s_add_u32 s{S_U+1}, s{S_U+1}, s{S_U+2}")
            e(f"s_lshl_b32 s{S_U+1}, s{S_U+1}, 2")
            e(f"s_add_u32 s{S_U+1}, s{S_U+1}, s{S_WAVE}")
            e(f"s_lshl_b32 s{S_U+1}, s{S_U+1}, 14")
            e(f"v_mul_u32_u24 v{V_ACC+5}, 4682, v{L}")
            e(f"v_lshrrev_b32 v{V_ACC+5}, 16, v{V_ACC+5}")
            e(f"v_mul_u32_u24 v{V_ACC+6}, 14, v{V_ACC+5}")
            e(f"v_sub_u32 v{V_ACC+6}, v{L}, v{V_ACC+6}")
            e(f"v_lshlrev_b32 v{V_ACC+6}, 7, v{V_ACC+6}")
            e(f"v_and_b32 v{V_ACC+7}, 1, v{V_ACC+5}")
            e(f"v_lshrrev_b32 v{V_ACC+5}, 1, v{V_ACC+5}")
            e(f"v_lshl_add_u32 v{V_ACC+5}, v{V_ACC+5}, 8, v{V_ACC+7}")
            e(f"v_mul_u32_u24 v{V_ACC+5}, 3584, v{V_ACC+5}")
            e(f"v_add_u32 v{V_ACC+5}, v{V_ACC+5}, v{V_ACC+6}")
            e(f"s_mul_i32 s{S_U+2}, s{S_U+2}, 1792")
            e(f"s_lshr_b32 s{S_U+3}, s{S_XCD}, 1")
            e(f"s_lshl_b32 s{S_U+3}, s{S_U+3}, 2")
            e(f"s_add_u32 s{S_U+3}, s{S_U+3}, s{S_Q}")
            e(f"s_lshl_b32 s{S_U+3}, s{S_U+3}, 2")
            e(f"s_add_u32 s{S_U+3}, s{S_U+3}, s{S_WAVE}")
            e(f"s_lshl_b32 s{S_U+3}, s{S_U+3}, 1")
            e(f"s_add_u32 s{S_U+3}, s{S_U+3}, 128")
            e(f"s_mul_i32 s{S_U+3}, s{S_U+3}, 3584")
            e(f"s_add_u32 s{S_U+2}, s{S_U+2}, s{S_U+3}")
            xo = 1024 if WX else 0
            def tX(off, r):
                e(f"buffer_load_dword v{V_ACC+r}, v{V_ACC+4}, s[{S_X}:{S_X+3}], s{S_U+1} offen offset:{off + xo}")
            def tW23():
                e(f"s_mov_b32 exec_hi, 0xffffff")
                e(f"buffer_load_dword v{V_ACC+60}, v{V_ACC+5}, s[{S_W1}:{S_W1+3}], s{S_U+2} offen")
                e(f"s_mov_b32 exec_hi, -1")
            def tW1():
                B = V_ACC + 10
                e(f"v_cmp_lt_u32 vcc, 13, v{L}")
                e(f"v_lshlrev_b32 v{B+1}, 7, v{L}")
                e(f"v_mov_b32 v{B+2}, {256*3584 - 14*128}")
                e(f"v_cndmask_b32 v{B+2}, 0, v{B+2}, vcc")
                e(f"v_add_u32 v{B+1}, v{B+1}, v{B+2}")
                e(f"s_and_b32 s{S_U+4}, s{S_XCD}, 1")
                e(f"s_mul_i32 s{S_U+4}, s{S_U+4}, 1792")
                e(f"s_lshl_b32 s{S_U+3}, s{S_U}, 2")
                e(f"s_add_u32 s{S_U+3}, s{S_U+3}, s{S_WAVE}")
                e(f"s_add_u32 s{S_U+3}, s{S_U+3}, 64")
                e(f"s_mul_i32 s{S_U+3}, s{S_U+3}, 3584")
                e(f"s_add_u32 s{S_U+4}, s{S_U+4}, s{S_U+3}")
                e("s_mov_b64 exec, 0xfffffff")
                e(f"buffer_load_dword v{V_ACC+58}, v{B+1}, s[{S_W1}:{S_W1+3}], s{S_U+4} offen")
                e("s_mov_b64 exec, -1")
            for tok in o.tord.split(","):
                {"x01": lambda: tX(0, 59), "x23": lambda: tX(256, 61), "w23": tW23, "w1": tW1}[tok]()
        if o.ptouch == 2:
            B = V_ACC + 4
            e(f"v_lshrrev_b32 v{B}, 1, v{L}")
            e(f"v_and_b32 v{B+1}, 1, v{L}")
            e(f"v_lshlrev_b32 v{B+1}, 9, v{B+1}")
            e(f"v_lshl_add_u32 v{B}, v{B}, 10, v{B+1}")
            e(f"s_lshl_b32 s{S_U+1}, s{S_U}, 1")
            e(f"s_and_b32 s{S_U+2}, s{S_XCD}, 1")
            e(f"s_add_u32 s{S_U+1}, s{S_U+1}, s{S_U+2}")
            e(f"s_lshl_b32 s{S_U+1}, s{S_U+1}, 2")
            e(f"s_add_u32 s{S_U+1}, s{S_U+1}, s{S_WAVE}")
            e(f"s_lshl_b32 s{S_U+1}, s{S_U+1}, 14")
            e(f"v_cmp_lt_u32 vcc, 13, v{L}")
            e(f"v_lshlrev_b32 v{B+1}, 7, v{L}")
            e(f"v_mov_b32 v{B+2}, {256*3584 - 14*128}")
            e(f"v_cndmask_b32 v{B+2}, 0, v{B+2}, vcc")
            e(f"v_add_u32 v{B+1}, v{B+1}, v{B+2}")
            e(f"s_mul_i32 s{S_U+2}, s{S_U+2}, 1792")
            e(f"s_lshl_b32 s{S_U+3}, s{S_U}, 2")
            e(f"s_add_u32 s{S_U+3}, s{S_U+3}, s{S_WAVE}")
            e(f"s_add_u32 s{S_U+3}, s{S_U+3}, 192")
            e(f"s_mul_i32 s{S_U+3}, s{S_U+3}, 3584")
            e(f"s_add_u32 s{S_U+2}, s{S_U+2}, s{S_U+3}")
            e("s_mov_b64 exec, 0xfffffff")
            e(f"buffer_load_dword v{V_ACC+60}, v{B+1}, s[{S_W1}:{S_W1+3}], s{S_U+2} offen")
            e("s_mov_b32 exec_lo, -1")
            e(f"buffer_load_dword v{V_ACC+61}, v{B}, s[{S_X}:{S_X+3}], s{S_U+1} offen offset:384")
            e("s_mov_b64 exec, -1")
    def _wt():
        if o.touch:
            srd(g, S_W2, 8, 512 * 1792 * 2)
            e(f"v_lshlrev_b32 v{V_ACC+8}, 7, v{L}")
            e(f"s_lshl_b32 s{S_U+1}, s{S_Q}, 3")
            e(f"s_add_u32 s{S_U+1}, s{S_U+1}, s{S_XCD}")
            e(f"s_lshl_b32 s{S_U+1}, s{S_U+1}, 2")
            e(f"s_add_u32 s{S_U+1}, s{S_U+1}, s{S_WAVE}")
            e(f"s_mul_i32 s{S_U+1}, s{S_U+1}, {14*1024}")
            e(f"s_add_u32 s{S_U+2}, s{S_U+1}, 8192")
            e(f"buffer_load_dword v{V_ACC+62}, v{V_ACC+8}, s[{S_W2}:{S_W2+3}], s{S_U+1} offen")
            e(f"s_mov_b32 exec_hi, 0xffff")
            e(f"buffer_load_dword v{V_ACC+63}, v{V_ACC+8}, s[{S_W2}:{S_W2+3}], s{S_U+2} offen")
            e(f"s_mov_b32 exec_hi, -1")
    if o.wfirst:
        _wt()
        _pt()
    else:
        _pt()
        _wt()
    e("s_branch L_setup2")

    g.lab("L_idle")
    seq = [0, 5, 6, 1, 2, 3, 4]
    if o.idlerot:
        e(f"s_mul_i32 s4, s{S_WAVE}, 7")
        for n, b in enumerate(seq):
            e(f"s_lshl_b32 s5, s{S_Q}, 1")
            e(f"s_add_u32 s5, s5, {n}")
            e(f"s_cmp_ge_u32 s5, 7")
            e(f"s_cselect_b32 s6, 7, 0")
            e(f"s_sub_u32 s5, s5, s6")
            e(f"s_add_u32 s5, s5, s4")
            e(f"s_lshl_b32 s{S_UW+b}, s5, 16")
            e(f"s_lshl_b32 s{S_U+b}, s5, 11")
    e(nonce_load())
    g.es(flat(dma_w(seq[0], 0)))
    g.es(flat(dma_w(seq[1], 1)))
    for k in range(7):
        if k + 2 < 7:
            g.es(flat(dma_w(seq[k + 2], k + 2)))
        e(f"s_waitcnt vmcnt({8*min(2, 6-k)}) lgkmcnt(4)")
        emit_tr(g, seq[k], k)
    g.stamp("wl6")
    emit_nonce_check(g, "i")
    emit_poll(g, "I")
    g.stamp("ready")
    if o.rbar:
        e("s_barrier")
    hinit()
    e("s_branch L_p2")

    if o.ins2:
        g.lab("L_path2")
        if o.el:
            producer("V", C[:o.ins] + [('w', 0)] + C[o.ins:o.ins2] + [('w', 2)] + C[o.ins2:] + [('w', b) for b in (5, 6, 1, 3, 4)])
        else:
            producer("V", C[:o.ins2] + [('w', 0)] + C[o.ins2:] + W)
        e("s_branch L_p2")
    g.lab("L_code_end")

    if o.align:
        out = []
        for k, l in enumerate(g.L):
            if l.strip().startswith("v_mfma") and not g.L[k - 1].strip().startswith("v_mfma"):
                if o.align == 1 or (o.align == 2 and g.L[k - 1].strip().startswith(("s_waitcnt", "s_barrier"))):
                    out.append("    .p2align 3")
            out.append(l)
        g.L = out
    if o.shift:
        k = next(i for i, l in enumerate(g.L) if "pos 0: c0" in l)
        g.L.insert(k, "    s_nop 0")
    body = "\n".join(g.L)
    txt = HEADER + DOC + f""".amdgcn_target "amdgcn-amd-amdhsa--gfx950"
.text
.globl {KNAME}
.p2align 8
.type {KNAME},@function
{body}
.section .rodata,"a"
.p2align 6
.amdhsa_kernel {KNAME}
  .amdhsa_next_free_vgpr 512
  .amdhsa_next_free_sgpr 102
  .amdhsa_accum_offset 256
  .amdhsa_group_segment_fixed_size 0
  .amdhsa_kernarg_size 48
  .amdhsa_user_sgpr_count 2
  .amdhsa_user_sgpr_kernarg_segment_ptr 1
  .amdhsa_system_sgpr_workgroup_id_x 1
.end_amdhsa_kernel
"""
    return txt


def parse(argv):
    p = argparse.ArgumentParser()
    p.add_argument("-o", default=None)
    p.add_argument("--co", default=None)
    p.add_argument("--stamps", default="")
    p.add_argument("--rt", type=int, default=0)
    p.add_argument("--depth", type=int, default=10)
    p.add_argument("--nbuf", type=int, default=16)
    p.add_argument("--ins", type=int, default=4)
    p.add_argument("--ins2", type=int, default=6)
    p.add_argument("--rotsh", type=int, default=2)
    p.add_argument("--qmask", type=int, default=1)
    p.add_argument("--outflag", default="sc1")
    p.add_argument("--probe", default="")
    p.add_argument("--cpf", type=int, default=1)
    p.add_argument("--touch", type=int, default=1)
    p.add_argument("--npf", type=int, default=0)
    p.add_argument("--pat", type=int, default=6)
    p.add_argument("--redmode", type=int, default=0)
    p.add_argument("--presleep", type=int, default=0)
    p.add_argument("--wfirst", type=int, default=0)
    p.add_argument("--npre", type=int, default=2)
    p.add_argument("--pollk", type=int, default=3)
    p.add_argument("--apoll", type=int, default=4)
    p.add_argument("--el", type=int, default=0)
    p.add_argument("--rbar", type=int, default=0)
    p.add_argument("--tlb", type=int, default=0)
    p.add_argument("--wx", type=int, default=0)
    p.add_argument("--tord", default="w23,x23")
    p.add_argument("--nosnake", type=int, default=0)
    p.add_argument("--pairwait", type=int, default=0)
    p.add_argument("--lastflag", default="sc1")
    p.add_argument("--idlerot", type=int, default=1)
    p.add_argument("--rq", type=int, default=1)
    p.add_argument("--early1", type=int, default=3)
    p.add_argument("--align", type=int, default=0)
    p.add_argument("--shift", type=int, default=0)
    p.add_argument("--i6", type=int, default=2)
    p.add_argument("--stage", type=int, default=5)
    p.add_argument("--earlyst", type=int, default=1)
    p.add_argument("--fasttail", type=int, default=1)
    p.add_argument("--m0early", type=int, default=1)
    p.add_argument("--ptouch", type=int, default=1)
    p.add_argument("--idlesleep", type=int, default=0)
    return p.parse_args(argv)


if __name__ == "__main__":
    o = parse(sys.argv[1:])
    txt = gen(o)
    if o.o:
        open(o.o, "w").write(txt)
    if o.co:
        open(o.co + ".s", "w").write(txt + META)
        r = subprocess.run(["clang", "-x", "assembler", "-target", "amdgcn-amd-amdhsa",
                            "-mcpu=gfx950", o.co + ".s", "-o", o.co + ".co"], capture_output=True, text=True)
        if r.returncode:
            print(r.stderr[:4000])
            sys.exit(1)
```

```python
import sys, subprocess, argparse
from gen import HEADER, KNAME, META

FLAGS_OFF = 0x800000
STAMP_OFF = 0x8000000
RHO = 57344

S_X, S_W1, S_W2, S_OUT, S_DBG, S_WS = 16, 20, 24, 28, 32, 36
S_WAVE = 40
S_XCD = 41
S_I = 42
S_T0, S_T1, S_T2, S_T3 = 43, 44, 45, 46
S_M0A = 47
S_U = 48
S_M0W2 = 55
S_UW = 56
S_SPIN = 63
S_KX = 64
S_KW = 72
S_POLL = 64
S_NON = 80
S_PA = 82
S_ST = 84
S_Q = 3
S_FA = 8
S_QROT = 11

V_LANE = 1
V_OX = 2
V_OW1 = 6
V_OW2 = 10
V_H = 14
V_ZERO = 18
V_NON = 20
V_HST = 22
V_OUT = 23
V_RW = 24
V_RR = 26
V_ACC = 32
V_FR = 96
V_EP = 160
V_AX = 192
V_AW1 = 198
V_AW2 = 210
V_RES = 222
V_RD = 232
V_T = 232
V_HR = 96
NONCE_POS = 2
WX = 0
MF = "v_mfma_f32_16x16x32_bf16"


DOC = """;
"""


class G:
    def __init__(self, o):
        self.o = o
        self.L = []

    def e(self, s):
        self.L.append("    " + s)

    def es(self, l):
        for x in l:
            self.e(x)

    def lab(self, s):
        self.L.append(s + ":")

    def c(self, s):
        self.L.append("    ; " + s)

    def stamp(self, name):
        if not self.o.stamps:
            return
        names = self.o.stamps.split(",")
        if name == "final":
            idx = 8
        elif name in names[:8]:
            idx = names.index(name)
        else:
            return
        r = S_ST + 2 * idx
        self.e(f"s_memrealtime s[{r}:{r+1}]" if self.o.rt else f"s_memtime s[{r}:{r+1}]")


def srd(g, d, lo, nbytes):
    g.e(f"s_mov_b32 s{d}, s{lo}")
    g.e(f"s_mov_b32 s{d+1}, s{lo+1}")
    g.e(f"s_mov_b32 s{d+2}, {hex(nbytes)}")
    g.e(f"s_mov_b32 s{d+3}, 0x20000")


def slot_base(pos):
    return (pos % 5) * 32768


def zone(pos):
    s = pos % 5
    return s // 2, (s % 2) * 32768


def dma_c(t, pos):
    sb = slot_base(pos)
    out = []
    if WX:
        for k in range(8):
            j, isx = divmod(k, 2)
            vo, sr, so = (V_OX, S_X, S_KX + t) if isx else (V_OW1, S_W1, S_KW + t)
            ins = f"buffer_load_dwordx4 v{vo+j}, s[{sr}:{sr+3}], s{so} offen offset:{1024*(k%4)} lds"
            if k % 4 == 0:
                out.append([f"s_add_u32 m0, s{S_M0W2}, {sb + 4096*(k//4)}", "s_nop 0", ins])
            else:
                out.append([ins])
        return out
    for vo, sr, so, add in ((V_OW1, S_W1, S_KW + t, 0), (V_OX, S_X, S_KX + t, 16384)):
        for j in range(4):
            ins = f"buffer_load_dwordx4 v{vo+j}, s[{sr}:{sr+3}], s{so} offen offset:{1024*j} lds"
            if j == 0:
                out.append([f"s_add_u32 m0, s{S_M0A}, {sb+add}", "s_nop 0", ins])
            else:
                out.append([ins])
    return out


def dma_w(b, pos):
    sb = slot_base(pos)
    out = []
    for half in range(2):
        for j in range(4):
            so = f"s{S_UW+b}" if half == 0 else f"s{S_T3}"
            ins = f"buffer_load_dwordx4 v{V_OW2+j}, s[{S_W2}:{S_W2+3}], {so} offen offset:{1024*j} lds"
            if j == 0:
                pre = [f"s_add_u32 m0, s{S_M0W2}, {sb + 4096*half}"]
                pre.append(f"s_add_u32 s{S_T3}, s{S_UW+b}, 32768" if half == 1 else "s_nop 0")
                out.append(pre + [ins])
            else:
                out.append([ins])
    return out


def flat(groups):
    return [x for gr in groups for x in gr]


def frA(s, phi):
    return V_FR + 32 * s + 4 * phi


def frB(s, rho):
    return V_FR + 32 * s + 16 + 4 * rho


def rdA(pos, s, phi):
    z, add = zone(pos)
    return [f"ds_read_b64_tr_b16 v[{frA(s,phi)+2*e}:{frA(s,phi)+2*e+1}], v{V_AW1+4*z+phi} offset:{add + ((16384*s + 2048*e) if WX else (32*s+4*e)*256)}"
            for e in range(2)]


def rdB(pos, s, rho):
    z, add = zone(pos)
    return [f"ds_read_b128 v[{frB(s,rho)}:{frB(s,rho)+3}], v{V_AX+2*z+s} offset:{add + (rho*4096 if WX else 16384 + rho*2048)}"]


def p1_reads(pos, sub):
    s, h = divmod(sub, 2)
    if h == 0:
        return rdA(pos, s, 0) + rdB(pos, s, 0) + rdB(pos, s, 1) + rdB(pos, s, 2) + rdB(pos, s, 3) + rdA(pos, s, 1)
    return rdA(pos, s, 2) + rdA(pos, s, 3)


def acc1(phi, rho):
    return V_ACC + (phi * 4 + rho) * 4


def p1_mfma(sub, first):
    s, h = divmod(sub, 2)
    r = []
    for k, phi in enumerate((2 * h, 2 * h + 1)):
        for rho in (range(4) if k == 0 else range(3, -1, -1)):
            a = acc1(phi, rho)
            A, B = frA(s, phi), frB(s, rho)
            c = "0" if first else f"v[{a}:{a+3}]"
            r.append(f"{MF} v[{a}:{a+3}], v[{A}:{A+3}], v[{B}:{B+3}], {c}")
    return r


def w2_tr(b, pos):
    z, add = zone(pos)
    r = []
    for kp in range(2):
        for nu in range(4):
            for e in range(2):
                d = ((b * 2 + kp) * 4 + nu) * 4 + 2 * e
                r.append(f"ds_read_b64_tr_b16 a[{d}:{d+1}], v{V_AW2+4*z+nu} offset:{add + (32*kp+16*e)*128}")
    return r


def emit_tr(g, b, pos):
    for i, x in enumerate(w2_tr(b, pos)):
        if i == 8:
            g.e("s_waitcnt lgkmcnt(4)")
        g.e(x)


def grp(g, mf, gaps):
    gaps = list(gaps) + [[]] * (len(mf) - len(gaps))
    for m, gp in zip(mf, gaps):
        if m:
            g.e(m)
        g.es(gp)


def poll_load():
    return f"s_load_dwordx16 s[{S_POLL}:{S_POLL+15}], s[{S_PA}:{S_PA+1}], 0 glc"


def emit_poll(g, tag, issued=False):
    e = g.e
    e(f"s_mov_b32 s{S_SPIN}, 0x40000")
    if issued:
        e(f"s_branch L_check_{tag}")
    g.lab(f"L_poll_{tag}")
    e(poll_load())
    e(f"s_sub_u32 s{S_SPIN}, s{S_SPIN}, 1")
    e(f"s_cbranch_scc1 L_ready_{tag}")
    g.lab(f"L_check_{tag}")
    e("s_waitcnt lgkmcnt(0)")
    for k in range(7):
        e(f"s_cmp_lg_u64 s[{S_POLL+2*k}:{S_POLL+2*k+1}], s[{S_NON}:{S_NON+1}]")
        e(f"s_cbranch_scc1 L_poll_{tag}")
    g.lab(f"L_ready_{tag}")


def nonce_load():
    return f"buffer_load_dwordx2 v[{V_NON}:{V_NON+1}], v{V_ZERO}, s[{S_DBG}:{S_DBG+3}], 0 offen sc1"


def emit_nonce_check(g, tag):
    e = g.e
    e(f"v_readfirstlane_b32 s{S_NON+1}, v{V_NON+1}")
    e(f"s_mov_b32 s{S_SPIN}, 0x40000")
    g.lab(f"L_non_{tag}")
    e(f"s_cmp_lg_u32 s{S_NON+1}, 0")
    e(f"s_cbranch_scc1 L_nonok_{tag}")
    e(nonce_load())
    e("s_waitcnt vmcnt(0)")
    e(f"v_readfirstlane_b32 s{S_NON+1}, v{V_NON+1}")
    e(f"s_sub_u32 s{S_SPIN}, s{S_SPIN}, 1")
    e(f"s_cbranch_scc0 L_non_{tag}")
    g.lab(f"L_nonok_{tag}")
    e(f"v_readfirstlane_b32 s{S_NON}, v{V_NON}")


def epi(h, rho):
    d = V_EP + 4 * (4 * h + rho)
    r = []
    for k in range(2):
        a = acc1(2 * h + k, rho)
        r.append(f"v_cvt_pk_bf16_f32 v{d+2*k}, v{a}, v{a+1}")
        r.append(f"v_cvt_pk_bf16_f32 v{d+2*k+1}, v{a+2}, v{a+3}")
    for jj in range(4):
        r.append(f"v_pk_max_i16 v{d+jj}, v{d+jj}, 0")
    so = "0" if rho == 0 else f"s{S_T0+rho-1}"
    r.append(f"buffer_store_dwordx4 v[{d}:{d+3}], v{V_HST}, s[{S_WS}:{S_WS+3}], {so} offen offset:{1024*h} sc1")
    return r


def emit_p1(g, tag, stream):
    e = g.e
    last = stream.index(('c', 7))
    pending = False
    for p in range(last + 1):
        kind, idx = stream[p]
        g.c(f"---- {tag} pos {p}: {kind}{idx}")
        e(f"s_waitcnt vmcnt({9 if p == NONCE_POS + 1 else 8}) lgkmcnt(0)")
        e("s_barrier")
        g.stamp(f"bar{kind}{idx}")
        nk, ni = stream[p + 2]
        f = dma_c(ni, p + 2) if nk == 'c' else dma_w(ni, p + 2)
        if p == last and g.o.npre < 2:
            f = [["s_nop 0"]] + [[]] * 3 + [["s_nop 0"]] + [[]] * 3
        m3 = p1_mfma(3, False) if pending else [None] * 8
        pat = g.o.pat
        if kind == 'c' and pat == 0:
            R = [p1_reads(p, k) for k in range(4)]
            grp(g, m3, [R[0][0:2], R[0][2:4], R[0][4:6], R[0][6:8], R[1][0:2], R[1][2:4], [], f[0]])
            e("s_waitcnt lgkmcnt(4)")
            grp(g, p1_mfma(0, idx == 0), [R[2][0:2], R[2][2:4], R[2][4:6], R[2][6:8], f[1], [], f[2], []])
            e("s_waitcnt lgkmcnt(8)")
            if idx < 7:
                grp(g, p1_mfma(1, idx == 0), [R[3][0:2], R[3][2:4], f[3], [], f[4], [], [], f[5]])
                e("s_waitcnt lgkmcnt(4)")
                grp(g, p1_mfma(2, False), [[], [], f[6], [], [], [], f[7], []])
            else:
                grp(g, p1_mfma(1, False), [R[3][0:2], R[3][2:4], f[3], f[4], f[5], f[6], f[7], []])
            pending = True
        elif kind == 'c' and pat in (1, 3, 4):
            R = [[[x] for x in p1_reads(p, k)] for k in range(4)]
            a0, a4 = [], []
            if g.o.m0early:
                f = [list(x) for x in f]
                a0 = [x for x in f[0][:-1] if x != "s_nop 0"]
                a4 = [x for x in f[4][:-1] if x != "s_nop 0"]
                f[0], f[4] = f[0][-1:], f[4][-1:]
            if pat == 4:
                grp(g, m3, [R[0][0] + R[0][1], R[0][2] + R[0][3], R[0][4], R[0][5], R[0][6], R[0][7], a0,
                            f[0] if pending else ["s_nop 0"] + f[0]])
                e("s_waitcnt lgkmcnt(2)")
                m0 = p1_mfma(0, idx == 0)
                grp(g, m0[0:4], [R[1][0], R[1][1], R[1][2], R[1][3]])
                e("s_waitcnt lgkmcnt(4)")
                grp(g, m0[4:8], [R[2][0] + f[1], R[2][1], R[2][2], R[2][3] + f[2]])
            elif pat == 1:
                grp(g, m3, [R[0][0] + R[0][1], R[0][2] + R[0][3], R[0][4], R[0][5], R[0][6], R[0][7], a0,
                            f[0] if pending else ["s_nop 0"] + f[0]])
                e("s_waitcnt lgkmcnt(0)")
                grp(g, p1_mfma(0, idx == 0), [R[1][0], R[1][1], R[1][2], R[1][3], R[2][0] + f[1], R[2][1], R[2][2], R[2][3] + f[2]])
            else:
                grp(g, m3, [R[0][0] + R[0][1], R[0][2], R[0][3], R[0][4], R[0][5], R[0][6], R[0][7], f[0]])
                e("s_waitcnt lgkmcnt(2)")
                m0 = p1_mfma(0, idx == 0)
                grp(g, m0[0:4], [R[1][0], R[1][1], R[1][2], R[1][3]])
                e("s_waitcnt lgkmcnt(4)")
                grp(g, m0[4:8], [R[2][0] + f[1], R[2][1], R[2][2], R[2][3] + f[2]])
            e("s_waitcnt lgkmcnt(4)")
            if idx < 7:
                grp(g, p1_mfma(1, idx == 0), [R[2][4], R[2][5], R[2][6] + f[3], R[2][7], R[3][0] + a4, R[3][1] + f[4], R[3][2], R[3][3]])
                e("s_waitcnt lgkmcnt(4)")
                grp(g, p1_mfma(2, False), [f[5], [], [], f[6], [], [], f[7], []])
            else:
                grp(g, p1_mfma(1, False), [R[2][4] + f[3] + a4, R[2][5] + f[4], R[2][6] + f[5], R[2][7] + f[6], R[3][0] + f[7], R[3][1], R[3][2], R[3][3]])
            pending = True
        elif kind == 'c' and pat >= 5:
            R = [[[x] for x in p1_reads(p, k)] for k in range(4)]
            f = [list(x) for x in f]
            a0 = [x for x in f[0][:-1] if x != "s_nop 0"]
            a4 = [x for x in f[4][:-1] if x != "s_nop 0"]
            f[0], f[4] = f[0][-1:], f[4][-1:]
            rd = R[0] + R[1] + R[2] + R[3]
            NG = 32 if idx < 7 else 24
            tabs = {
                5: ([0, 0, 1, 1, 2, 3, 4, 5, 7, 8, 9, 10, 12, 13, 14, 15, 16, 17, 18, 19, 21, 22, 23, 24], [6, 11, 14, 17, 20, 23, 26, 29]),
                6: ([0, 0, 1, 1, 2, 2, 3, 4, 5, 6, 8, 9, 10, 11, 12, 13, 14, 15, 16, 17, 18, 19, 20, 21], [7, 10, 13, 16, 22, 24, 26, 28]),
                7: ([0, 0, 1, 1, 2, 3, 4, 5, 8, 9, 10, 11, 12, 13, 14, 15, 16, 17, 18, 19, 20, 21, 22, 23], [24, 25, 26, 27, 29, 30, 31, 31]),
                8: ([0, 0, 1, 1, 2, 3, 4, 5, 8, 9, 10, 11, 12, 13, 14, 15, 16, 17, 18, 19, 20, 21, 22, 23], [3, 7, 11, 15, 19, 23, 27, 31]),
            }
            rg, dg = tabs[pat]
            if idx == 7:
                rg = [min(x, 23) for x in rg]
                dg = [6, 9, 12, 15, 17, 19, 21, 23]
            gaps = [[] for _ in range(32)]
            for k in range(24):
                gaps[rg[k]] += rd[k]
            for k in range(8):
                gaps[dg[k]] += f[k]
            gaps[dg[0] - 1] += a0
            gaps[dg[4] - 1] += a4
            if not pending:
                gaps[dg[0]] = ["s_nop 0"] + gaps[dg[0]]
            mf = m3 + p1_mfma(0, idx == 0) + p1_mfma(1, idx == 0) + (p1_mfma(2, False) if idx < 7 else [])
            need = {8: 6, 12: 8, 16: 10, 20: 12, 24: 18, 28: 20}
            for n in range(NG):
                if n in need:
                    issued = sum(1 for k in range(24) if rg[k] < n)
                    assert issued >= need[n], (pat, n)
                    e(f"s_waitcnt lgkmcnt({issued - need[n]})")
                if mf[n]:
                    e(mf[n])
                g.es(gaps[n])
            pending = True
        elif kind == 'c' and pat == 2:
            R = [[[x] for x in p1_reads(p, k)] for k in range(4)]
            m2 = p1_mfma(2, False) if pending else [None] * 8
            grp(g, m2, R[0][0:7] + [R[0][7] + f[0]])
            grp(g, m3, R[1][0:4] + [f[1], [], f[2], []])
            e("s_waitcnt lgkmcnt(4)" if pending else "s_waitcnt lgkmcnt(4)")
            grp(g, p1_mfma(0, idx == 0), [R[2][0], R[2][1], R[2][2] + f[3], R[2][3], R[2][4], R[2][5], R[2][6] + f[4], R[2][7]])
            e("s_waitcnt lgkmcnt(8)")
            grp(g, p1_mfma(1, idx == 0), R[3][0:4] + [f[5], f[6], [], f[7]])
            pending = True
        else:
            T = w2_tr(idx, p)
            if pat == 2 and pending:
                g.es(p1_mfma(2, False))
            grp(g, m3, [T[0:2], T[2:4], T[4:6], T[6:8], T[8:10], T[10:12]])
            e("s_waitcnt lgkmcnt(4)")
            g.es(T[12:16])
            g.es(flat(f))
            pending = False
        if p == NONCE_POS:
            e(nonce_load())
    g.c(f"---- {tag} P1 tail")
    e("s_waitcnt lgkmcnt(4)")
    m2, m3 = p1_mfma(2, False), p1_mfma(3, False)
    g.es(m2[0:4])
    emit_nonce_check(g, tag)
    for k in range(3):
        e(f"s_mov_b32 s{S_T0+k}, {RHO*(k+1)}")
    g.es(m2[4:8])
    e("s_waitcnt lgkmcnt(0)")
    g.stamp("bar8")
    E0 = epi(0, 3) + epi(0, 2) + epi(0, 1) + epi(0, 0)
    g.es(m3[0:2])
    e("s_nop 2")
    grp(g, m3[2:8], [E0[0:3], E0[3:6], E0[6:9], E0[9:12], E0[12:15], E0[15:18]])
    g.es(E0[18:])
    g.es(epi(1, 3) + epi(1, 2) + epi(1, 1) + epi(1, 0))
    g.stamp("Hst")


def emit_flag(g):
    g.e(f"s_atomic_swap_x2 s[{S_NON}:{S_NON+1}], s[{S_FA}:{S_FA+1}], 0")
    g.stamp("flag")


def gen(o):
    global WX
    WX = o.wx
    g = G(o)
    e = g.e
    D = o.depth
    NB = o.nbuf
    L = V_LANE
    T = V_T
    g.lab(KNAME)
    g.stamp("entry")
    e("s_load_dwordx8 s[4:11], s[0:1], 0")
    e("s_load_dwordx4 s[12:15], s[0:1], 32")
    e(f"s_memrealtime s[{S_PA}:{S_PA+1}]")
    e("s_cmp_ge_u32 s2, 256")
    e("s_cbranch_scc1 L_end")
    e(f"v_lshrrev_b32 v{T}, 6, v0")
    e(f"v_and_b32 v{L}, 63, v0")
    e(f"s_and_b32 s{S_XCD}, s2, 7")
    e(f"v_readfirstlane_b32 s{S_WAVE}, v{T}")
    e(f"s_lshr_b32 s{S_I}, s2, 3")
    if o.cpf:
        e(f"s_cmp_lt_u32 s{S_I}, 31")
        e("s_cbranch_scc1 L_nocpf")
        e("s_getpc_b64 s[20:21]")
        g.lab("L_pc")
        e(f"v_lshlrev_b32 v{V_ACC}, 7, v0")
        e(f"v_mov_b32 v{V_ACC+3}, s21")
        e(f"v_add_co_u32 v{V_ACC+2}, vcc, s20, v{V_ACC}")
        e("s_nop 1")
        e(f"v_addc_co_u32 v{V_ACC+3}, vcc, 0, v{V_ACC+3}, vcc")
        e(f"v_cmp_gt_u32 vcc, L_code_end-L_pc, v{V_ACC}")
        e("s_and_saveexec_b64 s[22:23], vcc")
        e("s_cbranch_execz L_cpf_done")
        e(f"global_load_dword v{V_ACC+1}, v[{V_ACC+2}:{V_ACC+3}], off")
        g.lab("L_cpf_done")
        e("s_mov_b64 exec, s[22:23]")
        g.lab("L_nocpf")
    e(f"s_and_b32 s{S_Q}, s{S_I}, 3")
    e(f"s_lshr_b32 s{S_T1}, s{S_I}, 2")
    e(f"s_add_u32 s{S_T2}, s{S_Q}, s{S_T1}")
    e(f"s_lshl_b32 s{S_T2}, s{S_T2}, {o.rotsh}")
    e(f"s_and_b32 s{S_T3}, s{S_XCD}, 6")
    e(f"s_lshl_b32 s{S_T3}, s{S_T3}, 1")
    e(f"s_add_u32 s{S_U}, s{S_Q}, s{S_T3}")
    e(f"s_and_b32 s{S_T3}, s{S_XCD}, 1")
    e(f"s_mul_i32 s{S_T3}, s{S_T3}, 7")
    e(f"s_add_u32 s{S_SPIN}, s{S_T1}, s{S_T3}")
    e(f"s_lshl_b32 s{S_T0}, s{S_U}, 17")
    e(f"s_lshl_b32 s{S_T1}, s{S_SPIN}, 8")

    def kofs(t):
        e(f"s_add_u32 s{S_T3}, s{S_T2}, {t}")
        e(f"s_and_b32 s{S_T3}, s{S_T3}, 7")
        e(f"s_mul_i32 s{S_KW+t}, s{S_T3}, {64*3584}")
        e(f"s_lshl_b32 s{S_T3}, s{S_T3}, 7")
        e(f"s_add_u32 s{S_KX+t}, s{S_T3}, s{S_T0}")
        e(f"s_add_u32 s{S_KW+t}, s{S_KW+t}, s{S_T1}")
    kofs(0)
    kofs(1)
    e(f"s_lshl_b32 s{S_M0A}, s{S_WAVE}, 12")
    e(f"s_lshl_b32 s{S_M0W2}, s{S_WAVE}, 13")
    e(f"v_lshrrev_b32 v{T}, 4, v{L}")
    e(f"v_and_b32 v{T+1}, 15, v{L}")
    e(f"v_lshlrev_b32 v{T+2}, 1, v{T}")
    e(f"v_xor_b32 v{T+1}, v{T+1}, v{T+2}")
    e(f"v_lshlrev_b32 v{T+1}, 4, v{T+1}")
    e(f"s_lshl_b32 s{S_T3}, s{S_WAVE}, 4")
    e(f"v_add_u32 v{T+2}, s{S_T3}, v{T}")
    e(f"v_mul_u32_u24 v{T+2}, 3584, v{T+2}")
    e(f"v_add_u32 v{V_OW1}, v{T+1}, v{T+2}")
    e(f"v_xor_b32 v{T+1}, 128, v{T+1}")
    e(f"v_add_u32 v{T+1}, v{T+1}, v{T+2}")
    wi = (lambda j: 14336 * j - 2048 * (j & 1)) if WX else (lambda j: 13312 * j)
    e(f"v_add_u32 v{V_OW1+1}, {wi(1)}, v{V_OW1}")
    e(f"v_add_u32 v{V_OW1+2}, {wi(2)}, v{T+1}")
    e(f"v_add_u32 v{V_OW1+3}, {wi(3)}, v{T+1}")
    e(f"v_and_b32 v{T+1}, 7, v{L}")
    e(f"v_xor_b32 v{T+2}, v{T+1}, v{T}")
    e(f"v_lshlrev_b32 v{T+2}, 4, v{T+2}")
    e(f"v_lshrrev_b32 v{T+3}, 3, v{L}")
    e(f"s_lshl_b32 s{S_T3}, s{S_WAVE}, 15")
    e(f"v_lshl_add_u32 v{T+4}, v{T+3}, 10, s{S_T3}")
    e(f"v_add_u32 v{V_OX}, v{T+4}, v{T+2}")
    e(f"v_xor_b32 v{T+2}, 64, v{T+2}")
    e(f"v_add_u32 v{T+2}, v{T+4}, v{T+2}")
    xi = (lambda j: 8192 * j - 2048 * (j & 1)) if WX else (lambda j: 7168 * j)
    e(f"v_add_u32 v{V_OX+1}, {xi(1)}, v{T+2}")
    e(f"v_add_u32 v{V_OX+2}, {xi(2)}, v{V_OX}")
    e(f"v_add_u32 v{V_OX+3}, {xi(3)}, v{T+2}")
    e("s_waitcnt lgkmcnt(0)")
    g.stamp("karg")
    srd(g, S_W1, 6, 512 * 1792 * 2)
    if WX:
        e(f"s_sub_u32 s{S_X}, s4, 1024")
        e(f"s_subb_u32 s{S_X+1}, s5, 0")
        e(f"s_mov_b32 s{S_X+2}, {hex(2048 * 512 * 2 + 1024)}")
        e(f"s_mov_b32 s{S_X+3}, 0x20000")
    else:
        srd(g, S_X, 4, 2048 * 512 * 2)
    e(f"s_cmp_ge_u32 s{S_I}, 28")
    e("s_cbranch_scc1 L_early_idle")
    if o.ptouch == 2:
        A = V_EP
        e(f"s_cmp_gt_u32 s{S_WAVE}, 1")
        e("s_cbranch_scc1 L_pt_done")
        e(f"s_lshr_b32 s{S_U+1}, s{S_I}, 2")
        e(f"s_and_b32 s{S_U+2}, s{S_XCD}, 1")
        e(f"v_lshrrev_b32 v{A}, 1, v{L}")
        e(f"v_and_b32 v{A+1}, 1, v{L}")
        e(f"s_cmp_eq_u32 s{S_WAVE}, 1")
        e("s_cbranch_scc1 L_pt_w1")
        e(f"v_lshlrev_b32 v{A+1}, 9, v{A+1}")
        e(f"v_lshl_add_u32 v{A}, v{A}, 10, v{A+1}")
        e(f"s_mul_i32 s{S_U+1}, s{S_U+1}, 9")
        e(f"s_lshl_b32 s{S_U+2}, s{S_U+2}, 6")
        e(f"s_add_u32 s{S_U+1}, s{S_U+1}, s{S_U+2}")
        e(f"s_lshl_b32 s{S_U+1}, s{S_U+1}, 10")
        e(f"s_add_u32 s{S_U+1}, s{S_U+1}, s{S_T0}")
        e("s_mov_b64 exec, 0xfffff")
        e(f"buffer_load_dword v{A+2}, v{A}, s[{S_X}:{S_X+3}], s{S_U+1} offen offset:256")
        e("s_branch L_pt_x")
        g.lab("L_pt_w1")
        e(f"v_lshrrev_b32 v{A+2}, 3, v{L}")
        e(f"v_and_b32 v{A}, 3, v{A}")
        e(f"v_lshl_add_u32 v{A}, v{A+2}, 8, v{A}")
        e(f"v_mul_u32_u24 v{A}, 3584, v{A}")
        e(f"v_lshl_add_u32 v{A}, v{A+1}, 7, v{A}")
        e(f"s_lshl_b32 s{S_U+1}, s{S_U}, 2")
        e(f"s_add_u32 s{S_U+1}, s{S_U+1}, 128")
        e(f"s_mul_i32 s{S_U+1}, s{S_U+1}, 3584")
        e(f"s_add_u32 s{S_U+1}, s{S_U+1}, s{S_T1}")
        e("s_mov_b64 exec, 0xffff")
        e(f"buffer_load_dword v{A+2}, v{A}, s[{S_W1}:{S_W1+3}], s{S_U+1} offen")
        g.lab("L_pt_x")
        e("s_mov_b64 exec, -1")
        g.lab("L_pt_done")
    g.es(flat(dma_c(0, 0)))
    if o.early1 < 0:
        e("s_barrier")
    g.es(flat(dma_c(1, 1)[:abs(o.early1)]))
    g.stamp("dma0")
    g.lab("L_setup2")
    srd(g, S_DBG, 12, 256)
    e(f"v_mov_b32 v{V_ZERO}, 0")
    e(f"s_or_b32 s{S_T3}, s2, s{S_WAVE}")
    e(f"s_cmp_lg_u32 s{S_T3}, 0")
    e("s_cbranch_scc1 L_nonce_done")
    e(f"s_or_b32 s{S_PA+1}, s{S_PA+1}, 0x80000000")
    e(f"s_atomic_swap_x2 s[{S_PA}:{S_PA+1}], s[12:13], 0")
    e("s_waitcnt lgkmcnt(0)")
    g.lab("L_nonce_done")
    for t in range(2, 8):
        kofs(t)
    srd(g, S_W2, 8, 512 * 1792 * 2)
    srd(g, S_OUT, 10, 2048 * 512 * 2)
    if o.hoff:
        e(f"s_add_u32 s14, s14, {hex(o.hoff)}")
        e(f"s_addc_u32 s15, s15, 0")
    srd(g, S_WS, 14, 0x10000000 - o.hoff)
    e(f"s_lshr_b32 s{S_T0}, s{S_WAVE}, 1")
    e(f"s_and_b32 s{S_T1}, s{S_WAVE}, 1")
    e(f"s_lshl_b32 s{S_T2}, s{S_U}, 1")
    e(f"s_add_u32 s{S_T2}, s{S_T2}, s{S_T0}")
    e(f"s_lshl_b32 s{S_T3}, s{S_SPIN}, 1")
    e(f"s_add_u32 s{S_T3}, s{S_T3}, s{S_T1}")
    e(f"s_mul_i32 s4, s{S_T3}, 37")
    e(f"s_lshr_b32 s4, s4, 8")
    e(f"s_mul_i32 s5, s4, 7")
    e(f"s_sub_u32 s5, s{S_T3}, s5")
    e(f"s_lshl_b32 s6, s{S_T2}, 2")
    e(f"s_add_u32 s4, s4, s6")
    e(f"s_lshl_b32 s4, s4, 7")
    e(f"s_lshl_b32 s5, s5, 3")
    e(f"s_add_u32 s4, s4, s5")
    e(f"s_add_u32 s4, s4, {hex(FLAGS_OFF)}")
    e(f"s_add_u32 s{S_FA}, s14, s4")
    e(f"s_addc_u32 s{S_FA+1}, s15, 0")
    e(f"s_mul_i32 s{S_T2}, s{S_T2}, {4*RHO}")
    e(f"s_lshl_b32 s{S_T3}, s{S_T3}, 11")
    e(f"s_add_u32 s{S_T2}, s{S_T2}, s{S_T3}")
    e(f"v_lshl_add_u32 v{V_HST}, v{L}, 4, s{S_T2}")
    e(f"v_and_b32 v{T+2}, 15, v{L}")
    e(f"v_lshrrev_b32 v{T+5}, 1, v{T+2}")
    e(f"v_xor_b32 v{T+5}, v{T+5}, v{T}")
    e(f"v_lshlrev_b32 v{T+5}, 4, v{T+5}")
    if WX:
        e(f"v_lshl_add_u32 v{T+5}, v{T+1}, 7, v{T+5}")
        e(f"v_lshrrev_b32 v{T+6}, 3, v{T+2}")
        e(f"v_lshl_add_u32 v{T+5}, v{T+6}, 11, v{T+5}")
        e(f"s_lshl_b32 s{S_T2}, s{S_T0}, 14")
        e(f"s_add_u32 s{S_T2}, s{S_T2}, 1024")
    else:
        e(f"v_lshl_add_u32 v{T+5}, v{T+2}, 7, v{T+5}")
        e(f"s_lshl_b32 s{S_T2}, s{S_T0}, 13")
    e(f"v_add_u32 v{V_AX}, s{S_T2}, v{T+5}")
    e(f"v_xor_b32 v{V_AX+1}, 64, v{V_AX}")
    for z in (1, 2):
        for s in range(2):
            e(f"v_add_u32 v{V_AX+2*z+s}, {65536*z}, v{V_AX+s}")
    e(f"v_xor_b32 v{T+5}, v{T+1}, v{T}")
    e(f"v_lshlrev_b32 v{T+5}, 4, v{T+5}")
    e(f"v_lshl_add_u32 v{T+5}, v{T+2}, 8, v{T+5}")
    e(f"v_add_u32 v{V_RW}, s{S_M0W2}, v{T+5}")
    e(f"v_xor_b32 v{V_RW+1}, 64, v{V_RW}")
    e(f"s_lshl_b32 s{S_T2}, s{S_WAVE}, 2")
    e(f"v_add_u32 v{T+5}, s{S_T2}, v{T}")
    e(f"v_and_b32 v{T+6}, 7, v{T+5}")
    e(f"v_xor_b32 v{T+6}, v{T+6}, v{T+2}")
    e(f"v_lshlrev_b32 v{T+6}, 4, v{T+6}")
    e(f"v_lshl_add_u32 v{V_RR}, v{T+5}, 8, v{T+6}")
    e(f"v_lshlrev_b32 v{T+6}, 3, v{T+2}")
    e(f"v_lshl_add_u32 v{V_OUT}, v{T+5}, 10, v{T+6}")
    e(f"v_bfe_u32 v{T+2}, v{L}, 2, 2")
    e(f"v_and_b32 v{T+4}, 3, v{L}")
    e(f"v_lshlrev_b32 v{T+4}, 3, v{T+4}")
    e(f"v_and_b32 v{T+5}, 1, v{T}")
    e(f"v_lshl_add_u32 v{T+5}, v{T+5}, 2, v{T+2}")
    e(f"s_lshl_b32 s{S_T2}, s{S_T1}, 2")
    e(f"v_xor_b32 v{T+5}, s{S_T2}, v{T+5}")
    e(f"v_lshl_add_u32 v{T+5}, v{T+5}, 5, v{T+4}")
    e(f"v_lshl_add_u32 v{T+6}, v{T}, {4 if WX else 3}, v{T+2}")
    e(f"v_lshl_add_u32 v{V_AW1}, v{T+6}, 8, v{T+5}")
    for p in range(1, 4):
        e(f"v_xor_b32 v{V_AW1+p}, {32*p}, v{V_AW1}")
    for z in (1, 2):
        for p in range(4):
            e(f"v_add_u32 v{V_AW1+4*z+p}, {65536*z}, v{V_AW1+p}")
    e(f"v_lshl_add_u32 v{T+6}, v{T}, 2, v{T+2}")
    e(f"v_bfe_u32 v{T+5}, v{T+6}, 1, 2")
    e(f"v_lshl_add_u32 v{T+5}, v{T+5}, 5, v{T+4}")
    e(f"v_lshl_add_u32 v{T+5}, v{T+6}, 7, v{T+5}")
    e(f"v_add_u32 v{V_AW2}, s{S_M0W2}, v{T+5}")
    for p in range(1, 4):
        e(f"v_xor_b32 v{V_AW2+p}, {32*p}, v{V_AW2}")
    for z in (1, 2):
        for p in range(4):
            e(f"v_add_u32 v{V_AW2+4*z+p}, {65536*z}, v{V_AW2+p}")
    e(f"s_lshl_b32 s5, s{S_XCD}, 2")
    if o.el:
        e(f"s_and_b32 s4, s{S_Q}, 1")
        e(f"s_xor_b32 s4, s4, 1")
        e(f"s_lshl_b32 s4, s4, 1")
        e(f"s_add_u32 s5, s5, s4")
        e(f"s_lshr_b32 s4, s{S_Q}, 1")
        e(f"s_add_u32 s{S_T0}, s4, s5")
    else:
        e(f"s_add_u32 s{S_T0}, s{S_Q}, s5")
    e(f"s_lshr_b32 s4, s{S_I}, 2")
    e(f"s_cmp_ge_u32 s4, 3")
    e(f"s_addc_u32 s{S_T1}, s4, 0")
    e(f"s_cmp_eq_u32 s4, 7")
    e(f"s_cselect_b32 s{S_T1}, 3, s{S_T1}")
    e(f"s_lshr_b32 s4, s{S_T1}, 1")
    if o.rq == 1:
        e(f"s_add_u32 s4, s4, s{S_Q}")
    elif o.rq == 2:
        e(f"s_and_b32 s5, s{S_Q}, 1")
        e(f"s_add_u32 s4, s4, s5")
    elif o.rq == 3:
        e(f"s_and_b32 s5, s{S_Q}, 1")
        e(f"s_lshl_b32 s5, s5, 1")
        e(f"s_add_u32 s4, s4, s5")
    e(f"s_and_b32 s{S_T2}, s4, 3")
    e(f"s_and_b32 s{S_QROT}, s{S_T1}, {o.qmask}")
    e(f"s_mul_i32 s{S_T3}, s{S_WAVE}, 7")
    for b in range(7):
        if (o.el or o.i6) and b < 4:
            e(f"s_add_u32 s5, s{S_T2}, {b}")
            e(f"s_and_b32 s5, s5, 3")
            e(f"s_add_u32 s5, s5, s{S_T3}")
            e(f"s_add_u32 s5, s5, 2")
        elif (o.el or o.i6) and b == 4:
            e(f"s_add_u32 s5, s{S_T3}, 6")
        elif b < 5:
            e(f"s_add_u32 s5, s{S_T2}, {b}")
            e(f"s_cmp_ge_u32 s5, 5")
            e(f"s_cselect_b32 s6, -3, 2")
            e(f"s_add_u32 s5, s5, s6")
            e(f"s_add_u32 s5, s5, s{S_T3}")
        else:
            e(f"s_add_u32 s5, s{S_T3}, {b-5}")
        e(f"s_lshl_b32 s{S_UW+b}, s5, 16")
        e(f"s_lshl_b32 s{S_U+b}, s5, 11")
    e(f"v_lshlrev_b32 v{T+2}, 1, v{T}")
    e(f"v_xor_b32 v{T+2}, v{T+1}, v{T+2}")
    e(f"v_lshlrev_b32 v{T+2}, 4, v{T+2}")
    e(f"v_lshl_add_u32 v{T+2}, v{T+3}, 10, v{T+2}")
    e(f"s_lshl_b32 s{S_T2}, s{S_T1}, 7")
    e(f"v_add_u32 v{V_OW2}, s{S_T2}, v{T+2}")
    for j in range(1, 4):
        e(f"v_add_u32 v{V_OW2+j}, {7168*j}, v{V_OW2}")
    e(f"s_lshl_b32 s{S_T3}, s{S_T0}, 16")
    e(f"s_add_u32 s{S_T2}, s{S_T2}, s{S_T3}")
    e(f"v_add_u32 v{V_OUT}, s{S_T2}, v{V_OUT}")
    e(f"s_lshl_b32 s{S_T2}, s{S_T0}, 2")
    for Q in range(4):
        e(f"s_add_u32 s4, s{S_QROT}, {Q}")
        e(f"s_and_b32 s4, s4, 3")
        e(f"s_add_u32 s4, s4, s{S_T2}")
        e(f"s_mul_i32 s4, s4, {RHO}")
        e(f"v_lshl_add_u32 v{V_H+Q}, v{L}, 4, s4")
    e(f"s_add_u32 s{S_T2}, s{S_T2}, s{S_WAVE}")
    e(f"s_lshl_b32 s{S_T2}, s{S_T2}, 7")
    e(f"s_add_u32 s{S_T2}, s{S_T2}, {hex(FLAGS_OFF)}")
    e(f"s_add_u32 s{S_PA}, s14, s{S_T2}")
    e(f"s_addc_u32 s{S_PA+1}, s15, 0")
    e(f"s_load_dword s10, s[{S_PA}:{S_PA+1}], 0 glc")
    e(f"s_cmp_ge_u32 s{S_I}, 28")
    e("s_cbranch_scc1 L_idle")
    if o.tlb:
        e("s_mov_b64 exec, 1")
        if o.tlb & 1:
            e(f"buffer_load_dword v{V_EP}, v{V_HST}, s[{S_WS}:{S_WS+3}], 0 offen sc1")
        if o.tlb & 2:
            e(f"buffer_load_dword v{V_EP+1}, v{V_OUT}, s[{S_OUT}:{S_OUT+3}], 0 offen sc1")
        e("s_mov_b64 exec, -1")
    g.stamp("setup")
    rest = dma_c(1, 1)[abs(o.early1):]
    if o.early1 % 4:
        rest[0] = [f"s_add_u32 m0, s{S_M0W2 if WX else S_M0A}, {slot_base(1)}", "s_nop 0"] + rest[0]
    g.es(flat(rest))

    def hload(i):
        Q, p = divmod(i, 14)
        b, kp = divmod(p, 2)
        d = V_HR + 4 * (i % NB)
        return f"buffer_load_dwordx4 v[{d}:{d+3}], v{V_H+Q}, s[{S_WS}:{S_WS+3}], s{S_U+b} offen offset:{kp*1024} sc1"

    def hinit():
        for i in range(D):
            e(hload(i))
            if o.stage and (i + 1) % o.stage == 0 and i + 1 < D:
                e("s_barrier")

    def p2_mfma(i):
        Q, p = divmod(i, 14)
        h = V_HR + 4 * (i % NB)
        r = []
        for nu in (range(4) if (i % 2 == 0 and not o.nosnake) else range(3, -1, -1)):
            a = V_ACC + (Q * 4 + nu) * 4
            w = (p * 4 + nu) * 4
            c = "0" if p == 0 else f"v[{a}:{a+3}]"
            r.append(f"{MF} v[{a}:{a+3}], a[{w}:{w+3}], v[{h}:{h+3}], {c}")
        return r

    def producer(tag, stream):
        emit_p1(g, tag, stream)
        e("s_barrier")
        last = stream.index(('c', 7))
        it = [(stream[p][1], p) for p in range(last + 1, 15)]
        n = len(it)
        np_ = o.npre
        g.es(flat(dma_w(*it[np_])))
        for k in range(np_):
            e(f"s_waitcnt vmcnt({8*(np_-1-k)+16}) lgkmcnt(4)")
            emit_tr(g, *it[k])
        e("s_waitcnt vmcnt(8) lgkmcnt(0)")
        emit_flag(g)
        g.es(flat(dma_w(*it[np_ + 1])))
        k = np_
        while k + 2 < n:
            dm = dma_w(*it[k + 2])
            if o.apoll >= 0 and k + 3 == n:
                dm = dm[:o.apoll] + [[poll_load()]] + dm[o.apoll:]
            g.es(flat(dm))
            if n - k == o.pollk:
                break
            e("s_waitcnt vmcnt(16) lgkmcnt(4)")
            emit_tr(g, *it[k])
            k += 1
        g.stamp("poll1")
        emit_poll(g, tag, o.apoll >= 0)
        g.stamp("ready")
        if o.rbar:
            e("s_barrier")
        hinit()
        while k < n:
            e(f"s_waitcnt vmcnt({D+8*(n-1-k)}) lgkmcnt(4)")
            if k == n - 1:
                g.stamp("wl6")
            emit_tr(g, *it[k])
            k += 1

    C = [('c', t) for t in range(8)]
    W = [('w', b) for b in {0: (5, 6, 1, 2, 3, 4), 1: (5, 6, 4, 1, 2, 3), 2: (5, 6, 1, 2, 3, 4), 3: (4, 5, 6, 1, 2, 3)}[o.i6]]
    if o.ins2:
        e(f"s_bitcmp1_b32 s{S_I}, 0")
        e("s_cbranch_scc1 L_path2")
    if o.el:
        producer("U", C + [('w', b) for b in (5, 6, 0, 1, 3, 2, 4)])
    else:
        producer("U", C[:o.ins] + [('w', 0)] + C[o.ins:] + W)
    g.lab("L_p2")

    def img(Q):
        return 32768 * (Q >> 1) + 4096 * (Q & 1)

    def red_write(Q):
        return [f"ds_write_b128 v{V_RW+(nu&1)}, v[{V_ACC+(Q*4+nu)*4}:{V_ACC+(Q*4+nu)*4+3}] offset:{img(Q) + 128*(nu>>1)}"
                for nu in range(4)]

    def red_read(Q):
        return [f"ds_read_b128 v[{V_RD+4*w}:{V_RD+4*w+3}], v{V_RR} offset:{img(Q) + 8192*w}" for w in range(4)]

    def red_sum(Q):
        r = []
        for j in range(4):
            r.append(f"v_add_f32 v{V_RD+j}, v{V_RD+j}, v{V_RD+4+j}")
        for j in range(4):
            r.append(f"v_add_f32 v{V_RD+8+j}, v{V_RD+8+j}, v{V_RD+12+j}")
        for j in range(4):
            r.append(f"v_add_f32 v{V_RD+j}, v{V_RD+j}, v{V_RD+8+j}")
        for j in range(2):
            r.append(f"v_cvt_pk_bf16_f32 v{V_RES+2*Q+j}, v{V_RD+2*j}, v{V_RD+2*j+1}")
        return r

    def out_store(Q):
        return f"buffer_store_dwordx2 v[{V_RES+2*Q}:{V_RES+2*Q+1}], v{V_OUT}, s[{S_OUT}:{S_OUT+3}], s{S_T0+Q} offen {o.outflag if Q < 3 else o.lastflag}"

    extra = {}

    def put(i, l):
        extra.setdefault(i, []).extend(l)
    for Q in range(3):
        b = 14 * (Q + 1)
        w = red_write(Q)
        put(b + 1, w[0:2])
        put(b + 2, w[2:4])
        if o.redmode == 0:
            put(b + 4, ["s_waitcnt lgkmcnt(0)", "s_barrier"])
            put(b + 5, red_read(Q))
            s = red_sum(Q)
            put(b + 7, ["s_waitcnt lgkmcnt(0)"] + s[0:3])
            put(b + 8, s[3:7])
            put(b + 9, s[7:11])
            put(b + 10, s[11:14])
            if o.earlyst:
                assert 56 - D <= 53
                put(max(56 - D, b + 11), [out_store(Q)])
    if o.redmode == 1:
        put(45, ["s_waitcnt lgkmcnt(0)", "s_barrier"] + red_read(0))
        for Q in range(3):
            b = 47 + 3 * Q
            s = red_sum(Q)
            put(b, ["s_waitcnt lgkmcnt(0)"] + s[0:6])
            put(b + 1, s[6:12])
            put(b + 2 if Q == 2 else b + 1, s[12:14] + (red_read(Q + 1) if Q < 2 else []))
            if o.earlyst:
                put(b + 2, [out_store(Q)])
    for Q in range(4):
        put(4 + Q, [f"s_add_u32 s{S_T0+Q}, s{S_QROT}, {Q}", f"s_and_b32 s{S_T0+Q}, s{S_T0+Q}, 3",
                    f"s_lshl_b32 s{S_T0+Q}, s{S_T0+Q}, 14"])
    for i in range(56):
        issued = min(56, i + D)
        nst = sum(1 for k in range(i) for x in extra.get(k, []) if x.startswith("buffer_store"))
        wait = f"s_waitcnt vmcnt({issued - i - 1 + nst})"
        if o.pairwait and 2 <= i < 56 - D - 1:
            wait = f"s_waitcnt vmcnt({issued - i - 2 + nst})" if i % 2 == 0 else None
        if i == (1 if (o.el or o.i6) else 3):
            wait += " lgkmcnt(0)"
        if wait:
            e(wait)
        m = p2_mfma(i)
        x = extra.get(i, [])
        if i + D < 56:
            n3 = (len(x) + 2) // 3
            gaps = [[hload(i + D)], x[0:n3], x[n3:2*n3], x[2*n3:]]
        else:
            n4 = (len(x) + 3) // 4
            gaps = [x[0:n4], x[n4:2*n4], x[2*n4:3*n4], x[3*n4:]]
        grp(g, m, gaps)
        g.stamp(f"h{i}")
    g.stamp("loopend")
    w = red_write(3)[::-1]
    e("s_nop 4")
    g.es(w)
    e("s_waitcnt lgkmcnt(0)")
    e("s_barrier")
    g.es(red_read(3))
    if not o.earlyst:
        for Q in range(3):
            e(out_store(Q))
    if o.fasttail:
        R = V_RD
        e("s_waitcnt lgkmcnt(2)")
        e(f"v_pk_add_f32 v[{R}:{R+1}], v[{R}:{R+1}], v[{R+4}:{R+5}]")
        e(f"v_pk_add_f32 v[{R+2}:{R+3}], v[{R+2}:{R+3}], v[{R+6}:{R+7}]")
        e("s_waitcnt lgkmcnt(0)")
        e(f"v_pk_add_f32 v[{R+8}:{R+9}], v[{R+8}:{R+9}], v[{R+12}:{R+13}]")
        e(f"v_pk_add_f32 v[{R+10}:{R+11}], v[{R+10}:{R+11}], v[{R+14}:{R+15}]")
        e(f"v_pk_add_f32 v[{R}:{R+1}], v[{R}:{R+1}], v[{R+8}:{R+9}]")
        e(f"v_pk_add_f32 v[{R+2}:{R+3}], v[{R+2}:{R+3}], v[{R+10}:{R+11}]")
        g.es(red_sum(3)[12:14])
    else:
        e("s_waitcnt lgkmcnt(0)")
        g.es(red_sum(3))
    e(out_store(3))
    if o.stamps:
        e("s_waitcnt vmcnt(0)")
        g.stamp("final")
        e("s_waitcnt lgkmcnt(0)")
        if o.probe:
            pa, pb, pwg = [int(x) for x in o.probe.split(",")]
            if pwg >= 0:
                e(f"s_cmp_lg_u32 s2, {pwg}")
                e("s_cbranch_scc1 L_end")
            if pwg == -2:
                e(f"s_cmp_ge_u32 s{S_I}, 28")
                e("s_cbranch_scc1 L_end")
            e(f"s_sub_u32 s{S_T0}, s{S_ST+2*pb}, s{S_NON if pa == 9 else S_ST+2*pa}")
            e(f"s_min_u32 s{S_T0}, s{S_T0}, 5000")
            e(f"s_mul_i32 s{S_T0}, s{S_T0}, 10")
            e(f"s_add_u32 s{S_T0}, s{S_T0}, s{S_ST+16}")
            g.lab("L_probe")
            e(f"s_memrealtime s[4:5]")
            e("s_waitcnt lgkmcnt(0)")
            e(f"s_sub_u32 s{S_T1}, s4, s{S_T0}")
            e(f"s_cmp_lt_i32 s{S_T1}, 0")
            e("s_cbranch_scc1 L_probe")
            e("s_endpgm")
        for n in range(9):
            e(f"v_mov_b32 v{96+n}, s{S_ST+2*n}")
        e(f"s_lshl_b32 s{S_T0}, s2, 8")
        e(f"s_lshl_b32 s{S_T1}, s{S_WAVE}, 6")
        e(f"s_add_u32 s{S_T0}, s{S_T0}, s{S_T1}")
        e(f"s_add_u32 s{S_T0}, s{S_T0}, {hex(STAMP_OFF)}")
        e("v_mov_b32 v108, 0")
        e("s_mov_b64 exec, 1")
        for n in range(3):
            e(f"buffer_store_dwordx4 v[{96+4*n}:{99+4*n}], v108, s[{S_WS}:{S_WS+3}], s{S_T0} offen offset:{16*n} sc1")
    g.lab("L_end")
    e("s_endpgm")

    g.lab("L_early_idle")
    def _pt():
        if o.ptouch == 1:
            e(f"v_lshrrev_b32 v{V_ACC+4}, 2, v{L}")
            e(f"v_and_b32 v{V_ACC+5}, 1, v{L}")
            e(f"v_bfe_u32 v{V_ACC+6}, v{L}, 1, 1")
            e(f"v_lshl_add_u32 v{V_ACC+5}, v{V_ACC+6}, 2, v{V_ACC+5}")
            e(f"v_lshlrev_b32 v{V_ACC+5}, 7, v{V_ACC+5}")
            e(f"v_lshl_add_u32 v{V_ACC+4}, v{V_ACC+4}, 10, v{V_ACC+5}")
            e(f"s_and_b32 s{S_U+1}, s{S_XCD}, 6")
            e(f"s_lshl_b32 s{S_U+1}, s{S_U+1}, 1")
            e(f"s_add_u32 s{S_U+1}, s{S_U+1}, s{S_Q}")
            e(f"s_lshl_b32 s{S_U+1}, s{S_U+1}, 1")
            e(f"s_and_b32 s{S_U+2}, s{S_XCD}, 1")
            e(f"s_add_u32 s{S_U+1}, s{S_U+1}, s{S_U+2}")
            e(f"s_lshl_b32 s{S_U+1}, s{S_U+1}, 2")
            e(f"s_add_u32 s{S_U+1}, s{S_U+1}, s{S_WAVE}")
            e(f"s_lshl_b32 s{S_U+1}, s{S_U+1}, 14")
            e(f"v_mul_u32_u24 v{V_ACC+5}, 4682, v{L}")
            e(f"v_lshrrev_b32 v{V_ACC+5}, 16, v{V_ACC+5}")
            e(f"v_mul_u32_u24 v{V_ACC+6}, 14, v{V_ACC+5}")
            e(f"v_sub_u32 v{V_ACC+6}, v{L}, v{V_ACC+6}")
            e(f"v_lshlrev_b32 v{V_ACC+6}, 7, v{V_ACC+6}")
            e(f"v_and_b32 v{V_ACC+7}, 1, v{V_ACC+5}")
            e(f"v_lshrrev_b32 v{V_ACC+5}, 1, v{V_ACC+5}")
            e(f"v_lshl_add_u32 v{V_ACC+5}, v{V_ACC+5}, 8, v{V_ACC+7}")
            e(f"v_mul_u32_u24 v{V_ACC+5}, 3584, v{V_ACC+5}")
            e(f"v_add_u32 v{V_ACC+5}, v{V_ACC+5}, v{V_ACC+6}")
            e(f"s_mul_i32 s{S_U+2}, s{S_U+2}, 1792")
            e(f"s_lshr_b32 s{S_U+3}, s{S_XCD}, 1")
            e(f"s_lshl_b32 s{S_U+3}, s{S_U+3}, 2")
            e(f"s_add_u32 s{S_U+3}, s{S_U+3}, s{S_Q}")
            e(f"s_lshl_b32 s{S_U+3}, s{S_U+3}, 2")
            e(f"s_add_u32 s{S_U+3}, s{S_U+3}, s{S_WAVE}")
            e(f"s_lshl_b32 s{S_U+3}, s{S_U+3}, 1")
            e(f"s_add_u32 s{S_U+3}, s{S_U+3}, 128")
            e(f"s_mul_i32 s{S_U+3}, s{S_U+3}, 3584")
            e(f"s_add_u32 s{S_U+2}, s{S_U+2}, s{S_U+3}")
            xo = 1024 if WX else 0
            def tX(off, r):
                e(f"buffer_load_dword v{V_ACC+r}, v{V_ACC+4}, s[{S_X}:{S_X+3}], s{S_U+1} offen offset:{off + xo}")
            def tW23():
                e(f"s_mov_b32 exec_hi, 0xffffff")
                e(f"buffer_load_dword v{V_ACC+60}, v{V_ACC+5}, s[{S_W1}:{S_W1+3}], s{S_U+2} offen")
                e(f"s_mov_b32 exec_hi, -1")
            def tW1():
                B = V_ACC + 10
                e(f"v_cmp_lt_u32 vcc, 13, v{L}")
                e(f"v_lshlrev_b32 v{B+1}, 7, v{L}")
                e(f"v_mov_b32 v{B+2}, {256*3584 - 14*128}")
                e(f"v_cndmask_b32 v{B+2}, 0, v{B+2}, vcc")
                e(f"v_add_u32 v{B+1}, v{B+1}, v{B+2}")
                e(f"s_and_b32 s{S_U+4}, s{S_XCD}, 1")
                e(f"s_mul_i32 s{S_U+4}, s{S_U+4}, 1792")
                e(f"s_lshl_b32 s{S_U+3}, s{S_U}, 2")
                e(f"s_add_u32 s{S_U+3}, s{S_U+3}, s{S_WAVE}")
                e(f"s_add_u32 s{S_U+3}, s{S_U+3}, 64")
                e(f"s_mul_i32 s{S_U+3}, s{S_U+3}, 3584")
                e(f"s_add_u32 s{S_U+4}, s{S_U+4}, s{S_U+3}")
                e("s_mov_b64 exec, 0xfffffff")
                e(f"buffer_load_dword v{V_ACC+58}, v{B+1}, s[{S_W1}:{S_W1+3}], s{S_U+4} offen")
                e("s_mov_b64 exec, -1")
            for tok in o.tord.split(","):
                {"x01": lambda: tX(0, 59), "x23": lambda: tX(256, 61), "w23": tW23, "w1": tW1}[tok]()
        if o.ptouch == 2:
            B = V_ACC + 4
            e(f"v_lshrrev_b32 v{B}, 1, v{L}")
            e(f"v_and_b32 v{B+1}, 1, v{L}")
            e(f"v_lshlrev_b32 v{B+1}, 9, v{B+1}")
            e(f"v_lshl_add_u32 v{B}, v{B}, 10, v{B+1}")
            e(f"s_lshl_b32 s{S_U+1}, s{S_U}, 1")
            e(f"s_and_b32 s{S_U+2}, s{S_XCD}, 1")
            e(f"s_add_u32 s{S_U+1}, s{S_U+1}, s{S_U+2}")
            e(f"s_lshl_b32 s{S_U+1}, s{S_U+1}, 2")
            e(f"s_add_u32 s{S_U+1}, s{S_U+1}, s{S_WAVE}")
            e(f"s_lshl_b32 s{S_U+1}, s{S_U+1}, 14")
            e(f"v_cmp_lt_u32 vcc, 13, v{L}")
            e(f"v_lshlrev_b32 v{B+1}, 7, v{L}")
            e(f"v_mov_b32 v{B+2}, {256*3584 - 14*128}")
            e(f"v_cndmask_b32 v{B+2}, 0, v{B+2}, vcc")
            e(f"v_add_u32 v{B+1}, v{B+1}, v{B+2}")
            e(f"s_mul_i32 s{S_U+2}, s{S_U+2}, 1792")
            e(f"s_lshl_b32 s{S_U+3}, s{S_U}, 2")
            e(f"s_add_u32 s{S_U+3}, s{S_U+3}, s{S_WAVE}")
            e(f"s_add_u32 s{S_U+3}, s{S_U+3}, 192")
            e(f"s_mul_i32 s{S_U+3}, s{S_U+3}, 3584")
            e(f"s_add_u32 s{S_U+2}, s{S_U+2}, s{S_U+3}")
            e("s_mov_b64 exec, 0xfffffff")
            e(f"buffer_load_dword v{V_ACC+60}, v{B+1}, s[{S_W1}:{S_W1+3}], s{S_U+2} offen")
            e("s_mov_b32 exec_lo, -1")
            e(f"buffer_load_dword v{V_ACC+61}, v{B}, s[{S_X}:{S_X+3}], s{S_U+1} offen offset:384")
            e("s_mov_b64 exec, -1")
    def _wt():
        if o.touch:
            srd(g, S_W2, 8, 512 * 1792 * 2)
            e(f"v_lshlrev_b32 v{V_ACC+8}, 7, v{L}")
            e(f"s_lshl_b32 s{S_U+1}, s{S_Q}, 3")
            e(f"s_add_u32 s{S_U+1}, s{S_U+1}, s{S_XCD}")
            e(f"s_lshl_b32 s{S_U+1}, s{S_U+1}, 2")
            e(f"s_add_u32 s{S_U+1}, s{S_U+1}, s{S_WAVE}")
            e(f"s_mul_i32 s{S_U+1}, s{S_U+1}, {14*1024}")
            e(f"s_add_u32 s{S_U+2}, s{S_U+1}, 8192")
            e(f"buffer_load_dword v{V_ACC+62}, v{V_ACC+8}, s[{S_W2}:{S_W2+3}], s{S_U+1} offen")
            e(f"s_mov_b32 exec_hi, 0xffff")
            e(f"buffer_load_dword v{V_ACC+63}, v{V_ACC+8}, s[{S_W2}:{S_W2+3}], s{S_U+2} offen")
            e(f"s_mov_b32 exec_hi, -1")
    if o.wfirst:
        _wt()
        _pt()
    else:
        _pt()
        _wt()
    e("s_branch L_setup2")

    g.lab("L_idle")
    seq = [0, 5, 6, 1, 2, 3, 4]
    if o.idlerot:
        e(f"s_mul_i32 s4, s{S_WAVE}, 7")
        for n, b in enumerate(seq):
            e(f"s_lshl_b32 s5, s{S_Q}, 1")
            e(f"s_add_u32 s5, s5, {n}")
            e(f"s_cmp_ge_u32 s5, 7")
            e(f"s_cselect_b32 s6, 7, 0")
            e(f"s_sub_u32 s5, s5, s6")
            e(f"s_add_u32 s5, s5, s4")
            e(f"s_lshl_b32 s{S_UW+b}, s5, 16")
            e(f"s_lshl_b32 s{S_U+b}, s5, 11")
    e(nonce_load())
    g.es(flat(dma_w(seq[0], 0)))
    g.es(flat(dma_w(seq[1], 1)))
    for k in range(7):
        if k + 2 < 7:
            g.es(flat(dma_w(seq[k + 2], k + 2)))
        e(f"s_waitcnt vmcnt({8*min(2, 6-k)}) lgkmcnt(4)")
        emit_tr(g, seq[k], k)
    g.stamp("wl6")
    emit_nonce_check(g, "i")
    emit_poll(g, "I")
    g.stamp("ready")
    if o.rbar:
        e("s_barrier")
    hinit()
    e("s_branch L_p2")

    if o.ins2:
        g.lab("L_path2")
        if o.el:
            producer("V", C[:o.ins] + [('w', 0)] + C[o.ins:o.ins2] + [('w', 2)] + C[o.ins2:] + [('w', b) for b in (5, 6, 1, 3, 4)])
        else:
            producer("V", C[:o.ins2] + [('w', 0)] + C[o.ins2:] + W)
        e("s_branch L_p2")
    g.lab("L_code_end")

    if o.align:
        out = []
        for k, l in enumerate(g.L):
            if l.strip().startswith("v_mfma") and not g.L[k - 1].strip().startswith("v_mfma"):
                if o.align == 1 or (o.align == 2 and g.L[k - 1].strip().startswith(("s_waitcnt", "s_barrier"))):
                    out.append("    .p2align 3")
            out.append(l)
        g.L = out
    if o.shift:
        k = next(i for i, l in enumerate(g.L) if "pos 0: c0" in l)
        g.L.insert(k, "    s_nop 0")
    body = "\n".join(g.L)
    txt = HEADER + DOC + f""".amdgcn_target "amdgcn-amd-amdhsa--gfx950"
.text
.globl {KNAME}
.p2align 8
.type {KNAME},@function
{body}
.section .rodata,"a"
.p2align 6
.amdhsa_kernel {KNAME}
  .amdhsa_next_free_vgpr 512
  .amdhsa_next_free_sgpr 102
  .amdhsa_accum_offset 256
  .amdhsa_group_segment_fixed_size 0
  .amdhsa_kernarg_size 48
  .amdhsa_user_sgpr_count 2
  .amdhsa_user_sgpr_kernarg_segment_ptr 1
  .amdhsa_system_sgpr_workgroup_id_x 1
.end_amdhsa_kernel
"""
    return txt


def parse(argv):
    p = argparse.ArgumentParser()
    p.add_argument("-o", default=None)
    p.add_argument("--co", default=None)
    p.add_argument("--stamps", default="")
    p.add_argument("--rt", type=int, default=0)
    p.add_argument("--depth", type=int, default=10)
    p.add_argument("--nbuf", type=int, default=16)
    p.add_argument("--ins", type=int, default=4)
    p.add_argument("--ins2", type=int, default=6)
    p.add_argument("--rotsh", type=int, default=2)
    p.add_argument("--qmask", type=int, default=1)
    p.add_argument("--outflag", default="sc1")
    p.add_argument("--probe", default="")
    p.add_argument("--cpf", type=int, default=1)
    p.add_argument("--touch", type=int, default=1)
    p.add_argument("--npf", type=int, default=0)
    p.add_argument("--pat", type=int, default=6)
    p.add_argument("--redmode", type=int, default=0)
    p.add_argument("--presleep", type=int, default=0)
    p.add_argument("--wfirst", type=int, default=0)
    p.add_argument("--npre", type=int, default=2)
    p.add_argument("--pollk", type=int, default=3)
    p.add_argument("--apoll", type=int, default=4)
    p.add_argument("--el", type=int, default=0)
    p.add_argument("--rbar", type=int, default=0)
    p.add_argument("--tlb", type=int, default=0)
    p.add_argument("--wx", type=int, default=0)
    p.add_argument("--hoff", type=lambda v: int(v, 0), default=0)
    p.add_argument("--tord", default="w23,x23")
    p.add_argument("--nosnake", type=int, default=0)
    p.add_argument("--pairwait", type=int, default=0)
    p.add_argument("--lastflag", default="sc1")
    p.add_argument("--idlerot", type=int, default=1)
    p.add_argument("--rq", type=int, default=1)
    p.add_argument("--early1", type=int, default=3)
    p.add_argument("--align", type=int, default=0)
    p.add_argument("--shift", type=int, default=0)
    p.add_argument("--i6", type=int, default=2)
    p.add_argument("--stage", type=int, default=5)
    p.add_argument("--earlyst", type=int, default=1)
    p.add_argument("--fasttail", type=int, default=1)
    p.add_argument("--m0early", type=int, default=1)
    p.add_argument("--ptouch", type=int, default=1)
    p.add_argument("--idlesleep", type=int, default=0)
    return p.parse_args(argv)


if __name__ == "__main__":
    o = parse(sys.argv[1:])
    txt = gen(o)
    if o.o:
        open(o.o, "w").write(txt)
    if o.co:
        open(o.co + ".s", "w").write(txt + META)
        r = subprocess.run(["clang", "-x", "assembler", "-target", "amdgcn-amd-amdhsa",
                            "-mcpu=gfx950", o.co + ".s", "-o", o.co + ".co"], capture_output=True, text=True)
        if r.returncode:
            print(r.stderr[:4000])
            sys.exit(1)
```
